```python
import torch

def _softmax(x, axis=-1):
    return torch.softmax(x, dim=axis)
def _gelu(x):
    return torch.nn.functional.gelu(x, approximate="tanh")
def _silu(x):
    return torch.nn.functional.silu(x)
def _sigmoid(x):
    return torch.sigmoid(x)
def _layernorm(x, axis=-1, eps=1e-5):
    m = x.mean(dim=axis, keepdim=True)
    v = x.var(dim=axis, keepdim=True, unbiased=False)
    return (x - m) / torch.sqrt(v + eps)
def _scatter_add(tgt, idx, src, axis=0):
    return tgt.clone().index_add_(axis, idx, src)
def _segment_sum(src, seg, n):
    out = torch.zeros((n,) + src.shape[1:], dtype=src.dtype)
    return out.index_add_(0, seg, src)
def _pad(x, pw):
    flat = tuple(v for pair in reversed(pw) for v in pair)
    return torch.nn.functional.pad(x, flat)

kernel_name = 'sequential_preLN__sliding_block__glu_gated_glu__prompt'

def setup_inputs():

    _w = (lambda a: (lambda t: t.to(torch.bfloat16) if t.is_floating_point() else t)(torch.as_tensor(a)))
    def _A_setup():
        B, S, D = 1, 2048, 512
        return {
            "x": _w((lambda *s: torch.randn(*s, dtype=torch.bfloat16) * 0.05)(B, S, D)),
            "wqkv": _w((lambda *s: torch.randn(*s, dtype=torch.bfloat16) * 0.05)(D, 3 * D)),
            "wo": _w((lambda *s: torch.randn(*s, dtype=torch.bfloat16) * 0.05)(D, D)),
        }
    _A_in = _A_setup()

    def _B_setup():
        B, S, D, F = 1, 2048, 512, 1376
        return {
            "x": _w((lambda *s: torch.randn(*s, dtype=torch.bfloat16) * 0.05)(B, S, D)),
            "w_gate": _w((lambda *s: torch.randn(*s, dtype=torch.bfloat16) * 0.05)(D, F)),
            "w_up": _w((lambda *s: torch.randn(*s, dtype=torch.bfloat16) * 0.05)(D, F)),
            "w_down": _w((lambda *s: torch.randn(*s, dtype=torch.bfloat16) * 0.05)(F, D)),
        }
    _B_in = _B_setup()

    return {
        "A_x": _A_in["x"],
        "A_wqkv": _A_in["wqkv"],
        "A_wo": _A_in["wo"],
        "B_x": _B_in["x"],
        "B_w_gate": _B_in["w_gate"],
        "B_w_up": _B_in["w_up"],
        "B_w_down": _B_in["w_down"],
    }

def reference(A_x, A_wqkv, A_wo, B_x, B_w_gate, B_w_up, B_w_down):
    def _A_ref(x, wqkv, wo):
        B, S, D = x.shape
        H = 32; Dh = D // H; W = 256
        qkv = (lambda x, *d: x.permute(*d))((x @ wqkv).reshape(B, S, 3, H, Dh), 2, 0, 3, 1, 4)
        q, k, v = qkv[0], qkv[1], qkv[2]
        scores = torch.einsum("bhqd,bhkd->bhqk", q, k) * (Dh ** -0.5)
        idx = torch.arange(S)
        mask = (idx[:, None] - idx[None, :] >= 0) & (idx[:, None] - idx[None, :] < W)
        scores = torch.where(mask[None, None], scores, -1e9)
        p = _softmax(scores, axis=-1)
        o = torch.einsum("bhqk,bhkd->bhqd", p, v)
        return (lambda x, *d: x.permute(*d))(o, 0, 2, 1, 3).reshape(B, S, D) @ wo

    def _B_ref(x, w_gate, w_up, w_down):
        g = torch.einsum("bsd,df->bsf", x, w_gate)
        u = torch.einsum("bsd,df->bsf", x, w_up)
        h = _sigmoid(g) * u
        return torch.einsum("bsf,fd->bsd", h, w_down)

    x = A_x
    h = x + _A_ref(_layernorm(x, axis=-1), A_wqkv, A_wo)
    h2 = h + _B_ref(_layernorm(h, axis=-1), B_w_gate, B_w_up, B_w_down)
    return h2
```

```python
import sys
NAME = "sequential_preLN__sliding_block__glu_gated_glu__prompt"
WS_QK, WS_VT, WS_O, WS_H, WS_HM = 0, 4 << 20, 6 << 20, 8 << 20, 10 << 20
WS_SIZE = 268435456
L = []
def e(s): L.append("    " + s)
def lab(s): L.append(s + ":")
def cmt(s): L.append("    ; " + s)
def vr(a, n=1): return f"v{a}" if n == 1 else f"v[{a}:{a+n-1}]"
def sr(a, n=1): return f"s{a}" if n == 1 else f"s[{a}:{a+n-1}]"

def srd(d, ptr, nbytes, add=0):
    if add:
        e(f"s_add_u32 s{d}, s{ptr}, {add}")
        e(f"s_addc_u32 s{d+1}, s{ptr+1}, 0")
    else:
        e(f"s_mov_b32 s{d}, s{ptr}")
        e(f"s_mov_b32 s{d+1}, s{ptr+1}")
    e(f"s_mov_b32 s{d+2}, {nbytes}")
    e(f"s_mov_b32 s{d+3}, 0x00020000")

def header(name):
    L.append(".text")
    L.append(f".globl {name}")
    L.append(".p2align 8")
    L.append(f".type {name},@function")
    lab(name)

for p in range(768):
    assert (p * 2731) >> 16 == p // 24

def gen_ln_gemm(mode):
    qkv = mode == "qkv"
    name = "k_qkv_kernel" if qkv else "k_gu_kernel"
    header(name)
    R = 4; S = 8 if qkv else 16
    WROW = 3072 if qkv else 2752
    KADV = (64 if qkv else 32) * WROW
    XB = 0; WB = 65536; SLOT = 24576
    sX, sW, sO = 8, 12, 16
    s_wave, s_cg, s_rt, s_wm, s_wn, s_m0, s_k, s_t, s_t2 = 20, 21, 22, 23, 24, 25, 26, 27, 28
    e(f"s_cmp_ge_u32 s2, 256")
    e(f"s_cbranch_scc1 {name}_done")
    e("s_load_dwordx4 s[32:35], s[0:1], 0")
    e("s_load_dwordx4 s[36:39], s[0:1], 32")
    e("s_load_dwordx2 s[40:41], s[0:1], 72")
    e("v_lshrrev_b32 v1, 6, v0")
    e("v_and_b32 v2, 63, v0")
    e("s_nop 0")
    e(f"v_readfirstlane_b32 s{s_wave}, v1")
    e(f"s_and_b32 s{s_cg}, s2, 7")
    e(f"s_lshr_b32 s{s_rt}, s2, 3")
    e(f"s_lshr_b32 s{s_wm}, s{s_wave}, 2")
    e(f"s_and_b32 s{s_wn}, s{s_wave}, 3")
    e("s_waitcnt lgkmcnt(0)")
    if qkv:
        srd(sX, 32, 2048 * 1024)
        srd(sW, 34, 512 * 3072)
        srd(sO, 40, 6 << 20)
    else:
        srd(sX, 40, 2048 * 1024, WS_H)
        e(f"s_cmp_eq_u32 s{s_wm}, 0")
        e("s_cselect_b32 s42, s36, s38")
        e("s_cselect_b32 s43, s37, s39")
        srd(sW, 42, 512 * 2752)
        srd(sO, 40, 2048 * 2752, WS_HM)
    e("v_lshrrev_b32 v4, 3, v2")
    e("v_and_b32 v5, 7, v2")
    e(f"s_lshl_b32 s{s_t}, s{s_wave}, 3")
    e(f"v_add_u32 v6, s{s_t}, v4")
    e("v_lshlrev_b32 v3, 10, v6")
    e("v_lshl_add_u32 v3, v5, 4, v3")
    e(f"s_lshl_b32 s{s_t}, s{s_rt}, 16")
    for i in range(8):
        e(f"buffer_load_dwordx4 {vr(32+4*i,4)}, v3, {sr(sX,4)}, s{s_t} offen offset:{i*128}")
    e(f"s_mul_i32 s{s_t2}, s{s_wn}, 192")
    for i in range(3):
        e(f"v_add_u32 v11, s{s_t2}, v2")
        if i: e(f"v_add_u32 v11, {i*64}, v11")
        e("v_mul_u32_u24 v12, 2731, v11")
        e("v_lshrrev_b32 v12, 16, v12")
        e("v_mul_u32_u24 v13, 24, v12")
        e("v_sub_u32 v13, v11, v13")
        e("v_bfe_u32 v14, v12, 1, 1")
        e("v_bfe_u32 v15, v12, 3, 1")
        e("v_lshl_or_b32 v14, v15, 1, v14")
        e("v_lshlrev_b32 v14, 1, v14")
        e("v_xor_b32 v13, v13, v14")
        e(f"s_mov_b32 s{s_t}, {WROW}")
        e(f"v_mul_lo_u32 v12, v12, s{s_t}")
        e(f"v_lshl_add_u32 v{8+i}, v13, 4, v12")
    e(f"s_mul_i32 s{s_k}, s{s_cg}, 384")
    if qkv:
        e(f"s_mul_i32 s{s_t}, s{s_wm}, {32*3072}")
        e(f"s_add_u32 s{s_k}, s{s_k}, s{s_t}")
    e(f"s_mul_i32 s{s_m0}, s{s_wave}, 3072")
    e(f"s_add_u32 s{s_m0}, s{s_m0}, {WB}")
    def dma(st):
        slot = st % R
        for i in range(3):
            e(f"s_add_u32 m0, s{s_m0}, {slot*SLOT + i*1024}")
            e("s_nop 0")
            e(f"buffer_load_dwordx4 v{8+i}, {sr(sW,4)}, s{s_k} offen lds")
        e(f"s_add_u32 s{s_k}, s{s_k}, {KADV}")
    for st in range(R): dma(st)
    e(f"s_waitcnt vmcnt({3*R})")
    for i in range(32):
        e(f"v_lshlrev_b32 v{64+2*i}, 16, v{32+i}")
        e(f"v_and_b32 v{65+2*i}, 0xffff0000, v{32+i}")
    e(f"v_pk_add_f32 v[16:17], v[64:65], v[66:67]")
    e(f"v_pk_add_f32 v[18:19], v[68:69], v[70:71]")
    for i in range(4, 32, 2):
        e(f"v_pk_add_f32 v[16:17], v[16:17], {vr(64+2*i,2)}")
        e(f"v_pk_add_f32 v[18:19], v[18:19], {vr(66+2*i,2)}")
    e("v_pk_add_f32 v[16:17], v[16:17], v[18:19]")
    e("v_add_f32 v16, v16, v17")
    def red8(v):
        for ctl in ("quad_perm:[1,0,3,2]", "quad_perm:[2,3,0,1]", "row_half_mirror"):
            e("s_nop 1")
            e(f"v_add_f32_dpp v{v}, v{v}, v{v} {ctl} row_mask:0xf bank_mask:0xf")
    red8(16)
    e("v_mul_f32 v16, 0xbb000000, v16")
    e("v_mov_b32 v17, v16")
    for i in range(32):
        e(f"v_pk_add_f32 {vr(64+2*i,2)}, {vr(64+2*i,2)}, v[16:17]")
    e(f"v_pk_mul_f32 v[18:19], v[64:65], v[64:65]")
    e(f"v_pk_mul_f32 v[20:21], v[66:67], v[66:67]")
    for i in range(2, 32, 2):
        e(f"v_pk_fma_f32 v[18:19], {vr(64+2*i,2)}, {vr(64+2*i,2)}, v[18:19]")
        e(f"v_pk_fma_f32 v[20:21], {vr(66+2*i,2)}, {vr(66+2*i,2)}, v[20:21]")
    e("v_pk_add_f32 v[18:19], v[18:19], v[20:21]")
    e("v_add_f32 v18, v18, v19")
    red8(18)
    e("v_mov_b32 v19, 0x3727c5ac")
    e("v_fmac_f32 v19, 0x3b000000, v18")
    e("v_rsq_f32 v18, v19")
    e("s_nop 0")
    e("v_mov_b32 v19, v18")
    for i in range(32):
        e(f"v_pk_mul_f32 {vr(64+2*i,2)}, {vr(64+2*i,2)}, v[18:19]")
    for i in range(32):
        e(f"v_cvt_pk_bf16_f32 v{32+i}, v{64+2*i}, v{65+2*i}")
    e("v_xor_b32 v22, v4, v5")
    e(f"s_and_b32 s{s_t}, s{s_wave}, 1")
    e(f"s_lshl_b32 s{s_t}, s{s_t}, 3")
    e(f"v_add_u32 v23, s{s_t}, v22")
    e(f"s_xor_b32 s{s_t}, s{s_t}, 8")
    e(f"v_add_u32 v24, s{s_t}, v22")
    e("v_lshlrev_b32 v20, 10, v6")
    e("v_lshl_add_u32 v21, v24, 4, v20")
    e("v_lshl_add_u32 v20, v23, 4, v20")
    for i in range(8):
        e(f"ds_write_b128 v{20+(i&1)}, {vr(32+4*i,4)} offset:{XB+(i>>1)*256}")
    e("v_and_b32 v4, 15, v2")
    e("v_lshrrev_b32 v5, 4, v2")
    e(f"s_lshl_b32 s{s_t}, s{s_wm}, 15")
    e("v_lshlrev_b32 v6, 10, v4")
    e(f"v_add_u32 v6, s{s_t}, v6")
    e("v_and_b32 v7, 3, v4")
    e("v_xor_b32 v7, v7, v5")
    e("v_lshrrev_b32 v11, 2, v4")
    for k in range(4):
        e(f"v_xor_b32 v12, {k}, v11")
        e("v_lshl_or_b32 v12, v12, 2, v7")
        e(f"v_lshl_add_u32 v{24+k}, v12, 4, v6")
    e("v_lshrrev_b32 v11, 2, v4")
    e("v_and_b32 v12, 3, v4")
    e("v_lshl_add_u32 v13, v5, 3, v11")
    e("v_mul_u32_u24 v13, 384, v13")
    e("v_lshl_add_u32 v13, v12, 3, v13")
    e(f"v_add_u32 v13, {WB}, v13")
    e("v_lshrrev_b32 v14, 1, v11")
    e("v_and_b32 v15, 1, v5")
    e("v_lshl_or_b32 v14, v15, 1, v14")
    e(f"s_mul_i32 s{s_t}, s{s_wn}, 3")
    for j in range(3):
        e(f"s_add_u32 s{s_t2}, s{s_t}, {j}")
        e(f"v_xor_b32 v15, s{s_t2}, v14")
        e(f"v_lshl_add_u32 v{16+j}, v15, 5, v13")
        e(f"v_add_u32 v{19+j}, {2*SLOT}, v{16+j}")
    ACC = 128
    NACC = 6 if qkv else 12
    for i in range(NACC * 4):
        e(f"v_mov_b32 v{ACC+i}, 0")
    FS = [32, 80]
    def reads(st):
        base = FS[st & 1]; slot = st % R
        wa = 16 if slot < 2 else 19; so = (slot & 1) * SLOT
        nk = 2 if qkv else 1
        for kk in range(nk):
            ks = st * nk + kk
            for mt in range(2):
                e(f"ds_read_b128 {vr(base+(kk*2+mt)*4,4)}, v{24+(ks&3)} offset:{XB+(ks>>2)*256+mt*16384}")
        for b in range(2):
            for j in range(3):
                for t2 in range(2):
                    e(f"ds_read_b64_tr_b16 {vr(base+16+(b*3+j)*4+t2*2,2)}, v{wa+j} offset:{so+b*12288+t2*1536}")
    def mfmas(st):
        base = FS[st & 1]
        for b in range(2):
            for j in range(3):
                for mt in range(2):
                    if qkv: a = ACC + (mt*3+j)*4; x = base + (b*2+mt)*4
                    else:   a = ACC + ((b*2+mt)*3+j)*4; x = base + mt*4
                    e(f"v_mfma_f32_16x16x32_bf16 {vr(a,4)}, {vr(base+16+(b*3+j)*4,4)}, {vr(x,4)}, {vr(a,4)}")
    issued = R
    for st in range(S):
        e(f"s_waitcnt vmcnt({(issued-1-st)*3}) lgkmcnt(0)")
        e("s_barrier")
        if st >= 1 and issued < S:
            dma(issued); issued += 1
        reads(st)
        if st >= 1: mfmas(st - 1)
    e("s_waitcnt lgkmcnt(0)")
    mfmas(S - 1)
    e("s_barrier")
    e("v_lshlrev_b32 v6, 5, v4")
    e("v_lshl_add_u32 v6, v5, 3, v6")
    if qkv:
        e(f"s_lshl_b32 s{s_t}, s{s_wave}, 9")
        e(f"v_add_u32 v7, s{s_t}, v6")
        e("v_lshrrev_b32 v11, 2, v4")
        e("v_and_b32 v12, 3, v4")
        e("v_lshl_add_u32 v11, v5, 2, v11")
        e("v_lshlrev_b32 v11, 5, v11")
        e("v_lshl_add_u32 v11, v12, 3, v11")
        e(f"v_add_u32 v11, s{s_t}, v11")
        e(f"s_mul_i32 s29, s{s_cg}, 12")
        e(f"s_mul_i32 s{s_t}, s{s_wn}, 3")
        e(f"s_add_u32 s29, s29, s{s_t}")
        e(f"s_lshl_b32 s30, s{s_rt}, 2")
        e(f"s_lshl_b32 s{s_t}, s{s_wm}, 1")
        e(f"s_add_u32 s30, s30, s{s_t}")
        e("s_nop 4")
        for j in range(3):
            for mt in range(2):
                a = ACC + (mt*3+j)*4
                e(f"v_cvt_pk_bf16_f32 v32, v{a}, v{a+1}")
                e(f"v_cvt_pk_bf16_f32 v33, v{a+2}, v{a+3}")
                e(f"s_add_u32 s{s_t}, s29, {j}")
                e(f"s_add_u32 s{s_t2}, s30, {mt}")
                e(f"s_cmp_ge_u32 s{s_t}, 64")
                e(f"s_cbranch_scc1 {name}_v{j}{mt}")
                e(f"s_lshl_b32 s{s_t}, s{s_t}, 16")
                e(f"s_lshl_b32 s{s_t2}, s{s_t2}, 9")
                e(f"s_add_u32 s{s_t}, s{s_t}, s{s_t2}")
                e(f"buffer_store_dwordx2 v[32:33], v6, {sr(sO,4)}, s{s_t} offen")
                e(f"s_branch {name}_n{j}{mt}")
                lab(f"{name}_v{j}{mt}")
                e("ds_write_b64 v7, v[32:33]")
                e("s_waitcnt lgkmcnt(0)")
                e("ds_read_b64_tr_b16 v[34:35], v11")
                e(f"s_sub_u32 s{s_t}, s{s_t}, 64")
                e(f"s_lshl_b32 s{s_t}, s{s_t}, 16")
                e(f"s_lshl_b32 s{s_t2}, s{s_t2}, 9")
                e(f"s_add_u32 s{s_t}, s{s_t}, s{s_t2}")
                e(f"s_add_u32 s{s_t}, s{s_t}, {WS_VT}")
                e("s_waitcnt lgkmcnt(0)")
                e(f"buffer_store_dwordx2 v[34:35], v6, {sr(sO,4)}, s{s_t} offen")
                lab(f"{name}_n{j}{mt}")
                e("s_nop 1")
    else:
        e(f"s_lshl_b32 s{s_t}, s{s_rt}, 6")
        e(f"s_lshl_b32 s{s_t2}, s{s_wm}, 5")
        e(f"s_add_u32 s{s_t}, s{s_t}, s{s_t2}")
        e(f"v_add_u32 v7, s{s_t}, v4")
        e(f"s_mov_b32 s{s_t}, 2752")
        e(f"v_mul_lo_u32 v7, v7, s{s_t}")
        e("v_lshl_add_u32 v7, v5, 3, v7")
        e(f"s_mul_i32 s29, s{s_cg}, 12")
        e(f"s_mul_i32 s{s_t}, s{s_wn}, 3")
        e(f"s_add_u32 s29, s29, s{s_t}")
        e("s_mov_b32 s30, 0xbfb8aa3b")
        e("s_nop 4")
        for j in range(3):
            e(f"s_add_u32 s{s_t}, s29, {j}")
            e(f"s_cmp_ge_u32 s{s_t}, 86")
            e(f"s_cbranch_scc1 {name}_skip{j}")
            e(f"s_lshl_b32 s{s_t}, s{s_t}, 5")
            for mt in range(2):
                g = ACC + (mt*3+j)*4; u = ACC + ((2+mt)*3+j)*4
                for r in range(4): e(f"v_mul_f32 v{32+r}, s30, v{g+r}")
                for r in range(4): e(f"v_exp_f32 v{32+r}, v{32+r}")
                e("s_nop 0")
                for r in range(4): e(f"v_add_f32 v{32+r}, 1.0, v{32+r}")
                for r in range(4): e(f"v_rcp_f32 v{32+r}, v{32+r}")
                e("s_nop 0")
                for r in range(4): e(f"v_mul_f32 v{32+r}, v{32+r}, v{u+r}")
                e(f"v_cvt_pk_bf16_f32 v{36+2*mt}, v32, v33")
                e(f"v_cvt_pk_bf16_f32 v{37+2*mt}, v34, v35")
                e(f"buffer_store_dwordx2 {vr(36+2*mt,2)}, v7, {sr(sO,4)}, s{s_t} offen offset:0" if mt == 0 else
                  f"buffer_store_dwordx2 {vr(36+2*mt,2)}, v41, {sr(sO,4)}, s{s_t} offen")
                if mt == 0: e(f"v_add_u32 v41, {16*2752}, v7")
            e("s_nop 1")
            lab(f"{name}_skip{j}")
    lab(f"{name}_done")
    e("s_endpgm")
    return name, 256, 512, 163840, 176

def gen_plain(mode):
    wo = mode == "wo"
    name = "k_wo_kernel" if wo else "k_down_kernel"
    header(name)
    R = 4
    K = 512 if wo else 1376
    AS = 1024 if wo else 2752
    stages = [(k0, min(128, K - k0)) for k0 in range(0, K, 128)]
    S = len(stages)
    SLOT = 32768
    sA, sW, sR, sO = 8, 12, 16, 44
    s_wave, s_cg, s_rt, s_wm, s_wn, s_m0, s_ka, s_kw, s_t, s_t2 = 20, 21, 22, 23, 24, 25, 26, 27, 28, 29
    e(f"s_cmp_ge_u32 s2, 256")
    e(f"s_cbranch_scc1 {name}_done")
    e("s_load_dwordx2 s[32:33], s[0:1], 0")
    e("s_load_dwordx2 s[34:35], s[0:1], %d" % (16 if wo else 48))
    e("s_load_dwordx2 s[36:37], s[0:1], 56")
    e("s_load_dwordx2 s[40:41], s[0:1], 72")
    e("v_lshrrev_b32 v1, 6, v0")
    e("v_and_b32 v2, 63, v0")
    e("s_nop 0")
    e(f"v_readfirstlane_b32 s{s_wave}, v1")
    e(f"s_and_b32 s{s_cg}, s2, 7")
    e(f"s_lshr_b32 s{s_rt}, s2, 3")
    e(f"s_lshr_b32 s{s_wm}, s{s_wave}, 2")
    e(f"s_and_b32 s{s_wn}, s{s_wave}, 3")
    e("s_waitcnt lgkmcnt(0)")
    if wo:
        srd(sA, 40, 2048 * 1024, WS_O); srd(sW, 34, 512 * 1024)
        srd(sR, 32, 2048 * 1024); srd(sO, 40, 2048 * 1024, WS_H)
    else:
        srd(sA, 40, 2048 * 2752, WS_HM); srd(sW, 34, 1376 * 1024)
        srd(sR, 40, 2048 * 1024, WS_H); srd(sO, 36, 2048 * 1024)
    for i in range(2):
        e(f"s_lshl_b32 s{s_t}, s{s_wave}, 7")
        e(f"v_add_u32 v12, s{s_t}, v2")
        if i: e("v_add_u32 v12, 64, v12")
        e("v_lshrrev_b32 v13, 4, v12")
        e("v_and_b32 v14, 15, v12")
        e("v_and_b32 v15, 15, v13")
        e("v_xor_b32 v14, v14, v15")
        e(f"s_mov_b32 s{s_t}, {AS}")
        e(f"v_mul_lo_u32 v13, v13, s{s_t}")
        e(f"v_lshl_add_u32 v{8+i}, v14, 4, v13")
        e("v_lshrrev_b32 v13, 3, v12")
        e("v_and_b32 v14, 7, v12")
        e("v_bfe_u32 v15, v13, 1, 1")
        e("v_bfe_u32 v16, v13, 3, 1")
        e("v_lshl_or_b32 v15, v16, 1, v15")
        e("v_lshlrev_b32 v15, 1, v15")
        e("v_xor_b32 v14, v14, v15")
        e("v_lshlrev_b32 v13, 10, v13")
        e(f"v_lshl_add_u32 v{10+i}, v14, 4, v13")
    e(f"s_mul_i32 s{s_ka}, s{s_rt}, {64*AS}")
    e(f"s_lshl_b32 s{s_kw}, s{s_cg}, 7")
    e(f"s_lshl_b32 s{s_m0}, s{s_wave}, 11")
    def dma(st):
        slot = st % R
        for i in range(2):
            e(f"s_add_u32 m0, s{s_m0}, {slot*SLOT + i*1024}")
            e("s_nop 0")
            e(f"buffer_load_dwordx4 v{8+i}, {sr(sA,4)}, s{s_ka} offen lds")
            e(f"s_add_u32 m0, s{s_m0}, {slot*SLOT + 16384 + i*1024}")
            e("s_nop 0")
            e(f"buffer_load_dwordx4 v{10+i}, {sr(sW,4)}, s{s_kw} offen lds")
        e(f"s_add_u32 s{s_ka}, s{s_ka}, 256")
        e(f"s_add_u32 s{s_kw}, s{s_kw}, {128*1024}")
    issued = min(R, S)
    for st in range(issued): dma(st)
    e("v_and_b32 v4, 15, v2")
    e("v_lshrrev_b32 v5, 4, v2")
    e(f"s_lshl_b32 s{s_t}, s{s_rt}, 6")
    e(f"s_lshl_b32 s{s_t2}, s{s_wm}, 5")
    e(f"s_add_u32 s{s_t}, s{s_t}, s{s_t2}")
    e(f"v_add_u32 v6, s{s_t}, v4")
    e("v_lshlrev_b32 v6, 10, v6")
    e("v_lshl_add_u32 v6, v5, 3, v6")
    e(f"s_lshl_b32 s{s_t}, s{s_cg}, 7")
    e(f"s_lshl_b32 s{s_t2}, s{s_wn}, 5")
    e(f"s_add_u32 s30, s{s_t}, s{s_t2}")
    e("v_add_u32 v7, 16384, v6")
    e(f"buffer_load_dwordx2 v[136:137], v6, {sr(sR,4)}, s30 offen")
    e(f"buffer_load_dwordx2 v[138:139], v7, {sr(sR,4)}, s30 offen")
    e(f"s_lshl_b32 s{s_t}, s{s_wm}, 13")
    e("v_lshlrev_b32 v12, 8, v4")
    e(f"v_add_u32 v12, s{s_t}, v12")
    e("v_and_b32 v13, 3, v4")
    e("v_xor_b32 v13, v13, v5")
    e("v_lshrrev_b32 v14, 2, v4")
    for k in range(4):
        e(f"v_xor_b32 v15, {k}, v14")
        e("v_lshl_or_b32 v15, v15, 2, v13")
        e(f"v_lshl_add_u32 v{16+k}, v15, 4, v12")
        e(f"v_add_u32 v{20+k}, {2*SLOT}, v{16+k}")
    e("v_lshrrev_b32 v12, 2, v4")
    e("v_and_b32 v13, 3, v4")
    e("v_lshl_add_u32 v14, v5, 3, v12")
    e("v_lshlrev_b32 v14, 7, v14")
    e("v_lshl_add_u32 v14, v13, 3, v14")
    e("v_lshrrev_b32 v15, 1, v12")
    e("v_and_b32 v13, 1, v5")
    e("v_lshl_or_b32 v15, v13, 1, v15")
    e(f"v_xor_b32 v15, s{s_wn}, v15")
    e("v_lshl_add_u32 v24, v15, 5, v14")
    e("v_add_u32 v24, 16384, v24")
    e(f"v_add_u32 v25, {2*SLOT}, v24")
    ACC = 128
    for i in range(8): e(f"v_mov_b32 v{ACC+i}, 0")
    FS = [28, 76]
    def reads(st):
        base = FS[st & 1]; slot = st % R; hi = slot >= 2; so = (slot & 1) * SLOT
        for ks in range(stages[st][1] // 32):
            for mt in range(2):
                e(f"ds_read_b128 {vr(base+(ks*2+mt)*4,4)}, v{(20 if hi else 16)+ks} offset:{so+mt*4096}")
            for t2 in range(2):
                e(f"ds_read_b64_tr_b16 {vr(base+32+ks*4+t2*2,2)}, v{25 if hi else 24} offset:{so+ks*4096+t2*512}")
    def mfmas(st):
        base = FS[st & 1]
        for ks in range(stages[st][1] // 32):
            for mt in range(2):
                a = ACC + mt * 4
                e(f"v_mfma_f32_16x16x32_bf16 {vr(a,4)}, {vr(base+32+ks*4,4)}, {vr(base+(ks*2+mt)*4,4)}, {vr(a,4)}")
    for st in range(S):
        after = (issued - 1 - st) * 4 + (2 if st < min(R, S) else 0)
        e(f"s_waitcnt vmcnt({after}) lgkmcnt(0)")
        e("s_barrier")
        if st >= 1 and issued < S:
            dma(issued); issued += 1
        reads(st)
        if st >= 1: mfmas(st - 1)
    e("s_waitcnt vmcnt(0) lgkmcnt(0)")
    mfmas(S - 1)
    e("s_nop 7"); e("s_nop 1")
    for mt in range(2):
        a = ACC + mt*4; r = 136 + 2*mt
        e(f"v_lshlrev_b32 v12, 16, v{r}")
        e(f"v_and_b32 v13, 0xffff0000, v{r}")
        e(f"v_lshlrev_b32 v14, 16, v{r+1}")
        e(f"v_and_b32 v15, 0xffff0000, v{r+1}")
        for i in range(4): e(f"v_add_f32 v{12+i}, v{12+i}, v{a+i}")
        e(f"v_cvt_pk_bf16_f32 v{r}, v12, v13")
        e(f"v_cvt_pk_bf16_f32 v{r+1}, v14, v15")
        e(f"buffer_store_dwordx2 {vr(r,2)}, v{6+mt}, {sr(sO,4)}, s30 offen")
    lab(f"{name}_done")
    e("s_endpgm")
    return name, 256, 512, 131072, 144

def gen_attn():
    name = "k_attn_kernel"
    header(name)
    sWS, sO = 8, 12
    s_wave, s_head, s_qt, s_t, s_t2, s_kb, s_vb = 20, 21, 22, 23, 24, 25, 26
    e("s_cmp_ge_u32 s2, 1024")
    e(f"s_cbranch_scc1 {name}_done")
    e("s_load_dwordx2 s[40:41], s[0:1], 72")
    e("v_lshrrev_b32 v1, 6, v0")
    e("v_and_b32 v2, 63, v0")
    e("s_nop 0")
    e(f"v_readfirstlane_b32 s{s_wave}, v1")
    e(f"s_lshr_b32 s{s_head}, s2, 5")
    e(f"s_and_b32 s{s_qt}, s2, 31")
    e(f"s_lshl_b32 s{s_qt}, s{s_qt}, 2")
    e(f"s_add_u32 s{s_qt}, s{s_qt}, s{s_wave}")
    e("v_and_b32 v4, 15, v2")
    e("v_lshrrev_b32 v5, 4, v2")
    e("v_lshlrev_b32 v6, 5, v4")
    e("v_lshl_add_u32 v6, v5, 3, v6")
    e("s_waitcnt lgkmcnt(0)")
    srd(sWS, 40, 6 << 20)
    srd(sO, 40, 2048 * 1024, WS_O)
    e(f"s_lshl_b32 s{s_t}, s{s_head}, 16")
    e(f"s_lshl_b32 s{s_t2}, s{s_qt}, 9")
    e(f"s_add_u32 s{s_t2}, s{s_t2}, s{s_t}")
    QF, KF, VF, SS = 8, 12, 48, 84
    e(f"buffer_load_dwordx2 {vr(QF,2)}, v6, {sr(sWS,4)}, s{s_t2} offen")
    e(f"s_add_u32 s{s_kb}, s{s_t}, {32*65536}")
    e(f"s_add_u32 s{s_vb}, s{s_t}, {WS_VT}")
    for t in range(17):
        e(f"s_add_i32 s{48+t}, s{s_qt}, {t-16}")
        e(f"s_max_i32 s{48+t}, s{48+t}, 0")
        e(f"s_lshl_b32 s{48+t}, s{48+t}, 9")
    for t in range(17):
        e(f"s_add_u32 s{s_t}, s{s_kb}, s{48+t}")
        e(f"buffer_load_dwordx2 {vr(KF+2*t,2)}, v6, {sr(sWS,4)}, s{s_t} offen")
    for t in range(17):
        e(f"s_add_u32 s{s_t}, s{s_vb}, s{48+t}")
        e(f"buffer_load_dwordx2 {vr(VF+2*t,2)}, v6, {sr(sWS,4)}, s{s_t} offen")
    e("v_lshlrev_b32 v7, 2, v5")
    e("v_sub_u32 v7, v7, v4")
    e("v_mov_b32 v3, 0xf149f2ca")
    for t in range(17):
        e(f"s_waitcnt vmcnt({17+16-t})")
        e(f"v_mfma_f32_16x16x16_bf16 {vr(SS+4*t,4)}, {vr(KF+2*t,2)}, {vr(QF,2)}, 0")
    e("s_nop 7")
    for r in range(4):
        e(f"v_add_u32 v1, {r}, v7")
        e("v_cmp_lt_i32 vcc, 0, v1")
        e("s_nop 1")
        e(f"v_cndmask_b32 v{SS+r}, v3, v{SS+r}, vcc")
        e(f"v_cndmask_b32 v{SS+64+r}, v{SS+64+r}, v3, vcc")
    for t in range(16):
        e(f"s_cmp_ge_u32 s{s_qt}, {16-t}")
        e(f"s_cbranch_scc1 {name}_m{t}")
        for r in range(4): e(f"v_mov_b32 v{SS+4*t+r}, v3")
        lab(f"{name}_m{t}")
    e(f"v_max3_f32 v152, v{SS}, v{SS+1}, v{SS+2}")
    e(f"v_max3_f32 v153, v{SS+3}, v{SS+4}, v{SS+5}")
    i = 6
    while i + 3 < 68:
        e(f"v_max3_f32 v152, v152, v{SS+i}, v{SS+i+1}")
        e(f"v_max3_f32 v153, v153, v{SS+i+2}, v{SS+i+3}")
        i += 4
    assert i == 66
    e(f"v_max3_f32 v152, v152, v{SS+66}, v{SS+67}")
    e("v_max_f32 v152, v152, v153")
    e("v_xor_b32 v154, 16, v2"); e("v_lshlrev_b32 v154, 2, v154")
    e("v_xor_b32 v155, 32, v2"); e("v_lshlrev_b32 v155, 2, v155")
    for a in (154, 155):
        e(f"ds_bpermute_b32 v153, v{a}, v152")
        e("s_waitcnt lgkmcnt(0)")
        e("v_max_f32 v152, v152, v153")
    e("s_mov_b32 s30, 0x3eb8aa3b")
    e("v_mul_f32 v152, s30, v152")
    e("v_sub_f32 v152, 0, v152")
    e("v_mov_b32 v156, s30")
    for i in range(68):
        e(f"v_fma_f32 v{SS+i}, v{SS+i}, v156, v152")
    for i in range(68):
        e(f"v_exp_f32 v{SS+i}, v{SS+i}")
    e("s_nop 0")
    e(f"v_pk_add_f32 v[158:159], {vr(SS,2)}, {vr(SS+2,2)}")
    e(f"v_pk_add_f32 v[160:161], {vr(SS+4,2)}, {vr(SS+6,2)}")
    for i in range(8, 68, 4):
        e(f"v_pk_add_f32 v[158:159], v[158:159], {vr(SS+i,2)}")
        e(f"v_pk_add_f32 v[160:161], v[160:161], {vr(SS+i+2,2)}")
    e("v_pk_add_f32 v[158:159], v[158:159], v[160:161]")
    e("v_add_f32 v158, v158, v159")
    for t in range(17):
        e(f"v_cvt_pk_bf16_f32 v{KF+2*t}, v{SS+4*t}, v{SS+4*t+1}")
        e(f"v_cvt_pk_bf16_f32 v{KF+2*t+1}, v{SS+4*t+2}, v{SS+4*t+3}")
    for a in (154, 155):
        e(f"ds_bpermute_b32 v159, v{a}, v158")
        e("s_waitcnt lgkmcnt(0)")
        e("v_add_f32 v158, v158, v159")
    e("v_rcp_f32 v158, v158")
    e("s_waitcnt vmcnt(0)")
    e(f"v_mfma_f32_16x16x16_bf16 v[160:163], {vr(VF+32,2)}, {vr(KF+32,2)}, 0")
    for t in range(1, 8, 2):
        pass
    e(f"v_mfma_f32_16x16x32_bf16 v[164:167], {vr(VF,4)}, {vr(KF,4)}, 0")
    for p in range(1, 8):
        a = 160 if p & 1 else 164
        if p == 1:
            e("s_nop 7")
        e(f"v_mfma_f32_16x16x32_bf16 {vr(a,4)}, {vr(VF+4*p,4)}, {vr(KF+4*p,4)}, {vr(a,4)}")
    e("s_nop 7"); e("s_nop 1")
    for r in range(4):
        e(f"v_add_f32 v{160+r}, v{160+r}, v{164+r}")
    for r in range(4):
        e(f"v_mul_f32 v{160+r}, v{160+r}, v158")
    e("v_cvt_pk_bf16_f32 v160, v160, v161")
    e("v_cvt_pk_bf16_f32 v161, v162, v163")
    e("v_lshlrev_b32 v7, 10, v4")
    e("v_lshl_add_u32 v7, v5, 3, v7")
    e(f"s_lshl_b32 s{s_t}, s{s_qt}, 14")
    e(f"s_lshl_b32 s{s_t2}, s{s_head}, 5")
    e(f"s_add_u32 s{s_t}, s{s_t}, s{s_t2}")
    e(f"buffer_store_dwordx2 v[160:161], v7, {sr(sO,4)}, s{s_t} offen")
    lab(f"{name}_done")
    e("s_endpgm")
    return name, 1024, 256, 0, 168

def main():
    kernels = []
    kernels.append(gen_ln_gemm("qkv"))
    kernels.append(gen_attn())
    kernels.append(gen_plain("wo"))
    kernels.append(gen_ln_gemm("gu"))
    kernels.append(gen_plain("down"))
    out = []
    src = open("cdna_kernels/%s.s.ref" % NAME).read().split("\n")
    for ln in src:
        if ln.startswith("; Override"): break
        out.append(ln)
    for (n, g, b, lds, vg) in kernels:
        out.append(f"; @launch kernel={n} grid=({g},1,1) block=({b},1,1) lds={lds}")
    out.append('.amdgcn_target "amdgcn-amd-amdhsa--gfx950"')
    out += L
    out.append('.section .rodata,"a"')
    for (n, g, b, lds, vg) in kernels:
        out.append(".p2align 6")
        out.append(f".amdhsa_kernel {n}")
        out.append(f"  .amdhsa_next_free_vgpr {vg}")
        out.append("  .amdhsa_next_free_sgpr 102")
        out.append(f"  .amdhsa_accum_offset {vg}")
        out.append("  .amdhsa_group_segment_fixed_size 0")
        out.append("  .amdhsa_kernarg_size 80")
        out.append("  .amdhsa_user_sgpr_count 2")
        out.append("  .amdhsa_user_sgpr_kernarg_segment_ptr 1")
        out.append("  .amdhsa_system_sgpr_workgroup_id_x 1")
        out.append(".end_amdhsa_kernel")
    open("cdna_kernels/%s.s" % NAME, "w").write("\n".join(out) + "\n")

if __name__ == "__main__":
    main()
```

```python
import sys
NAME = "sequential_preLN__sliding_block__glu_gated_glu__prompt"
WS_QK, WS_VT, WS_O, WS_H, WS_HM = 0, 4 << 20, 6 << 20, 8 << 20, 10 << 20
WS_SIZE = 268435456
L = []
MAPS = dict(qkv="rows", wo="rows", gu="2d", down="rows")
def e(s): L.append("    " + s)
def lab(s): L.append(s + ":")
def cmt(s): L.append("    ; " + s)
def vr(a, n=1): return f"v{a}" if n == 1 else f"v[{a}:{a+n-1}]"
def sr(a, n=1): return f"s{a}" if n == 1 else f"s[{a}:{a+n-1}]"

def srd(d, ptr, nbytes, add=0):
    if add:
        e(f"s_add_u32 s{d}, s{ptr}, {add}")
        e(f"s_addc_u32 s{d+1}, s{ptr+1}, 0")
    else:
        e(f"s_mov_b32 s{d}, s{ptr}")
        e(f"s_mov_b32 s{d+1}, s{ptr+1}")
    e(f"s_mov_b32 s{d+2}, {nbytes}")
    e(f"s_mov_b32 s{d+3}, 0x00020000")

def wgmap(s_cg, s_rt, m):
    if m == "cols":
        e(f"s_and_b32 s{s_cg}, s2, 7")
        e(f"s_lshr_b32 s{s_rt}, s2, 3")
    elif m == "rows":
        e(f"s_and_b32 s{s_rt}, s2, 7")
        e(f"s_lshl_b32 s{s_rt}, s{s_rt}, 2")
        e(f"s_bfe_u32 s{s_cg}, s2, 0x20003")
        e(f"s_add_u32 s{s_rt}, s{s_rt}, s{s_cg}")
        e(f"s_lshr_b32 s{s_cg}, s2, 5")
    elif m == "2d":
        e(f"s_and_b32 s{s_rt}, s2, 1")
        e(f"s_lshl_b32 s{s_rt}, s{s_rt}, 4")
        e(f"s_bfe_u32 s{s_cg}, s2, 0x40003")
        e(f"s_add_u32 s{s_rt}, s{s_rt}, s{s_cg}")
        e(f"s_bfe_u32 s{s_cg}, s2, 0x20001")
        e(f"s_lshl_b32 s{s_cg}, s{s_cg}, 1")
        e(f"s_lshr_b32 s100, s2, 7")
        e(f"s_add_u32 s{s_cg}, s{s_cg}, s100")

import os
STAMP = os.environ.get("STAMP", "")
DFL = os.environ.get("DFL", "")
PDL = int(os.environ.get("PDL", "3"))
NST = [0]
def stamp(kn):
    if STAMP != kn: return
    i = NST[0]; NST[0] += 1
    e(f"s_memtime s[{70+2*i}:{71+2*i}]")
def stamp_out(kn, wg=37):
    if STAMP != kn: return
    e("s_waitcnt lgkmcnt(0) vmcnt(0)")
    e(f"s_cmp_lg_u32 s2, {wg}")
    e(f"s_cbranch_scc1 {kn}_nost")
    e("s_load_dwordx2 s[96:97], s[0:1], 64")
    e("v_lshrrev_b32 v1, 6, v0")
    e("v_lshlrev_b32 v1, 5, v1")
    e("s_waitcnt lgkmcnt(0)")
    for i in range(min(8, NST[0])):
        e(f"s_sub_u32 s98, s{70+2*i}, s70")
        e(f"v_mov_b32 v2, s98")
        e(f"global_store_dword v1, v2, s[96:97] offset:{4*i}")
    lab(f"{kn}_nost")

def capture(fn, *a):
    global L
    old = L; L = []
    fn(*a)
    r = L; L = old
    return r
def chunks_of(lines):
    out = []; i = 0
    while i < len(lines):
        if "m0" in lines[i]:
            out.append(lines[i:i+3]); i += 3
        else:
            out.append([lines[i]]); i += 1
    return out
def interleave(A, B):
    global L
    n = len(A); m = len(B); j = 0
    for i, a in enumerate(A):
        L.append(a)
        tgt = (i + 1) * m // n
        while j < tgt:
            L += B[j]; j += 1
    while j < m:
        L += B[j]; j += 1

def header(name):
    L.append(".text")
    L.append(f".globl {name}")
    L.append(".p2align 8")
    L.append(f".type {name},@function")
    lab(name)

for p in range(768):
    assert (p * 2731) >> 16 == p // 24

def gen_ln_gemm(mode):
    qkv = mode == "qkv"
    name = "k_qkv_kernel" if qkv else "k_gu_kernel"
    MAPMODE = MAPS[mode]
    header(name)
    R = 4; S = 8 if qkv else 16
    WROW = 3072 if qkv else 2752
    KADV = (64 if qkv else 32) * WROW
    XB = 0; WB = 65536; SLOT = 24576
    XR = 176; RS = 208
    sX, sW, sO = 8, 12, 16
    s_wave, s_cg, s_rt, s_wm, s_wn, s_m0, s_k, s_t, s_t2 = 20, 21, 22, 23, 24, 25, 26, 27, 28
    e(f"s_cmp_ge_u32 s2, 256")
    e(f"s_cbranch_scc1 {name}_done")
    stamp(name)
    e("s_load_dwordx4 s[32:35], s[0:1], 0")
    e("s_load_dwordx4 s[36:39], s[0:1], 32")
    e("s_load_dwordx2 s[40:41], s[0:1], 72")
    e("v_lshrrev_b32 v1, 6, v0")
    e("v_and_b32 v2, 63, v0")
    e("s_nop 0")
    e(f"v_readfirstlane_b32 s{s_wave}, v1")
    wgmap(s_cg, s_rt, MAPMODE)
    e(f"s_lshr_b32 s{s_wm}, s{s_wave}, 2")
    e(f"s_and_b32 s{s_wn}, s{s_wave}, 3")
    e("s_waitcnt lgkmcnt(0)")
    if qkv:
        srd(sX, 32, 2048 * 1024)
        srd(sW, 34, 512 * 3072)
        srd(sO, 40, 6 << 20)
    else:
        srd(sX, 40, 2048 * 1024, WS_H)
        e(f"s_cmp_eq_u32 s{s_wm}, 0")
        e("s_cselect_b32 s42, s36, s38")
        e("s_cselect_b32 s43, s37, s39")
        srd(sW, 42, 512 * 2752)
        srd(sO, 40, 2048 * 2752, WS_HM)
    e("v_lshrrev_b32 v4, 3, v2")
    e("v_and_b32 v5, 7, v2")
    e(f"s_lshl_b32 s{s_t}, s{s_wave}, 3")
    e(f"v_add_u32 v6, s{s_t}, v4")
    e("v_lshlrev_b32 v3, 10, v6")
    e("v_lshl_add_u32 v3, v5, 4, v3")
    e(f"s_lshl_b32 s{s_t}, s{s_rt}, 16")
    for i in range(8):
        e(f"buffer_load_dwordx4 {vr(XR+4*i,4)}, v3, {sr(sX,4)}, s{s_t} offen offset:{i*128}")
    e(f"s_mul_i32 s{s_t2}, s{s_wn}, 192")
    for i in range(3):
        e(f"v_add_u32 v11, s{s_t2}, v2")
        if i: e(f"v_add_u32 v11, {i*64}, v11")
        e("v_mul_u32_u24 v12, 2731, v11")
        e("v_lshrrev_b32 v12, 16, v12")
        e("v_mul_u32_u24 v13, 24, v12")
        e("v_sub_u32 v13, v11, v13")
        e("v_bfe_u32 v14, v12, 1, 1")
        e("v_bfe_u32 v15, v12, 3, 1")
        e("v_lshl_or_b32 v14, v15, 1, v14")
        e("v_lshlrev_b32 v14, 1, v14")
        if not os.environ.get("NOSWZ"): e("v_xor_b32 v13, v13, v14")
        e(f"s_mov_b32 s{s_t}, {WROW}")
        e(f"v_mul_lo_u32 v12, v12, s{s_t}")
        e(f"v_lshl_add_u32 v{8+i}, v13, 4, v12")
    e(f"s_mul_i32 s{s_k}, s{s_cg}, 384")
    if qkv:
        e(f"s_mul_i32 s{s_t}, s{s_wm}, {32*3072}")
        e(f"s_add_u32 s{s_k}, s{s_k}, s{s_t}")
    e(f"s_mul_i32 s{s_m0}, s{s_wave}, 3072")
    e(f"s_add_u32 s{s_m0}, s{s_m0}, {WB}")
    def dma(st):
        slot = st % R
        for i in range(3):
            e(f"s_add_u32 m0, s{s_m0}, {slot*SLOT + i*1024}")
            e("s_nop 0")
            e(f"buffer_load_dwordx4 v{8+i}, {sr(sW,4)}, s{s_k} offen {DFL} lds")
        e(f"s_add_u32 s{s_k}, s{s_k}, {KADV}")
    dma(0)
    e(f"s_waitcnt vmcnt(3)")
    stamp(name)
    e("s_mov_b32 s31, 0x3f803f80")
    e(f"v_dot2_f32_bf16 v16, v{XR}, s31, 0")
    e(f"v_dot2_f32_bf16 v17, v{XR+1}, s31, 0")
    e(f"v_dot2_f32_bf16 v18, v{XR}, v{XR}, 0")
    e(f"v_dot2_f32_bf16 v19, v{XR+1}, v{XR+1}, 0")
    for i in range(2, 32, 2):
        e(f"v_dot2_f32_bf16 v16, v{XR+i}, s31, v16")
        e(f"v_dot2_f32_bf16 v17, v{XR+i+1}, s31, v17")
        e(f"v_dot2_f32_bf16 v18, v{XR+i}, v{XR+i}, v18")
        e(f"v_dot2_f32_bf16 v19, v{XR+i+1}, v{XR+i+1}, v19")
    e("s_nop 3")
    e("v_add_f32 v16, v16, v17")
    e("v_add_f32 v18, v18, v19")
    for ctl in ("quad_perm:[1,0,3,2]", "quad_perm:[2,3,0,1]", "row_half_mirror"):
        e("s_nop 1")
        e(f"v_add_f32_dpp v16, v16, v16 {ctl} row_mask:0xf bank_mask:0xf")
        e(f"v_add_f32_dpp v18, v18, v18 {ctl} row_mask:0xf bank_mask:0xf")
    dma(1)
    e("v_mul_f32 v16, 0x3b000000, v16")
    e("v_mul_f32 v18, 0x3b000000, v18")
    e("v_fma_f32 v18, -v16, v16, v18")
    e("v_max_f32 v18, 0, v18")
    e("v_add_f32 v18, 0x3727c5ac, v18")
    e(f"v_rsq_f32 v{RS}, v18")
    e("s_nop 0")
    e(f"v_mul_f32 v{RS+1}, v16, v{RS}")
    e(f"v_sub_f32 v{RS+1}, 0, v{RS+1}")
    e("v_xor_b32 v22, v4, v5")
    e(f"s_and_b32 s{s_t}, s{s_wave}, 1")
    e(f"s_lshl_b32 s{s_t}, s{s_t}, 3")
    e(f"v_add_u32 v23, s{s_t}, v22")
    e(f"s_xor_b32 s{s_t}, s{s_t}, 8")
    e(f"v_add_u32 v24, s{s_t}, v22")
    e(f"v_lshlrev_b32 v{RS+2}, 10, v6")
    e(f"v_lshl_add_u32 v{RS+3}, v24, 4, v{RS+2}")
    e(f"v_lshl_add_u32 v{RS+2}, v23, 4, v{RS+2}")
    def norm(i):
        for r in range(4):
            x = XR + 4*i + r
            e(f"v_lshlrev_b32 v{RS+4}, 16, v{x}")
            e(f"v_and_b32 v{RS+5}, 0xffff0000, v{x}")
            e(f"v_fma_f32 v{RS+4}, v{RS+4}, v{RS}, v{RS+1}")
            e(f"v_fma_f32 v{RS+5}, v{RS+5}, v{RS}, v{RS+1}")
            e(f"v_cvt_pk_bf16_f32 v{x}, v{RS+4}, v{RS+5}")
        e(f"ds_write_b128 v{RS+2+(i&1)}, {vr(XR+4*i,4)} offset:{XB+(i>>1)*256}")
    norm(0); norm(1)
    stamp(name)
    e("v_and_b32 v4, 15, v2")
    e("v_lshrrev_b32 v5, 4, v2")
    e(f"s_lshl_b32 s{s_t}, s{s_wm}, 15")
    e("v_lshlrev_b32 v6, 10, v4")
    e(f"v_add_u32 v6, s{s_t}, v6")
    e("v_and_b32 v7, 3, v4")
    e("v_xor_b32 v7, v7, v5")
    e("v_lshrrev_b32 v11, 2, v4")
    for k in range(4):
        e(f"v_xor_b32 v12, {k}, v11")
        e("v_lshl_or_b32 v12, v12, 2, v7")
        e(f"v_lshl_add_u32 v{24+k}, v12, 4, v6")
    e("v_lshrrev_b32 v11, 2, v4")
    e("v_and_b32 v12, 3, v4")
    e("v_lshl_add_u32 v13, v5, 3, v11")
    e("v_mul_u32_u24 v13, 384, v13")
    e("v_lshl_add_u32 v13, v12, 3, v13")
    e(f"v_add_u32 v13, {WB}, v13")
    e("v_lshrrev_b32 v14, 1, v11")
    e("v_and_b32 v15, 1, v5")
    e("v_lshl_or_b32 v14, v15, 1, v14")
    e(f"s_mul_i32 s{s_t}, s{s_wn}, 3")
    for j in range(3):
        e(f"s_add_u32 s{s_t2}, s{s_t}, {j}")
        e(f"v_xor_b32 v15, s{s_t2}, v14")
        e(f"v_lshl_add_u32 v{16+j}, v15, 5, v13")
        e(f"v_add_u32 v{19+j}, {2*SLOT}, v{16+j}")
    ACC = 128
    NACC = 6 if qkv else 12
    for i in range(NACC * 4):
        e(f"v_mov_b32 v{ACC+i}, 0")
    FS = [32, 80]
    def reads(st):
        base = FS[st & 1]; slot = st % R
        wa = 16 if slot < 2 else 19; so = (slot & 1) * SLOT
        nk = 2 if qkv else 1
        for kk in range(nk):
            ks = st * nk + kk
            for mt in range(2):
                e(f"ds_read_b128 {vr(base+(kk*2+mt)*4,4)}, v{24+(ks&3)} offset:{XB+(ks>>2)*256+mt*16384}")
        for b in range(2):
            for j in range(3):
                for t2 in range(2):
                    e(f"ds_read_b64_tr_b16 {vr(base+16+(b*3+j)*4+t2*2,2)}, v{wa+j} offset:{so+b*12288+t2*1536}")
    def mfmas(st):
        base = FS[st & 1]
        for b in range(2):
            for j in range(3):
                for mt in range(2):
                    if qkv: a = ACC + (mt*3+j)*4; x = base + (b*2+mt)*4
                    else:   a = ACC + ((b*2+mt)*3+j)*4; x = base + mt*4
                    e(f"v_mfma_f32_16x16x32_bf16 {vr(a,4)}, {vr(base+16+(b*3+j)*4,4)}, {vr(x,4)}, {vr(a,4)}")
    issued = 2
    for st in range(S):
        e(f"s_waitcnt vmcnt({(issued-1-st)*3}) lgkmcnt(0)")
        e("s_barrier")
        if st in (0, 1, 2, 4, 6, S-1): stamp(name)
        B = chunks_of(capture(reads, st)) if not (os.environ.get("NORD") and st > 1) else []
        while issued < S and issued <= st + PDL:
            if not os.environ.get("NODMA"): B += chunks_of(capture(dma, issued))
            issued += 1
        if qkv:
            if st + 2 < 8: B += chunks_of(capture(norm, st + 2))
        else:
            if st % 2 == 0 and st // 2 + 2 < 8: B += chunks_of(capture(norm, st // 2 + 2))
        if st >= 1: interleave(capture(mfmas, st - 1), B)
        else:
            for c in B: L.extend(c)
    e("s_waitcnt lgkmcnt(0)")
    mfmas(S - 1)
    e("s_barrier")
    stamp(name)
    e("v_lshlrev_b32 v6, 5, v4")
    e("v_lshl_add_u32 v6, v5, 3, v6")
    if qkv:
        e(f"s_lshl_b32 s{s_t}, s{s_wave}, 9")
        e(f"v_add_u32 v7, s{s_t}, v6")
        e("v_lshrrev_b32 v11, 2, v4")
        e("v_and_b32 v12, 3, v4")
        e("v_lshl_add_u32 v11, v5, 2, v11")
        e("v_lshlrev_b32 v11, 5, v11")
        e("v_lshl_add_u32 v11, v12, 3, v11")
        e(f"v_add_u32 v11, s{s_t}, v11")
        e(f"s_mul_i32 s29, s{s_cg}, 12")
        e(f"s_mul_i32 s{s_t}, s{s_wn}, 3")
        e(f"s_add_u32 s29, s29, s{s_t}")
        e(f"s_lshl_b32 s30, s{s_rt}, 2")
        e(f"s_lshl_b32 s{s_t}, s{s_wm}, 1")
        e(f"s_add_u32 s30, s30, s{s_t}")
        e("s_nop 4")
        for j in range(3):
            for mt in range(2):
                a = ACC + (mt*3+j)*4
                e(f"v_cvt_pk_bf16_f32 v32, v{a}, v{a+1}")
                e(f"v_cvt_pk_bf16_f32 v33, v{a+2}, v{a+3}")
                e(f"s_add_u32 s{s_t}, s29, {j}")
                e(f"s_add_u32 s{s_t2}, s30, {mt}")
                e(f"s_cmp_ge_u32 s{s_t}, 64")
                e(f"s_cbranch_scc1 {name}_v{j}{mt}")
                e(f"s_lshl_b32 s{s_t}, s{s_t}, 16")
                e(f"s_lshl_b32 s{s_t2}, s{s_t2}, 9")
                e(f"s_add_u32 s{s_t}, s{s_t}, s{s_t2}")
                e(f"buffer_store_dwordx2 v[32:33], v6, {sr(sO,4)}, s{s_t} offen")
                e(f"s_branch {name}_n{j}{mt}")
                lab(f"{name}_v{j}{mt}")
                e("ds_write_b64 v7, v[32:33]")
                e("s_waitcnt lgkmcnt(0)")
                e("ds_read_b64_tr_b16 v[34:35], v11")
                e(f"s_sub_u32 s{s_t}, s{s_t}, 64")
                e(f"s_lshl_b32 s{s_t}, s{s_t}, 16")
                e(f"s_lshl_b32 s{s_t2}, s{s_t2}, 9")
                e(f"s_add_u32 s{s_t}, s{s_t}, s{s_t2}")
                e(f"s_add_u32 s{s_t}, s{s_t}, {WS_VT}")
                e("s_waitcnt lgkmcnt(0)")
                e(f"buffer_store_dwordx2 v[34:35], v6, {sr(sO,4)}, s{s_t} offen")
                lab(f"{name}_n{j}{mt}")
                e("s_nop 1")
    else:
        e(f"s_lshl_b32 s{s_t}, s{s_rt}, 6")
        e(f"s_lshl_b32 s{s_t2}, s{s_wm}, 5")
        e(f"s_add_u32 s{s_t}, s{s_t}, s{s_t2}")
        e(f"v_add_u32 v7, s{s_t}, v4")
        e(f"s_mov_b32 s{s_t}, 2752")
        e(f"v_mul_lo_u32 v7, v7, s{s_t}")
        e("v_lshl_add_u32 v7, v5, 3, v7")
        e(f"s_mul_i32 s29, s{s_cg}, 12")
        e(f"s_mul_i32 s{s_t}, s{s_wn}, 3")
        e(f"s_add_u32 s29, s29, s{s_t}")
        e("s_mov_b32 s30, 0xbfb8aa3b")
        e("s_nop 4")
        for j in range(3):
            e(f"s_add_u32 s{s_t}, s29, {j}")
            e(f"s_cmp_ge_u32 s{s_t}, 86")
            e(f"s_cbranch_scc1 {name}_skip{j}")
            e(f"s_lshl_b32 s{s_t}, s{s_t}, 5")
            for mt in range(2):
                g = ACC + (mt*3+j)*4; u = ACC + ((2+mt)*3+j)*4
                for r in range(4): e(f"v_mul_f32 v{32+r}, s30, v{g+r}")
                for r in range(4): e(f"v_exp_f32 v{32+r}, v{32+r}")
                e("s_nop 0")
                for r in range(4): e(f"v_add_f32 v{32+r}, 1.0, v{32+r}")
                for r in range(4): e(f"v_rcp_f32 v{32+r}, v{32+r}")
                e("s_nop 0")
                for r in range(4): e(f"v_mul_f32 v{32+r}, v{32+r}, v{u+r}")
                e(f"v_cvt_pk_bf16_f32 v{36+2*mt}, v32, v33")
                e(f"v_cvt_pk_bf16_f32 v{37+2*mt}, v34, v35")
                e(f"buffer_store_dwordx2 {vr(36+2*mt,2)}, v7, {sr(sO,4)}, s{s_t} offen offset:0" if mt == 0 else
                  f"buffer_store_dwordx2 {vr(36+2*mt,2)}, v41, {sr(sO,4)}, s{s_t} offen")
                if mt == 0: e(f"v_add_u32 v41, {16*2752}, v7")
            e("s_nop 1")
            lab(f"{name}_skip{j}")
    stamp(name)
    stamp_out(name)
    lab(f"{name}_done")
    e("s_endpgm")
    return name, 256, 512, 163840, 216

def gen_plain(mode):
    wo = mode == "wo"
    name = "k_wo_kernel" if wo else "k_down_kernel"
    MAPMODE = MAPS[mode]
    header(name)
    R = 4
    K = 512 if wo else 1376
    AS = 1024 if wo else 2752
    stages = [(k0, min(128, K - k0)) for k0 in range(0, K, 128)]
    S = len(stages)
    SLOT = 32768
    sA, sW, sR, sO = 8, 12, 16, 44
    s_wave, s_cg, s_rt, s_wm, s_wn, s_m0, s_ka, s_kw, s_t, s_t2 = 20, 21, 22, 23, 24, 25, 26, 27, 28, 29
    e(f"s_cmp_ge_u32 s2, 256")
    e(f"s_cbranch_scc1 {name}_done")
    stamp(name)
    e("s_load_dwordx2 s[32:33], s[0:1], 0")
    e("s_load_dwordx2 s[34:35], s[0:1], %d" % (16 if wo else 48))
    e("s_load_dwordx2 s[36:37], s[0:1], 56")
    e("s_load_dwordx2 s[40:41], s[0:1], 72")
    e("v_lshrrev_b32 v1, 6, v0")
    e("v_and_b32 v2, 63, v0")
    e("s_nop 0")
    e(f"v_readfirstlane_b32 s{s_wave}, v1")
    wgmap(s_cg, s_rt, MAPMODE)
    e(f"s_lshr_b32 s{s_wm}, s{s_wave}, 2")
    e(f"s_and_b32 s{s_wn}, s{s_wave}, 3")
    e("s_waitcnt lgkmcnt(0)")
    if wo:
        srd(sA, 40, 2048 * 1024, WS_O); srd(sW, 34, 512 * 1024)
        srd(sR, 32, 2048 * 1024); srd(sO, 40, 2048 * 1024, WS_H)
    else:
        srd(sA, 40, 2048 * 2752, WS_HM); srd(sW, 34, 1376 * 1024)
        srd(sR, 40, 2048 * 1024, WS_H); srd(sO, 36, 2048 * 1024)
    for i in range(2):
        e(f"s_lshl_b32 s{s_t}, s{s_wave}, 7")
        e(f"v_add_u32 v12, s{s_t}, v2")
        if i: e("v_add_u32 v12, 64, v12")
        e("v_lshrrev_b32 v13, 4, v12")
        e("v_and_b32 v14, 15, v12")
        e("v_and_b32 v15, 15, v13")
        e("v_xor_b32 v14, v14, v15")
        e(f"s_mov_b32 s{s_t}, {AS}")
        e(f"v_mul_lo_u32 v13, v13, s{s_t}")
        e(f"v_lshl_add_u32 v{8+i}, v14, 4, v13")
        e("v_lshrrev_b32 v13, 3, v12")
        e("v_and_b32 v14, 7, v12")
        e("v_bfe_u32 v15, v13, 1, 1")
        e("v_bfe_u32 v16, v13, 3, 1")
        e("v_lshl_or_b32 v15, v16, 1, v15")
        e("v_lshlrev_b32 v15, 1, v15")
        e("v_xor_b32 v14, v14, v15")
        e("v_lshlrev_b32 v13, 10, v13")
        e(f"v_lshl_add_u32 v{10+i}, v14, 4, v13")
    e(f"s_mul_i32 s{s_ka}, s{s_rt}, {64*AS}")
    e(f"s_lshl_b32 s{s_kw}, s{s_cg}, 7")
    e(f"s_lshl_b32 s{s_m0}, s{s_wave}, 11")
    VG = os.environ.get("VG", "") == "1" and wo
    def dma(st):
        slot = st % R
        if VG:
            for i in range(2):
                e(f"buffer_load_dwordx4 {vr(160+st*16+i*8,4)}, v{8+i}, {sr(sA,4)}, s{s_ka} offen")
                e(f"buffer_load_dwordx4 {vr(164+st*16+i*8,4)}, v{10+i}, {sr(sW,4)}, s{s_kw} offen")
            e(f"s_add_u32 s{s_ka}, s{s_ka}, 256")
            e(f"s_add_u32 s{s_kw}, s{s_kw}, {128*1024}")
            return
        for i in range(2):
            e(f"s_add_u32 m0, s{s_m0}, {slot*SLOT + i*1024}")
            e("s_nop 0")
            e(f"buffer_load_dwordx4 v{8+i}, {sr(sA,4)}, s{s_ka} offen {DFL} lds")
            e(f"s_add_u32 m0, s{s_m0}, {slot*SLOT + 16384 + i*1024}")
            e("s_nop 0")
            e(f"buffer_load_dwordx4 v{10+i}, {sr(sW,4)}, s{s_kw} offen {DFL} lds")
        e(f"s_add_u32 s{s_ka}, s{s_ka}, 256")
        e(f"s_add_u32 s{s_kw}, s{s_kw}, {128*1024}")
    D = int(os.environ.get("PD", "2"))
    issued = min(D, S)
    for st in range(issued): dma(st)
    e("v_and_b32 v4, 15, v2")
    e("v_lshrrev_b32 v5, 4, v2")
    e(f"v_lshl_add_u32 v140, v2, 4, s{s_m0}")
    e(f"v_add_u32 v141, {2*SLOT}, v140")
    e(f"s_lshl_b32 s{s_t}, s{s_rt}, 6")
    e(f"s_lshl_b32 s{s_t2}, s{s_wm}, 5")
    e(f"s_add_u32 s{s_t}, s{s_t}, s{s_t2}")
    e(f"v_add_u32 v6, s{s_t}, v4")
    e("v_lshlrev_b32 v6, 10, v6")
    e("v_lshl_add_u32 v6, v5, 3, v6")
    e(f"s_lshl_b32 s{s_t}, s{s_cg}, 7")
    e(f"s_lshl_b32 s{s_t2}, s{s_wn}, 5")
    e(f"s_add_u32 s30, s{s_t}, s{s_t2}")
    e("v_add_u32 v7, 16384, v6")
    e(f"buffer_load_dwordx2 v[136:137], v6, {sr(sR,4)}, s30 offen")
    e(f"buffer_load_dwordx2 v[138:139], v7, {sr(sR,4)}, s30 offen")
    e(f"s_lshl_b32 s{s_t}, s{s_wm}, 13")
    e("v_lshlrev_b32 v12, 8, v4")
    e(f"v_add_u32 v12, s{s_t}, v12")
    e("v_and_b32 v13, 3, v4")
    e("v_xor_b32 v13, v13, v5")
    e("v_lshrrev_b32 v14, 2, v4")
    for k in range(4):
        e(f"v_xor_b32 v15, {k}, v14")
        e("v_lshl_or_b32 v15, v15, 2, v13")
        e(f"v_lshl_add_u32 v{16+k}, v15, 4, v12")
        e(f"v_add_u32 v{20+k}, {2*SLOT}, v{16+k}")
    e("v_lshrrev_b32 v12, 2, v4")
    e("v_and_b32 v13, 3, v4")
    e("v_lshl_add_u32 v14, v5, 3, v12")
    e("v_lshlrev_b32 v14, 7, v14")
    e("v_lshl_add_u32 v14, v13, 3, v14")
    e("v_lshrrev_b32 v15, 1, v12")
    e("v_and_b32 v13, 1, v5")
    e("v_lshl_or_b32 v15, v13, 1, v15")
    e(f"v_xor_b32 v15, s{s_wn}, v15")
    e("v_lshl_add_u32 v24, v15, 5, v14")
    e("v_add_u32 v24, 16384, v24")
    e(f"v_add_u32 v25, {2*SLOT}, v24")
    ACC = 128
    for i in range(8): e(f"v_mov_b32 v{ACC+i}, 0")
    FS = [28, 76]
    def reads(st):
        base = FS[st & 1]; slot = st % R; hi = slot >= 2; so = (slot & 1) * SLOT
        for ks in range(stages[st][1] // 32):
            for mt in range(2):
                e(f"ds_read_b128 {vr(base+(ks*2+mt)*4,4)}, v{(20 if hi else 16)+ks} offset:{so+mt*4096}")
            for t2 in range(2):
                e(f"ds_read_b64_tr_b16 {vr(base+32+ks*4+t2*2,2)}, v{25 if hi else 24} offset:{so+ks*4096+t2*512}")
    def mfmas(st):
        base = FS[st & 1]
        for ks in range(stages[st][1] // 32):
            for mt in range(2):
                a = ACC + mt * 4
                e(f"v_mfma_f32_16x16x32_bf16 {vr(a,4)}, {vr(base+32+ks*4,4)}, {vr(base+(ks*2+mt)*4,4)}, {vr(a,4)}")
    for st in range(S):
        after = (issued - 1 - st) * 4 + (2 if st < min(D, S) else 0)
        if VG:
            e(f"s_waitcnt vmcnt({after})")
            for i in range(2):
                e(f"ds_write_b128 v{140+(st>>1)}, {vr(160+st*16+i*8,4)} offset:{(st&1)*SLOT+i*1024}")
                e(f"ds_write_b128 v{140+(st>>1)}, {vr(164+st*16+i*8,4)} offset:{(st&1)*SLOT+16384+i*1024}")
        e(f"s_waitcnt vmcnt({after}) lgkmcnt(0)")
        e("s_barrier")
        if st in (0,1,2,3,5,8): stamp(name)
        B = chunks_of(capture(reads, st))
        if issued < S:
            B += chunks_of(capture(dma, issued)); issued += 1
        if st >= 1: interleave(capture(mfmas, st - 1), B)
        else:
            for c in B: L.extend(c)
    e("s_waitcnt vmcnt(0) lgkmcnt(0)")
    mfmas(S - 1)
    e("s_nop 7"); e("s_nop 1")
    for mt in range(2):
        a = ACC + mt*4; r = 136 + 2*mt
        e(f"v_lshlrev_b32 v12, 16, v{r}")
        e(f"v_and_b32 v13, 0xffff0000, v{r}")
        e(f"v_lshlrev_b32 v14, 16, v{r+1}")
        e(f"v_and_b32 v15, 0xffff0000, v{r+1}")
        for i in range(4): e(f"v_add_f32 v{12+i}, v{12+i}, v{a+i}")
        e(f"v_cvt_pk_bf16_f32 v{r}, v12, v13")
        e(f"v_cvt_pk_bf16_f32 v{r+1}, v14, v15")
        e(f"buffer_store_dwordx2 {vr(r,2)}, v{6+mt}, {sr(sO,4)}, s30 offen")
    stamp(name)
    stamp_out(name)
    lab(f"{name}_done")
    e("s_endpgm")
    return name, 256, 512, 131072, 224

def gen_attn():
    name = "k_attn_kernel"
    header(name)
    sWS, sO = 8, 12
    s_wave, s_head, s_qt, s_t, s_t2, s_kb, s_vb = 20, 21, 22, 23, 24, 25, 26
    e("s_cmp_ge_u32 s2, 512")
    e(f"s_cbranch_scc1 {name}_done")
    stamp(name)
    e("s_load_dwordx2 s[40:41], s[0:1], 72")
    e("v_lshrrev_b32 v1, 6, v0")
    e("v_and_b32 v2, 63, v0")
    e("s_nop 0")
    e(f"v_readfirstlane_b32 s{s_wave}, v1")
    e(f"s_lshr_b32 s{s_head}, s2, 4")
    e(f"s_and_b32 s{s_qt}, s2, 15")
    e(f"s_lshl_b32 s{s_qt}, s{s_qt}, 3")
    e("v_and_b32 v4, 15, v2")
    e("v_lshrrev_b32 v5, 4, v2")
    e("v_lshlrev_b32 v6, 5, v4")
    e("v_lshl_add_u32 v6, v5, 3, v6")
    e("v_lshlrev_b32 v7, 4, v2")
    e("s_waitcnt lgkmcnt(0)")
    srd(sWS, 40, 6 << 20)
    srd(sO, 40, 2048 * 1024, WS_O)
    e(f"s_lshl_b32 s{s_t}, s{s_head}, 16")
    e(f"s_lshl_b32 s{s_t2}, s{s_qt}, 9")
    e(f"s_add_u32 s{s_t2}, s{s_t2}, s{s_t}")
    e(f"s_cmp_lt_u32 s{s_wave}, 4")
    e(f"s_mov_b32 s{s_vb}, {WS_VT-8192-12288}")
    e(f"s_cselect_b32 s{s_kb}, {32*65536-8192}, s{s_vb}")
    e(f"s_add_u32 s{s_kb}, s{s_kb}, s{s_t2}")
    e(f"s_mul_i32 s{s_vb}, s{s_wave}, 3072")
    e(f"s_add_u32 s{s_kb}, s{s_kb}, s{s_vb}")
    for i in range(3):
        e(f"s_add_u32 m0, s{s_vb}, {i*1024}")
        e("s_nop 0")
        e(f"buffer_load_dwordx4 v7, {sr(sWS,4)}, s{s_kb} offen lds")
        if i < 2: e(f"s_add_u32 s{s_kb}, s{s_kb}, 1024")
    e(f"s_add_u32 s{s_qt}, s{s_qt}, s{s_wave}")
    e(f"s_lshl_b32 s{s_t}, s{s_wave}, 9")
    e(f"s_add_u32 s{s_t2}, s{s_t2}, s{s_t}")
    QF, KF, SS = 8, 12, 48
    VF = KF
    T = 116
    e(f"buffer_load_dwordx2 {vr(QF,2)}, v6, {sr(sWS,4)}, s{s_t2} offen")
    e(f"v_add_u32 v10, s{s_t}, v6")
    e("v_lshlrev_b32 v7, 2, v5")
    e("v_sub_u32 v7, v7, v4")
    e("v_mov_b32 v3, 0xf149f2ca")
    e("s_waitcnt vmcnt(0)")
    e("s_barrier")
    stamp(name)
    for t in range(17):
        e(f"ds_read_b64 {vr(KF+2*t,2)}, v10 offset:{t*512}")
    for t in range(17):
        e(f"s_waitcnt lgkmcnt({min(15,16-t)})")
        e(f"v_mfma_f32_16x16x16_bf16 {vr(SS+4*t,4)}, {vr(KF+2*t,2)}, {vr(QF,2)}, 0")
    e("s_nop 7")
    for t in range(17):
        e(f"ds_read_b64 {vr(VF+2*t,2)}, v10 offset:{12288+t*512}")
    stamp(name)
    for r in range(4):
        e(f"v_add_u32 v1, {r}, v7")
        e("v_cmp_lt_i32 vcc, 0, v1")
        e("s_nop 1")
        e(f"v_cndmask_b32 v{SS+r}, v3, v{SS+r}, vcc")
        e(f"v_cndmask_b32 v{SS+64+r}, v{SS+64+r}, v3, vcc")
    for t in range(16):
        e(f"s_cmp_ge_u32 s{s_qt}, {16-t}")
        e(f"s_cbranch_scc1 {name}_m{t}")
        for r in range(4): e(f"v_mov_b32 v{SS+4*t+r}, v3")
        lab(f"{name}_m{t}")
    e(f"v_max3_f32 v{T}, v{SS}, v{SS+1}, v{SS+2}")
    e(f"v_max3_f32 v{T+1}, v{SS+3}, v{SS+4}, v{SS+5}")
    i = 6
    while i + 3 < 68:
        e(f"v_max3_f32 v{T}, v{T}, v{SS+i}, v{SS+i+1}")
        e(f"v_max3_f32 v{T+1}, v{T+1}, v{SS+i+2}, v{SS+i+3}")
        i += 4
    assert i == 66
    e(f"v_max3_f32 v{T}, v{T}, v{SS+66}, v{SS+67}")
    e(f"v_max_f32 v{T}, v{T}, v{T+1}")
    e(f"v_xor_b32 v{T+2}, 16, v2"); e(f"v_lshlrev_b32 v{T+2}, 2, v{T+2}")
    e(f"v_xor_b32 v{T+3}, 32, v2"); e(f"v_lshlrev_b32 v{T+3}, 2, v{T+3}")
    for a in (T+2, T+3):
        e(f"ds_bpermute_b32 v{T+1}, v{a}, v{T}")
        e("s_waitcnt lgkmcnt(0)")
        e(f"v_max_f32 v{T}, v{T}, v{T+1}")
    e("s_mov_b32 s30, 0x3eb8aa3b")
    e(f"v_mul_f32 v{T}, s30, v{T}")
    e(f"v_sub_f32 v{T}, 0, v{T}")
    e(f"v_mov_b32 v{T+4}, s30")
    for i in range(68):
        e(f"v_fma_f32 v{SS+i}, v{SS+i}, v{T+4}, v{T}")
    for i in range(68):
        e(f"v_exp_f32 v{SS+i}, v{SS+i}")
    e("s_nop 0")
    e(f"v_pk_add_f32 {vr(T+6,2)}, {vr(SS,2)}, {vr(SS+2,2)}")
    e(f"v_pk_add_f32 {vr(T+8,2)}, {vr(SS+4,2)}, {vr(SS+6,2)}")
    for i in range(8, 68, 4):
        e(f"v_pk_add_f32 {vr(T+6,2)}, {vr(T+6,2)}, {vr(SS+i,2)}")
        e(f"v_pk_add_f32 {vr(T+8,2)}, {vr(T+8,2)}, {vr(SS+i+2,2)}")
    e(f"v_pk_add_f32 {vr(T+6,2)}, {vr(T+6,2)}, {vr(T+8,2)}")
    e(f"v_add_f32 v{T+6}, v{T+6}, v{T+7}")
    for p in range(9):
        for h in range(4 if p < 8 else 2):
            e(f"v_cvt_pk_bf16_f32 v{SS+8*p+h}, v{SS+8*p+2*h}, v{SS+8*p+2*h+1}")
    for a in (T+2, T+3):
        e(f"ds_bpermute_b32 v{T+7}, v{a}, v{T+6}")
        e("s_waitcnt lgkmcnt(0)")
        e(f"v_add_f32 v{T+6}, v{T+6}, v{T+7}")
    e(f"v_rcp_f32 v{T}, v{T+6}")
    stamp(name)
    O1, O2 = 120, 124
    e(f"v_mfma_f32_16x16x16_bf16 {vr(O1,4)}, {vr(VF+32,2)}, {vr(SS+64,2)}, 0")
    e(f"v_mfma_f32_16x16x32_bf16 {vr(O2,4)}, {vr(VF,4)}, {vr(SS,4)}, 0")
    for p in range(1, 8):
        a = O1 if p & 1 else O2
        if p == 1:
            e("s_nop 7")
        e(f"v_mfma_f32_16x16x32_bf16 {vr(a,4)}, {vr(VF+4*p,4)}, {vr(SS+8*p,4)}, {vr(a,4)}")
    e("s_nop 7"); e("s_nop 1")
    for r in range(4):
        e(f"v_add_f32 v{O1+r}, v{O1+r}, v{O2+r}")
    for r in range(4):
        e(f"v_mul_f32 v{O1+r}, v{O1+r}, v{T}")
    e(f"v_cvt_pk_bf16_f32 v160, v{O1}, v{O1+1}".replace("v160", f"v{O1}"))
    e(f"v_cvt_pk_bf16_f32 v{O1+1}, v{O1+2}, v{O1+3}")
    e("v_lshlrev_b32 v7, 10, v4")
    e("v_lshl_add_u32 v7, v5, 3, v7")
    e(f"s_lshl_b32 s{s_t}, s{s_qt}, 14")
    e(f"s_lshl_b32 s{s_t2}, s{s_head}, 5")
    e(f"s_add_u32 s{s_t}, s{s_t}, s{s_t2}")
    e(f"buffer_store_dwordx2 v[120:121], v7, {sr(sO,4)}, s{s_t} offen")
    stamp(name)
    stamp_out(name)
    lab(f"{name}_done")
    e("s_endpgm")
    return name, 512, 512, 24576, 128

def main():
    kernels = []
    kernels.append(gen_ln_gemm("qkv"))
    kernels.append(gen_attn())
    kernels.append(gen_plain("wo"))
    kernels.append(gen_ln_gemm("gu"))
    kernels.append(gen_plain("down"))
    out = []
    src = open("cdna_kernels/%s.s.ref" % NAME).read().split("\n")
    for ln in src:
        if ln.startswith("; Override"): break
        out.append(ln)
    for (n, g, b, lds, vg) in kernels:
        out.append(f"; @launch kernel={n} grid=({g},1,1) block=({b},1,1) lds={lds}")
    out.append('.amdgcn_target "amdgcn-amd-amdhsa--gfx950"')
    out += L
    out.append('.section .rodata,"a"')
    for (n, g, b, lds, vg) in kernels:
        out.append(".p2align 6")
        out.append(f".amdhsa_kernel {n}")
        out.append(f"  .amdhsa_next_free_vgpr {vg}")
        out.append("  .amdhsa_next_free_sgpr 102")
        out.append(f"  .amdhsa_accum_offset {vg}")
        out.append("  .amdhsa_group_segment_fixed_size 0")
        out.append("  .amdhsa_kernarg_size 80")
        out.append("  .amdhsa_user_sgpr_count 2")
        out.append("  .amdhsa_user_sgpr_kernarg_segment_ptr 1")
        out.append("  .amdhsa_system_sgpr_workgroup_id_x 1")
        out.append(".end_amdhsa_kernel")
    open("cdna_kernels/%s.s" % NAME, "w").write("\n".join(out) + "\n")

if __name__ == "__main__":
    main()
```

```python
import sys
NAME = "sequential_preLN__sliding_block__glu_gated_glu__prompt"
WS_QK, WS_VT, WS_O, WS_H, WS_HM = 0, 4 << 20, 6 << 20, 8 << 20, 10 << 20
WS_SIZE = 268435456
L = []
MAPS = dict(qkv="4x2", wo="4x2", gu="4x2", down="4x2")
import os
for _k in MAPS:
    if os.environ.get("MAP_"+_k): MAPS[_k] = os.environ["MAP_"+_k]
def e(s): L.append("    " + s)
def lab(s): L.append(s + ":")
def cmt(s): L.append("    ; " + s)
def vr(a, n=1): return f"v{a}" if n == 1 else f"v[{a}:{a+n-1}]"
def sr(a, n=1): return f"s{a}" if n == 1 else f"s[{a}:{a+n-1}]"

def srd(d, ptr, nbytes, add=0):
    if add:
        e(f"s_add_u32 s{d}, s{ptr}, {add}")
        e(f"s_addc_u32 s{d+1}, s{ptr+1}, 0")
    else:
        e(f"s_mov_b32 s{d}, s{ptr}")
        e(f"s_mov_b32 s{d+1}, s{ptr+1}")
    e(f"s_mov_b32 s{d+2}, {nbytes}")
    e(f"s_mov_b32 s{d+3}, 0x00020000")

def wgmap(s_cg, s_rt, m):
    if m == "cols":
        e(f"s_and_b32 s{s_cg}, s2, 7")
        e(f"s_lshr_b32 s{s_rt}, s2, 3")
    elif m == "rows":
        e(f"s_and_b32 s{s_rt}, s2, 7")
        e(f"s_lshl_b32 s{s_rt}, s{s_rt}, 2")
        e(f"s_bfe_u32 s{s_cg}, s2, 0x20003")
        e(f"s_add_u32 s{s_rt}, s{s_rt}, s{s_cg}")
        e(f"s_lshr_b32 s{s_cg}, s2, 5")
    elif m == "4x2":
        e(f"s_and_b32 s{s_rt}, s2, 3")
        e(f"s_lshl_b32 s{s_rt}, s{s_rt}, 3")
        e(f"s_bfe_u32 s{s_cg}, s2, 0x30003")
        e(f"s_add_u32 s{s_rt}, s{s_rt}, s{s_cg}")
        e(f"s_bfe_u32 s{s_cg}, s2, 0x10002")
        e(f"s_lshl_b32 s{s_cg}, s{s_cg}, 2")
        e(f"s_lshr_b32 s100, s2, 6")
        e(f"s_add_u32 s{s_cg}, s{s_cg}, s100")
    elif m == "2d":
        e(f"s_and_b32 s{s_rt}, s2, 1")
        e(f"s_lshl_b32 s{s_rt}, s{s_rt}, 4")
        e(f"s_bfe_u32 s{s_cg}, s2, 0x40003")
        e(f"s_add_u32 s{s_rt}, s{s_rt}, s{s_cg}")
        e(f"s_bfe_u32 s{s_cg}, s2, 0x20001")
        e(f"s_lshl_b32 s{s_cg}, s{s_cg}, 1")
        e(f"s_lshr_b32 s100, s2, 7")
        e(f"s_add_u32 s{s_cg}, s{s_cg}, s100")

import os
STAMP = os.environ.get("STAMP", "")
DFL = os.environ.get("DFL", "")
PDL = int(os.environ.get("PDL", "3"))
NST = [0]
def stamp(kn):
    if STAMP != kn: return
    i = NST[0]; NST[0] += 1
    e(f"s_memtime s[{70+2*i}:{71+2*i}]")
def stamp_out(kn, wg=37):
    if STAMP != kn: return
    e("s_waitcnt lgkmcnt(0) vmcnt(0)")
    e(f"s_cmp_lg_u32 s2, {wg}")
    e(f"s_cbranch_scc1 {kn}_nost")
    e("s_load_dwordx2 s[96:97], s[0:1], 64")
    e("v_lshrrev_b32 v1, 6, v0")
    e("v_lshlrev_b32 v1, 5, v1")
    e("s_waitcnt lgkmcnt(0)")
    for i in range(min(8, NST[0])):
        e(f"s_sub_u32 s98, s{70+2*i}, s70")
        e(f"v_mov_b32 v2, s98")
        e(f"global_store_dword v1, v2, s[96:97] offset:{4*i}")
    lab(f"{kn}_nost")

def capture(fn, *a):
    global L
    old = L; L = []
    fn(*a)
    r = L; L = old
    return r
def chunks_of(lines):
    out = []; i = 0
    while i < len(lines):
        if "m0" in lines[i]:
            out.append(lines[i:i+3]); i += 3
        else:
            out.append([lines[i]]); i += 1
    return out
def interleave(A, B):
    global L
    n = len(A); m = len(B); j = 0
    for i, a in enumerate(A):
        L.append(a)
        tgt = (i + 1) * m // n
        while j < tgt:
            L += B[j]; j += 1
    while j < m:
        L += B[j]; j += 1

def header(name):
    L.append(".text")
    L.append(f".globl {name}")
    L.append(".p2align 8")
    L.append(f".type {name},@function")
    lab(name)

for p in range(768):
    assert (p * 2731) >> 16 == p // 24

def gen_ln_gemm(mode):
    qkv = mode == "qkv"
    name = "k_qkv_kernel" if qkv else "k_gu_kernel"
    MAPMODE = MAPS[mode]
    header(name)
    R = 4; S = 8 if qkv else 16
    WROW = 3072 if qkv else 2752
    KADV = (64 if qkv else 32) * WROW
    XB = 0; WB = 65536; SLOT = 24576
    XR = 176; RS = 208
    sX, sW, sO = 8, 12, 16
    s_wave, s_cg, s_rt, s_wm, s_wn, s_m0, s_k, s_t, s_t2 = 20, 21, 22, 23, 24, 25, 26, 27, 28
    e(f"s_cmp_ge_u32 s2, 256")
    e(f"s_cbranch_scc1 {name}_done")
    stamp(name)
    e("s_load_dwordx4 s[32:35], s[0:1], 0")
    e("s_load_dwordx4 s[36:39], s[0:1], 32")
    e("s_load_dwordx2 s[40:41], s[0:1], 72")
    e("v_lshrrev_b32 v1, 6, v0")
    e("v_and_b32 v2, 63, v0")
    e("s_nop 0")
    e(f"v_readfirstlane_b32 s{s_wave}, v1")
    wgmap(s_cg, s_rt, MAPMODE)
    e(f"s_lshr_b32 s{s_wm}, s{s_wave}, 2")
    e(f"s_and_b32 s{s_wn}, s{s_wave}, 3")
    e("s_waitcnt lgkmcnt(0)")
    if qkv:
        srd(sX, 32, 2048 * 1024)
        srd(sW, 34, 512 * 3072)
        srd(sO, 40, 6 << 20)
    else:
        srd(sX, 40, 2048 * 1024, WS_H)
        e(f"s_cmp_eq_u32 s{s_wm}, 0")
        e("s_cselect_b32 s42, s36, s38")
        e("s_cselect_b32 s43, s37, s39")
        srd(sW, 42, 512 * 2752)
        srd(sO, 40, 2048 * 2752, WS_HM)
    e("v_lshrrev_b32 v4, 3, v2")
    e("v_and_b32 v5, 7, v2")
    e(f"s_lshl_b32 s{s_t}, s{s_wave}, 3")
    e(f"v_add_u32 v6, s{s_t}, v4")
    e("v_lshlrev_b32 v3, 10, v6")
    e("v_lshl_add_u32 v3, v5, 4, v3")
    e(f"s_lshl_b32 s{s_t}, s{s_rt}, 16")
    for i in range(8):
        e(f"buffer_load_dwordx4 {vr(XR+4*i,4)}, v3, {sr(sX,4)}, s{s_t} offen offset:{i*128}")
    e(f"s_mul_i32 s{s_t2}, s{s_wn}, 192")
    for i in range(3):
        e(f"v_add_u32 v11, s{s_t2}, v2")
        if i: e(f"v_add_u32 v11, {i*64}, v11")
        e("v_mul_u32_u24 v12, 2731, v11")
        e("v_lshrrev_b32 v12, 16, v12")
        e("v_mul_u32_u24 v13, 24, v12")
        e("v_sub_u32 v13, v11, v13")
        e("v_bfe_u32 v14, v12, 1, 1")
        e("v_bfe_u32 v15, v12, 3, 1")
        e("v_lshl_or_b32 v14, v15, 1, v14")
        e("v_lshlrev_b32 v14, 1, v14")
        if not os.environ.get("NOSWZ"): e("v_xor_b32 v13, v13, v14")
        e(f"s_mov_b32 s{s_t}, {WROW}")
        e(f"v_mul_lo_u32 v12, v12, s{s_t}")
        e(f"v_lshl_add_u32 v{8+i}, v13, 4, v12")
    e(f"s_mul_i32 s{s_k}, s{s_cg}, 384")
    if qkv:
        e(f"s_mul_i32 s{s_t}, s{s_wm}, {32*3072}")
        e(f"s_add_u32 s{s_k}, s{s_k}, s{s_t}")
    e(f"s_mul_i32 s{s_m0}, s{s_wave}, 3072")
    e(f"s_add_u32 s{s_m0}, s{s_m0}, {WB}")
    def dma(st):
        slot = st % R
        for i in range(3):
            e(f"s_add_u32 m0, s{s_m0}, {slot*SLOT + i*1024}")
            e("s_nop 0")
            e(f"buffer_load_dwordx4 v{8+i}, {sr(sW,4)}, s{s_k} offen {DFL} lds")
        e(f"s_add_u32 s{s_k}, s{s_k}, {KADV}")
    dma(0)
    e("v_mov_b32 v28, v4"); e("v_mov_b32 v29, v5"); e("v_mov_b32 v30, v6")
    e("v_and_b32 v4, 15, v2")
    e("v_lshrrev_b32 v5, 4, v2")
    e(f"s_lshl_b32 s{s_t}, s{s_wm}, 15")
    e("v_lshlrev_b32 v6, 10, v4")
    e(f"v_add_u32 v6, s{s_t}, v6")
    e("v_and_b32 v7, 3, v4")
    e("v_xor_b32 v7, v7, v5")
    e("v_lshrrev_b32 v11, 2, v4")
    for k in range(4):
        e(f"v_xor_b32 v12, {k}, v11")
        e("v_lshl_or_b32 v12, v12, 2, v7")
        e(f"v_lshl_add_u32 v{24+k}, v12, 4, v6")
    e("v_lshrrev_b32 v11, 2, v4")
    e("v_and_b32 v12, 3, v4")
    e("v_lshl_add_u32 v13, v5, 3, v11")
    e("v_mul_u32_u24 v13, 384, v13")
    e("v_lshl_add_u32 v13, v12, 3, v13")
    e(f"v_add_u32 v13, {WB}, v13")
    e("v_lshrrev_b32 v14, 1, v11")
    e("v_and_b32 v15, 1, v5")
    e("v_lshl_or_b32 v14, v15, 1, v14")
    e(f"s_mul_i32 s{s_t}, s{s_wn}, 3")
    for j in range(3):
        e(f"s_add_u32 s{s_t2}, s{s_t}, {j}")
        e(f"v_xor_b32 v15, s{s_t2}, v14")
        e(f"v_lshl_add_u32 v{16+j}, v15, 5, v13")
        e(f"v_add_u32 v{19+j}, {2*SLOT}, v{16+j}")
    ACC = 128
    NACC = 6 if qkv else 12
    for i in range(NACC * 4):
        e(f"v_mov_b32 v{ACC+i}, 0")
    e(f"s_waitcnt vmcnt(3)")
    stamp(name)
    e(f"s_mov_b32 s31, 0x3f803f80")
    e(f"v_dot2_f32_bf16 v{RS+6}, v{XR}, s31, 0")
    e(f"v_dot2_f32_bf16 v{RS+7}, v{XR+1}, s31, 0")
    e(f"v_dot2_f32_bf16 v{RS+8}, v{XR}, v{XR}, 0")
    e(f"v_dot2_f32_bf16 v{RS+9}, v{XR+1}, v{XR+1}, 0")
    for i in range(2, 32, 2):
        e(f"v_dot2_f32_bf16 v{RS+6}, v{XR+i}, s31, v{RS+6}")
        e(f"v_dot2_f32_bf16 v{RS+7}, v{XR+i+1}, s31, v{RS+7}")
        e(f"v_dot2_f32_bf16 v{RS+8}, v{XR+i}, v{XR+i}, v{RS+8}")
        e(f"v_dot2_f32_bf16 v{RS+9}, v{XR+i+1}, v{XR+i+1}, v{RS+9}")
    e(f"s_nop 3")
    e(f"v_add_f32 v{RS+6}, v{RS+6}, v{RS+7}")
    e(f"v_add_f32 v{RS+8}, v{RS+8}, v{RS+9}")
    for ctl in ("quad_perm:[1,0,3,2]", "quad_perm:[2,3,0,1]", "row_half_mirror"):
        e(f"s_nop 1")
        e(f"v_add_f32_dpp v{RS+6}, v{RS+6}, v{RS+6} {ctl} row_mask:0xf bank_mask:0xf")
        e(f"v_add_f32_dpp v{RS+8}, v{RS+8}, v{RS+8} {ctl} row_mask:0xf bank_mask:0xf")
    dma(1)
    e(f"v_mul_f32 v{RS+6}, 0x3b000000, v{RS+6}")
    e(f"v_mul_f32 v{RS+8}, 0x3b000000, v{RS+8}")
    e(f"v_fma_f32 v{RS+8}, -v{RS+6}, v{RS+6}, v{RS+8}")
    e(f"v_max_f32 v{RS+8}, 0, v{RS+8}")
    e(f"v_add_f32 v{RS+8}, 0x3727c5ac, v{RS+8}")
    e(f"v_rsq_f32 v{RS}, v{RS+8}")
    e(f"s_nop 0")
    e(f"v_mul_f32 v{RS+1}, v{RS+6}, v{RS}")
    e(f"v_sub_f32 v{RS+1}, 0, v{RS+1}")
    e(f"v_xor_b32 v{RS+10}, v28, v29")
    e(f"s_and_b32 s{s_t}, s{s_wave}, 1")
    e(f"s_lshl_b32 s{s_t}, s{s_t}, 3")
    e(f"v_add_u32 v{RS+11}, s{s_t}, v{RS+10}")
    e(f"s_xor_b32 s{s_t}, s{s_t}, 8")
    e(f"v_add_u32 v{RS+12}, s{s_t}, v{RS+10}")
    e(f"v_lshlrev_b32 v{RS+2}, 10, v30")
    e(f"v_lshl_add_u32 v{RS+3}, v{RS+12}, 4, v{RS+2}")
    e(f"v_lshl_add_u32 v{RS+2}, v{RS+11}, 4, v{RS+2}")
    def norm(i):
        for r in range(4):
            x = XR + 4*i + r
            e(f"v_lshlrev_b32 v{RS+4}, 16, v{x}")
            e(f"v_and_b32 v{RS+5}, 0xffff0000, v{x}")
            e(f"v_fma_f32 v{RS+4}, v{RS+4}, v{RS}, v{RS+1}")
            e(f"v_fma_f32 v{RS+5}, v{RS+5}, v{RS}, v{RS+1}")
            e(f"v_cvt_pk_bf16_f32 v{x}, v{RS+4}, v{RS+5}")
        e(f"ds_write_b128 v{RS+2+(i&1)}, {vr(XR+4*i,4)} offset:{XB+(i>>1)*256}")
    norm(0); norm(1)
    stamp(name)
    FS = [32, 80]
    def reads(st):
        base = FS[st & 1]; slot = st % R
        wa = 16 if slot < 2 else 19; so = (slot & 1) * SLOT
        nk = 2 if qkv else 1
        for kk in range(nk):
            ks = st * nk + kk
            for mt in range(2):
                e(f"ds_read_b128 {vr(base+(kk*2+mt)*4,4)}, v{24+(ks&3)} offset:{XB+(ks>>2)*256+mt*16384}")
        for b in range(2):
            for j in range(3):
                for t2 in range(2):
                    e(f"ds_read_b64_tr_b16 {vr(base+16+(b*3+j)*4+t2*2,2)}, v{wa+j} offset:{so+b*12288+t2*1536}")
    def mfmas(st):
        base = FS[st & 1]
        for b in range(2):
            for j in range(3):
                for mt in range(2):
                    if qkv: a = ACC + (mt*3+j)*4; x = base + (b*2+mt)*4
                    else:   a = ACC + ((b*2+mt)*3+j)*4; x = base + mt*4
                    e(f"v_mfma_f32_16x16x32_bf16 {vr(a,4)}, {vr(base+16+(b*3+j)*4,4)}, {vr(x,4)}, {vr(a,4)}")
    issued = 2
    for st in range(S):
        e(f"s_waitcnt vmcnt({(issued-1-st)*3}) lgkmcnt(0)")
        e("s_barrier")
        if st in (0, 1, 2, 4, 6, S-1): stamp(name)
        B = chunks_of(capture(reads, st)) if not (os.environ.get("NORD") and st > 1) else []
        while issued < S and issued <= st + PDL:
            if not os.environ.get("NODMA"): B += chunks_of(capture(dma, issued))
            issued += 1
        if qkv:
            if st + 2 < 8: B += chunks_of(capture(norm, st + 2))
        else:
            if st % 2 == 0 and st // 2 + 2 < 8: B += chunks_of(capture(norm, st // 2 + 2))
        if st >= 1: interleave(capture(mfmas, st - 1), B)
        else:
            for c in B: L.extend(c)
    e("s_waitcnt lgkmcnt(0)")
    mfmas(S - 1)
    e("s_barrier")
    stamp(name)
    e("v_lshlrev_b32 v6, 5, v4")
    e("v_lshl_add_u32 v6, v5, 3, v6")
    if qkv:
        e(f"s_lshl_b32 s{s_t}, s{s_wave}, 9")
        e(f"v_add_u32 v7, s{s_t}, v6")
        e("v_lshrrev_b32 v11, 2, v4")
        e("v_and_b32 v12, 3, v4")
        e("v_lshl_add_u32 v11, v5, 2, v11")
        e("v_lshlrev_b32 v11, 5, v11")
        e("v_lshl_add_u32 v11, v12, 3, v11")
        e(f"v_add_u32 v11, s{s_t}, v11")
        e(f"s_mul_i32 s29, s{s_cg}, 12")
        e(f"s_mul_i32 s{s_t}, s{s_wn}, 3")
        e(f"s_add_u32 s29, s29, s{s_t}")
        e(f"s_lshl_b32 s30, s{s_rt}, 2")
        e(f"s_lshl_b32 s{s_t}, s{s_wm}, 1")
        e(f"s_add_u32 s30, s30, s{s_t}")
        e("s_nop 4")
        for j in range(3):
            for mt in range(2):
                a = ACC + (mt*3+j)*4
                e(f"v_cvt_pk_bf16_f32 v32, v{a}, v{a+1}")
                e(f"v_cvt_pk_bf16_f32 v33, v{a+2}, v{a+3}")
                e(f"s_add_u32 s{s_t}, s29, {j}")
                e(f"s_add_u32 s{s_t2}, s30, {mt}")
                e(f"s_cmp_ge_u32 s{s_t}, 64")
                e(f"s_cbranch_scc1 {name}_v{j}{mt}")
                e(f"s_lshl_b32 s{s_t}, s{s_t}, 16")
                e(f"s_lshl_b32 s{s_t2}, s{s_t2}, 9")
                e(f"s_add_u32 s{s_t}, s{s_t}, s{s_t2}")
                e(f"buffer_store_dwordx2 v[32:33], v6, {sr(sO,4)}, s{s_t} offen")
                e(f"s_branch {name}_n{j}{mt}")
                lab(f"{name}_v{j}{mt}")
                e("ds_write_b64 v7, v[32:33]")
                e("s_waitcnt lgkmcnt(0)")
                e("ds_read_b64_tr_b16 v[34:35], v11")
                e(f"s_sub_u32 s{s_t}, s{s_t}, 64")
                e(f"s_lshl_b32 s{s_t}, s{s_t}, 16")
                e(f"s_lshl_b32 s{s_t2}, s{s_t2}, 9")
                e(f"s_add_u32 s{s_t}, s{s_t}, s{s_t2}")
                e(f"s_add_u32 s{s_t}, s{s_t}, {WS_VT}")
                e("s_waitcnt lgkmcnt(0)")
                e(f"buffer_store_dwordx2 v[34:35], v6, {sr(sO,4)}, s{s_t} offen")
                lab(f"{name}_n{j}{mt}")
                e("s_nop 1")
    else:
        e(f"s_lshl_b32 s{s_t}, s{s_rt}, 6")
        e(f"s_lshl_b32 s{s_t2}, s{s_wm}, 5")
        e(f"s_add_u32 s{s_t}, s{s_t}, s{s_t2}")
        e(f"v_add_u32 v7, s{s_t}, v4")
        e(f"s_mov_b32 s{s_t}, 2752")
        e(f"v_mul_lo_u32 v7, v7, s{s_t}")
        e("v_lshl_add_u32 v7, v5, 3, v7")
        e(f"s_mul_i32 s29, s{s_cg}, 12")
        e(f"s_mul_i32 s{s_t}, s{s_wn}, 3")
        e(f"s_add_u32 s29, s29, s{s_t}")
        e("s_mov_b32 s30, 0xbfb8aa3b")
        e("s_nop 4")
        for j in range(3):
            e(f"s_add_u32 s{s_t}, s29, {j}")
            e(f"s_cmp_ge_u32 s{s_t}, 86")
            e(f"s_cbranch_scc1 {name}_skip{j}")
            e(f"s_lshl_b32 s{s_t}, s{s_t}, 5")
            for mt in range(2):
                g = ACC + (mt*3+j)*4; u = ACC + ((2+mt)*3+j)*4
                for r in range(4): e(f"v_mul_f32 v{32+r}, s30, v{g+r}")
                for r in range(4): e(f"v_exp_f32 v{32+r}, v{32+r}")
                e("s_nop 0")
                for r in range(4): e(f"v_add_f32 v{32+r}, 1.0, v{32+r}")
                for r in range(4): e(f"v_rcp_f32 v{32+r}, v{32+r}")
                e("s_nop 0")
                for r in range(4): e(f"v_mul_f32 v{32+r}, v{32+r}, v{u+r}")
                e(f"v_cvt_pk_bf16_f32 v{36+2*mt}, v32, v33")
                e(f"v_cvt_pk_bf16_f32 v{37+2*mt}, v34, v35")
                e(f"buffer_store_dwordx2 {vr(36+2*mt,2)}, v7, {sr(sO,4)}, s{s_t} offen offset:0" if mt == 0 else
                  f"buffer_store_dwordx2 {vr(36+2*mt,2)}, v41, {sr(sO,4)}, s{s_t} offen")
                if mt == 0: e(f"v_add_u32 v41, {16*2752}, v7")
            e("s_nop 1")
            lab(f"{name}_skip{j}")
    stamp(name)
    stamp_out(name)
    lab(f"{name}_done")
    e("s_endpgm")
    return name, 256, 512, 163840, 224

def gen_plain(mode):
    wo = mode == "wo"
    name = "k_wo_kernel" if wo else "k_down_kernel"
    MAPMODE = MAPS[mode]
    header(name)
    R = 4
    K = 512 if wo else 1376
    AS = 1024 if wo else 2752
    stages = [(k0, min(128, K - k0)) for k0 in range(0, K, 128)]
    S = len(stages)
    SLOT = 32768
    sA, sW, sR, sO = 8, 12, 16, 44
    s_wave, s_cg, s_rt, s_wm, s_wn, s_m0, s_ka, s_kw, s_t, s_t2 = 20, 21, 22, 23, 24, 25, 26, 27, 28, 29
    e(f"s_cmp_ge_u32 s2, 256")
    e(f"s_cbranch_scc1 {name}_done")
    stamp(name)
    e("s_load_dwordx2 s[32:33], s[0:1], 0")
    e("s_load_dwordx2 s[34:35], s[0:1], %d" % (16 if wo else 48))
    e("s_load_dwordx2 s[36:37], s[0:1], 56")
    e("s_load_dwordx2 s[40:41], s[0:1], 72")
    e("v_lshrrev_b32 v1, 6, v0")
    e("v_and_b32 v2, 63, v0")
    e("s_nop 0")
    e(f"v_readfirstlane_b32 s{s_wave}, v1")
    wgmap(s_cg, s_rt, MAPMODE)
    e(f"s_lshr_b32 s{s_wm}, s{s_wave}, 2")
    e(f"s_and_b32 s{s_wn}, s{s_wave}, 3")
    e("s_waitcnt lgkmcnt(0)")
    if wo:
        srd(sA, 40, 2048 * 1024, WS_O); srd(sW, 34, 512 * 1024)
        srd(sR, 32, 2048 * 1024); srd(sO, 40, 2048 * 1024, WS_H)
    else:
        srd(sA, 40, 2048 * 2752, WS_HM); srd(sW, 34, 1376 * 1024)
        srd(sR, 40, 2048 * 1024, WS_H); srd(sO, 36, 2048 * 1024)
    for i in range(2):
        e(f"s_lshl_b32 s{s_t}, s{s_wave}, 7")
        e(f"v_add_u32 v12, s{s_t}, v2")
        if i: e("v_add_u32 v12, 64, v12")
        e("v_lshrrev_b32 v13, 4, v12")
        e("v_and_b32 v14, 15, v12")
        e("v_and_b32 v15, 15, v13")
        e("v_xor_b32 v14, v14, v15")
        e(f"s_mov_b32 s{s_t}, {AS}")
        e(f"v_mul_lo_u32 v13, v13, s{s_t}")
        e(f"v_lshl_add_u32 v{8+i}, v14, 4, v13")
        e("v_lshrrev_b32 v13, 3, v12")
        e("v_and_b32 v14, 7, v12")
        e("v_bfe_u32 v15, v13, 1, 1")
        e("v_bfe_u32 v16, v13, 3, 1")
        e("v_lshl_or_b32 v15, v16, 1, v15")
        e("v_lshlrev_b32 v15, 1, v15")
        e("v_xor_b32 v14, v14, v15")
        e("v_lshlrev_b32 v13, 10, v13")
        e(f"v_lshl_add_u32 v{10+i}, v14, 4, v13")
    e(f"s_mul_i32 s{s_ka}, s{s_rt}, {64*AS}")
    e(f"s_lshl_b32 s{s_kw}, s{s_cg}, 7")
    e(f"s_lshl_b32 s{s_m0}, s{s_wave}, 11")
    VG = os.environ.get("VG", "") == "1" and wo
    def dma(st):
        slot = st % R
        if VG:
            for i in range(2):
                e(f"buffer_load_dwordx4 {vr(160+st*16+i*8,4)}, v{8+i}, {sr(sA,4)}, s{s_ka} offen")
                e(f"buffer_load_dwordx4 {vr(164+st*16+i*8,4)}, v{10+i}, {sr(sW,4)}, s{s_kw} offen")
            e(f"s_add_u32 s{s_ka}, s{s_ka}, 256")
            e(f"s_add_u32 s{s_kw}, s{s_kw}, {128*1024}")
            return
        for i in range(2):
            e(f"s_add_u32 m0, s{s_m0}, {slot*SLOT + i*1024}")
            e("s_nop 0")
            e(f"buffer_load_dwordx4 v{8+i}, {sr(sA,4)}, s{s_ka} offen {DFL} lds")
            e(f"s_add_u32 m0, s{s_m0}, {slot*SLOT + 16384 + i*1024}")
            e("s_nop 0")
            e(f"buffer_load_dwordx4 v{10+i}, {sr(sW,4)}, s{s_kw} offen {DFL} lds")
        e(f"s_add_u32 s{s_ka}, s{s_ka}, 256")
        e(f"s_add_u32 s{s_kw}, s{s_kw}, {128*1024}")
    D = int(os.environ.get("PD", "2"))
    D0 = int(os.environ.get("PD0", "2"))
    issued = min(D0, S)
    for st in range(issued): dma(st)
    e("v_and_b32 v4, 15, v2")
    e("v_lshrrev_b32 v5, 4, v2")
    e(f"v_lshl_add_u32 v140, v2, 4, s{s_m0}")
    e(f"v_add_u32 v141, {2*SLOT}, v140")
    e(f"s_lshl_b32 s{s_t}, s{s_rt}, 6")
    e(f"s_lshl_b32 s{s_t2}, s{s_wm}, 5")
    e(f"s_add_u32 s{s_t}, s{s_t}, s{s_t2}")
    e(f"v_add_u32 v6, s{s_t}, v4")
    e("v_lshlrev_b32 v6, 10, v6")
    e("v_lshl_add_u32 v6, v5, 3, v6")
    e(f"s_lshl_b32 s{s_t}, s{s_cg}, 7")
    e(f"s_lshl_b32 s{s_t2}, s{s_wn}, 5")
    e(f"s_add_u32 s30, s{s_t}, s{s_t2}")
    e("v_add_u32 v7, 16384, v6")
    e(f"buffer_load_dwordx2 v[136:137], v6, {sr(sR,4)}, s30 offen")
    e(f"buffer_load_dwordx2 v[138:139], v7, {sr(sR,4)}, s30 offen")
    e(f"s_lshl_b32 s{s_t}, s{s_wm}, 13")
    e("v_lshlrev_b32 v12, 8, v4")
    e(f"v_add_u32 v12, s{s_t}, v12")
    e("v_and_b32 v13, 3, v4")
    e("v_xor_b32 v13, v13, v5")
    e("v_lshrrev_b32 v14, 2, v4")
    for k in range(4):
        e(f"v_xor_b32 v15, {k}, v14")
        e("v_lshl_or_b32 v15, v15, 2, v13")
        e(f"v_lshl_add_u32 v{16+k}, v15, 4, v12")
        e(f"v_add_u32 v{20+k}, {2*SLOT}, v{16+k}")
    e("v_lshrrev_b32 v12, 2, v4")
    e("v_and_b32 v13, 3, v4")
    e("v_lshl_add_u32 v14, v5, 3, v12")
    e("v_lshlrev_b32 v14, 7, v14")
    e("v_lshl_add_u32 v14, v13, 3, v14")
    e("v_lshrrev_b32 v15, 1, v12")
    e("v_and_b32 v13, 1, v5")
    e("v_lshl_or_b32 v15, v13, 1, v15")
    e(f"v_xor_b32 v15, s{s_wn}, v15")
    e("v_lshl_add_u32 v24, v15, 5, v14")
    e("v_add_u32 v24, 16384, v24")
    e(f"v_add_u32 v25, {2*SLOT}, v24")
    ACC = 128
    for i in range(8): e(f"v_mov_b32 v{ACC+i}, 0")
    FS = [28, 76]
    def reads(st):
        base = FS[st & 1]; slot = st % R; hi = slot >= 2; so = (slot & 1) * SLOT
        for ks in range(stages[st][1] // 32):
            for mt in range(2):
                e(f"ds_read_b128 {vr(base+(ks*2+mt)*4,4)}, v{(20 if hi else 16)+ks} offset:{so+mt*4096}")
            for t2 in range(2):
                e(f"ds_read_b64_tr_b16 {vr(base+32+ks*4+t2*2,2)}, v{25 if hi else 24} offset:{so+ks*4096+t2*512}")
    def mfmas(st):
        base = FS[st & 1]
        for ks in range(stages[st][1] // 32):
            for mt in range(2):
                a = ACC + mt * 4
                e(f"v_mfma_f32_16x16x32_bf16 {vr(a,4)}, {vr(base+32+ks*4,4)}, {vr(base+(ks*2+mt)*4,4)}, {vr(a,4)}")
    for st in range(S):
        after = (issued - 1 - st) * 4 + (2 if st < min(D0, S) else 0)
        if VG:
            e(f"s_waitcnt vmcnt({after})")
            for i in range(2):
                e(f"ds_write_b128 v{140+(st>>1)}, {vr(160+st*16+i*8,4)} offset:{(st&1)*SLOT+i*1024}")
                e(f"ds_write_b128 v{140+(st>>1)}, {vr(164+st*16+i*8,4)} offset:{(st&1)*SLOT+16384+i*1024}")
        e(f"s_waitcnt vmcnt({after}) lgkmcnt(0)")
        e("s_barrier")
        if st in (0,1,2,3,5,8): stamp(name)
        B = chunks_of(capture(reads, st))
        while issued < S and issued <= st + D:
            B += chunks_of(capture(dma, issued)); issued += 1
        if st >= 1: interleave(capture(mfmas, st - 1), B)
        else:
            for c in B: L.extend(c)
    e("s_waitcnt vmcnt(0) lgkmcnt(0)")
    mfmas(S - 1)
    e("s_nop 7"); e("s_nop 1")
    for mt in range(2):
        a = ACC + mt*4; r = 136 + 2*mt
        e(f"v_lshlrev_b32 v12, 16, v{r}")
        e(f"v_and_b32 v13, 0xffff0000, v{r}")
        e(f"v_lshlrev_b32 v14, 16, v{r+1}")
        e(f"v_and_b32 v15, 0xffff0000, v{r+1}")
        for i in range(4): e(f"v_add_f32 v{12+i}, v{12+i}, v{a+i}")
        e(f"v_cvt_pk_bf16_f32 v{r}, v12, v13")
        e(f"v_cvt_pk_bf16_f32 v{r+1}, v14, v15")
        e(f"buffer_store_dwordx2 {vr(r,2)}, v{6+mt}, {sr(sO,4)}, s30 offen")
    stamp(name)
    stamp_out(name)
    lab(f"{name}_done")
    e("s_endpgm")
    return name, 256, 512, 131072, 224

def gen_attn():
    name = "k_attn_kernel"
    header(name)
    sWS, sO = 8, 12
    s_wave, s_head, s_qt, s_t, s_t2, s_kb, s_vb = 20, 21, 22, 23, 24, 25, 26
    e("s_cmp_ge_u32 s2, 512")
    e(f"s_cbranch_scc1 {name}_done")
    stamp(name)
    e("s_load_dwordx2 s[40:41], s[0:1], 72")
    e("v_lshrrev_b32 v1, 6, v0")
    e("v_and_b32 v2, 63, v0")
    e("s_nop 0")
    e(f"v_readfirstlane_b32 s{s_wave}, v1")
    e(f"s_lshr_b32 s{s_head}, s2, 4")
    e(f"s_and_b32 s{s_qt}, s2, 15")
    e(f"s_lshl_b32 s{s_qt}, s{s_qt}, 3")
    e("v_and_b32 v4, 15, v2")
    e("v_lshrrev_b32 v5, 4, v2")
    e("v_lshlrev_b32 v6, 5, v4")
    e("v_lshl_add_u32 v6, v5, 3, v6")
    e("v_lshlrev_b32 v7, 4, v2")
    e("s_waitcnt lgkmcnt(0)")
    srd(sWS, 40, 6 << 20)
    srd(sO, 40, 2048 * 1024, WS_O)
    e(f"s_lshl_b32 s{s_t}, s{s_head}, 16")
    e(f"s_lshl_b32 s{s_t2}, s{s_qt}, 9")
    e(f"s_add_u32 s{s_t2}, s{s_t2}, s{s_t}")
    QF, KF, SS = 8, 12, 48
    VF = KF
    T = 116
    e(f"s_lshl_b32 s{s_t}, s{s_wave}, 9")
    e(f"s_add_u32 s{s_t}, s{s_t2}, s{s_t}")
    e(f"buffer_load_dwordx2 {vr(QF,2)}, v6, {sr(sWS,4)}, s{s_t} offen")
    e(f"s_cmp_lt_u32 s{s_wave}, 4")
    e(f"s_mov_b32 s{s_vb}, {WS_VT-8192-12288}")
    e(f"s_cselect_b32 s{s_kb}, {32*65536-8192}, s{s_vb}")
    e(f"s_add_u32 s{s_kb}, s{s_kb}, s{s_t2}")
    e(f"s_mul_i32 s{s_vb}, s{s_wave}, 3072")
    e(f"s_add_u32 s{s_kb}, s{s_kb}, s{s_vb}")
    for i in range(3):
        e(f"s_add_u32 m0, s{s_vb}, {i*1024}")
        e("s_nop 0")
        e(f"buffer_load_dwordx4 v7, {sr(sWS,4)}, s{s_kb} offen lds")
        if i < 2: e(f"s_add_u32 s{s_kb}, s{s_kb}, 1024")
    e(f"s_add_u32 s{s_qt}, s{s_qt}, s{s_wave}")
    e(f"s_lshl_b32 s{s_t}, s{s_wave}, 9")
    e(f"v_add_u32 v10, s{s_t}, v6")
    e("v_lshlrev_b32 v7, 2, v5")
    e("v_sub_u32 v7, v7, v4")
    e("v_mov_b32 v3, 0xf149f2ca")
    e(f"s_cmp_lt_u32 s{s_wave}, 4")
    e(f"s_cbranch_scc1 {name}_w0")
    e("s_waitcnt vmcnt(3)")
    e(f"s_branch {name}_w1")
    lab(f"{name}_w0")
    e("s_waitcnt vmcnt(0)")
    lab(f"{name}_w1")
    e("s_barrier")
    stamp(name)
    for t in range(17):
        e(f"ds_read_b64 {vr(KF+2*t,2)}, v10 offset:{t*512}")
    for t in range(17):
        e(f"s_waitcnt lgkmcnt({min(15,16-t)})")
        e(f"v_mfma_f32_16x16x16_bf16 {vr(SS+4*t,4)}, {vr(KF+2*t,2)}, {vr(QF,2)}, 0")
    e("s_waitcnt vmcnt(0)")
    e("s_barrier")
    e("s_nop 4")
    for t in range(17):
        e(f"ds_read_b64 {vr(VF+2*t,2)}, v10 offset:{12288+t*512}")
    stamp(name)
    for r in range(4):
        e(f"v_add_u32 v1, {r}, v7")
        e("v_cmp_lt_i32 vcc, 0, v1")
        e("s_nop 1")
        e(f"v_cndmask_b32 v{SS+r}, v3, v{SS+r}, vcc")
        e(f"v_cndmask_b32 v{SS+64+r}, v{SS+64+r}, v3, vcc")
    for t in range(16):
        e(f"s_cmp_ge_u32 s{s_qt}, {16-t}")
        e(f"s_cbranch_scc1 {name}_m{t}")
        for r in range(4): e(f"v_mov_b32 v{SS+4*t+r}, v3")
        lab(f"{name}_m{t}")
    e(f"v_max3_f32 v{T}, v{SS}, v{SS+1}, v{SS+2}")
    e(f"v_max3_f32 v{T+1}, v{SS+3}, v{SS+4}, v{SS+5}")
    i = 6
    while i + 3 < 68:
        e(f"v_max3_f32 v{T}, v{T}, v{SS+i}, v{SS+i+1}")
        e(f"v_max3_f32 v{T+1}, v{T+1}, v{SS+i+2}, v{SS+i+3}")
        i += 4
    assert i == 66
    e(f"v_max3_f32 v{T}, v{T}, v{SS+66}, v{SS+67}")
    e(f"v_max_f32 v{T}, v{T}, v{T+1}")
    e(f"v_xor_b32 v{T+2}, 16, v2"); e(f"v_lshlrev_b32 v{T+2}, 2, v{T+2}")
    e(f"v_xor_b32 v{T+3}, 32, v2"); e(f"v_lshlrev_b32 v{T+3}, 2, v{T+3}")
    for a in (T+2, T+3):
        e(f"ds_bpermute_b32 v{T+1}, v{a}, v{T}")
        e("s_waitcnt lgkmcnt(0)")
        e(f"v_max_f32 v{T}, v{T}, v{T+1}")
    e("s_mov_b32 s30, 0x3eb8aa3b")
    e(f"v_mul_f32 v{T}, s30, v{T}")
    e(f"v_sub_f32 v{T}, 0, v{T}")
    e(f"v_mov_b32 v{T+4}, s30")
    for i in range(68):
        e(f"v_fma_f32 v{SS+i}, v{SS+i}, v{T+4}, v{T}")
    for i in range(68):
        e(f"v_exp_f32 v{SS+i}, v{SS+i}")
    e("s_nop 0")
    e(f"v_pk_add_f32 {vr(T+6,2)}, {vr(SS,2)}, {vr(SS+2,2)}")
    e(f"v_pk_add_f32 {vr(T+8,2)}, {vr(SS+4,2)}, {vr(SS+6,2)}")
    for i in range(8, 68, 4):
        e(f"v_pk_add_f32 {vr(T+6,2)}, {vr(T+6,2)}, {vr(SS+i,2)}")
        e(f"v_pk_add_f32 {vr(T+8,2)}, {vr(T+8,2)}, {vr(SS+i+2,2)}")
    e(f"v_pk_add_f32 {vr(T+6,2)}, {vr(T+6,2)}, {vr(T+8,2)}")
    e(f"v_add_f32 v{T+6}, v{T+6}, v{T+7}")
    for p in range(9):
        for h in range(4 if p < 8 else 2):
            e(f"v_cvt_pk_bf16_f32 v{SS+8*p+h}, v{SS+8*p+2*h}, v{SS+8*p+2*h+1}")
    for a in (T+2, T+3):
        e(f"ds_bpermute_b32 v{T+7}, v{a}, v{T+6}")
        e("s_waitcnt lgkmcnt(0)")
        e(f"v_add_f32 v{T+6}, v{T+6}, v{T+7}")
    e(f"v_rcp_f32 v{T}, v{T+6}")
    stamp(name)
    O1, O2 = 120, 124
    e(f"v_mfma_f32_16x16x16_bf16 {vr(O1,4)}, {vr(VF+32,2)}, {vr(SS+64,2)}, 0")
    e(f"v_mfma_f32_16x16x32_bf16 {vr(O2,4)}, {vr(VF,4)}, {vr(SS,4)}, 0")
    for p in range(1, 8):
        a = O1 if p & 1 else O2
        if p == 1:
            e("s_nop 7")
        e(f"v_mfma_f32_16x16x32_bf16 {vr(a,4)}, {vr(VF+4*p,4)}, {vr(SS+8*p,4)}, {vr(a,4)}")
    e("s_nop 7"); e("s_nop 1")
    for r in range(4):
        e(f"v_add_f32 v{O1+r}, v{O1+r}, v{O2+r}")
    for r in range(4):
        e(f"v_mul_f32 v{O1+r}, v{O1+r}, v{T}")
    e(f"v_cvt_pk_bf16_f32 v160, v{O1}, v{O1+1}".replace("v160", f"v{O1}"))
    e(f"v_cvt_pk_bf16_f32 v{O1+1}, v{O1+2}, v{O1+3}")
    e("v_lshlrev_b32 v7, 10, v4")
    e("v_lshl_add_u32 v7, v5, 3, v7")
    e(f"s_lshl_b32 s{s_t}, s{s_qt}, 14")
    e(f"s_lshl_b32 s{s_t2}, s{s_head}, 5")
    e(f"s_add_u32 s{s_t}, s{s_t}, s{s_t2}")
    e(f"buffer_store_dwordx2 v[120:121], v7, {sr(sO,4)}, s{s_t} offen")
    stamp(name)
    stamp_out(name)
    lab(f"{name}_done")
    e("s_endpgm")
    return name, 512, 512, 24576, 128

def main():
    kernels = []
    kernels.append(gen_ln_gemm("qkv"))
    kernels.append(gen_attn())
    kernels.append(gen_plain("wo"))
    kernels.append(gen_ln_gemm("gu"))
    kernels.append(gen_plain("down"))
    out = []
    src = open("cdna_kernels/%s.s.ref" % NAME).read().split("\n")
    for ln in src:
        if ln.startswith("; Override"): break
        out.append(ln)
    for (n, g, b, lds, vg) in kernels:
        out.append(f"; @launch kernel={n} grid=({g},1,1) block=({b},1,1) lds={lds}")
    out.append('.amdgcn_target "amdgcn-amd-amdhsa--gfx950"')
    out += L
    out.append('.section .rodata,"a"')
    for (n, g, b, lds, vg) in kernels:
        out.append(".p2align 6")
        out.append(f".amdhsa_kernel {n}")
        out.append(f"  .amdhsa_next_free_vgpr {vg}")
        out.append("  .amdhsa_next_free_sgpr 102")
        out.append(f"  .amdhsa_accum_offset {vg}")
        out.append("  .amdhsa_group_segment_fixed_size 0")
        out.append("  .amdhsa_kernarg_size 80")
        out.append("  .amdhsa_user_sgpr_count 2")
        out.append("  .amdhsa_user_sgpr_kernarg_segment_ptr 1")
        out.append("  .amdhsa_system_sgpr_workgroup_id_x 1")
        out.append(".end_amdhsa_kernel")
    open("cdna_kernels/%s.s" % NAME, "w").write("\n".join(out) + "\n")

if __name__ == "__main__":
    main()
```

```python
import sys
NAME = "sequential_preLN__sliding_block__glu_gated_glu__prompt"
WS_QK, WS_VT, WS_O, WS_H, WS_HM = 0, 4 << 20, 6 << 20, 8 << 20, 10 << 20
WS_SIZE = 268435456
L = []
MAPS = dict(qkv="4x2", wo="4x2", gu="4x2", down="4x2")
import os
for _k in MAPS:
    if os.environ.get("MAP_"+_k): MAPS[_k] = os.environ["MAP_"+_k]
def e(s): L.append("    " + s)
def lab(s): L.append(s + ":")
def cmt(s): L.append("    ; " + s)
def vr(a, n=1): return f"v{a}" if n == 1 else f"v[{a}:{a+n-1}]"
def sr(a, n=1): return f"s{a}" if n == 1 else f"s[{a}:{a+n-1}]"

def srd(d, ptr, nbytes, add=0):
    if add:
        e(f"s_add_u32 s{d}, s{ptr}, {add}")
        e(f"s_addc_u32 s{d+1}, s{ptr+1}, 0")
    else:
        e(f"s_mov_b32 s{d}, s{ptr}")
        e(f"s_mov_b32 s{d+1}, s{ptr+1}")
    e(f"s_mov_b32 s{d+2}, {nbytes}")
    e(f"s_mov_b32 s{d+3}, 0x00020000")

def wgmap(s_cg, s_rt, m):
    if m == "cols":
        e(f"s_and_b32 s{s_cg}, s2, 7")
        e(f"s_lshr_b32 s{s_rt}, s2, 3")
    elif m == "rows":
        e(f"s_and_b32 s{s_rt}, s2, 7")
        e(f"s_lshl_b32 s{s_rt}, s{s_rt}, 2")
        e(f"s_bfe_u32 s{s_cg}, s2, 0x20003")
        e(f"s_add_u32 s{s_rt}, s{s_rt}, s{s_cg}")
        e(f"s_lshr_b32 s{s_cg}, s2, 5")
    elif m == "4x2":
        e(f"s_and_b32 s{s_rt}, s2, 3")
        e(f"s_lshl_b32 s{s_rt}, s{s_rt}, 3")
        e(f"s_bfe_u32 s{s_cg}, s2, 0x30003")
        e(f"s_add_u32 s{s_rt}, s{s_rt}, s{s_cg}")
        e(f"s_bfe_u32 s{s_cg}, s2, 0x10002")
        e(f"s_lshl_b32 s{s_cg}, s{s_cg}, 2")
        e(f"s_lshr_b32 s100, s2, 6")
        e(f"s_add_u32 s{s_cg}, s{s_cg}, s100")
    elif m == "2d":
        e(f"s_and_b32 s{s_rt}, s2, 1")
        e(f"s_lshl_b32 s{s_rt}, s{s_rt}, 4")
        e(f"s_bfe_u32 s{s_cg}, s2, 0x40003")
        e(f"s_add_u32 s{s_rt}, s{s_rt}, s{s_cg}")
        e(f"s_bfe_u32 s{s_cg}, s2, 0x20001")
        e(f"s_lshl_b32 s{s_cg}, s{s_cg}, 1")
        e(f"s_lshr_b32 s100, s2, 7")
        e(f"s_add_u32 s{s_cg}, s{s_cg}, s100")

import os
STAMP = os.environ.get("STAMP", "")
DFL = os.environ.get("DFL", "")
PDL = int(os.environ.get("PDL", "3"))
NST = [0]
def stamp(kn):
    if STAMP != kn: return
    i = NST[0]; NST[0] += 1
    e(f"s_memtime s[{70+2*i}:{71+2*i}]")
def stamp_out(kn, wg=37):
    if STAMP != kn: return
    e("s_waitcnt lgkmcnt(0) vmcnt(0)")
    e(f"s_cmp_lg_u32 s2, {wg}")
    e(f"s_cbranch_scc1 {kn}_nost")
    e("s_load_dwordx2 s[96:97], s[0:1], 64")
    e("v_lshrrev_b32 v1, 6, v0")
    e("v_lshlrev_b32 v1, 5, v1")
    e("s_waitcnt lgkmcnt(0)")
    for i in range(min(8, NST[0])):
        e(f"s_sub_u32 s98, s{70+2*i}, s70")
        e(f"v_mov_b32 v2, s98")
        e(f"global_store_dword v1, v2, s[96:97] offset:{4*i}")
    lab(f"{kn}_nost")

def capture(fn, *a):
    global L
    old = L; L = []
    fn(*a)
    r = L; L = old
    return r
def chunks_of(lines):
    out = []; i = 0
    while i < len(lines):
        if "m0" in lines[i]:
            out.append(lines[i:i+3]); i += 3
        else:
            out.append([lines[i]]); i += 1
    return out
def interleave(A, B):
    global L
    n = len(A); m = len(B); j = 0
    for i, a in enumerate(A):
        L.append(a)
        tgt = (i + 1) * m // n
        while j < tgt:
            L += B[j]; j += 1
    while j < m:
        L += B[j]; j += 1

def header(name):
    L.append(".text")
    L.append(f".globl {name}")
    L.append(".p2align 8")
    L.append(f".type {name},@function")
    lab(name)

for p in range(768):
    assert (p * 2731) >> 16 == p // 24

def gen_ln_gemm(mode):
    qkv = mode == "qkv"
    name = "k_qkv_kernel" if qkv else "k_gu_kernel"
    MAPMODE = MAPS[mode]
    header(name)
    R = 4; S = 8 if qkv else 16
    WROW = 3072 if qkv else 2752
    KADV = (64 if qkv else 32) * WROW
    XB = 0; WB = 65536; SLOT = 24576
    XR = 176; RS = 208
    sX, sW, sO = 8, 12, 16
    s_wave, s_cg, s_rt, s_wm, s_wn, s_m0, s_k, s_t, s_t2 = 20, 21, 22, 23, 24, 25, 26, 27, 28
    e(f"s_cmp_ge_u32 s2, 256")
    e(f"s_cbranch_scc1 {name}_done")
    stamp(name)
    e("s_load_dwordx4 s[32:35], s[0:1], 0")
    e("s_load_dwordx4 s[36:39], s[0:1], 32")
    e("s_load_dwordx2 s[40:41], s[0:1], 72")
    e("v_lshrrev_b32 v1, 6, v0")
    e("v_and_b32 v2, 63, v0")
    e("s_nop 0")
    e(f"v_readfirstlane_b32 s{s_wave}, v1")
    wgmap(s_cg, s_rt, MAPMODE)
    e(f"s_lshr_b32 s{s_wm}, s{s_wave}, 2")
    e(f"s_and_b32 s{s_wn}, s{s_wave}, 3")
    e("s_waitcnt lgkmcnt(0)")
    if qkv:
        srd(sX, 32, 2048 * 1024)
        srd(sW, 34, 512 * 3072)
        srd(sO, 40, 6 << 20)
    else:
        srd(sX, 40, 2048 * 1024, WS_H)
        e(f"s_cmp_eq_u32 s{s_wm}, 0")
        e("s_cselect_b32 s42, s36, s38")
        e("s_cselect_b32 s43, s37, s39")
        srd(sW, 42, 512 * 2752)
        srd(sO, 40, 2048 * 2752, WS_HM)
    e("v_lshrrev_b32 v4, 3, v2")
    e("v_and_b32 v5, 7, v2")
    e(f"s_lshl_b32 s{s_t}, s{s_wave}, 3")
    e(f"v_add_u32 v6, s{s_t}, v4")
    e("v_lshlrev_b32 v3, 10, v6")
    e("v_lshl_add_u32 v3, v5, 4, v3")
    e(f"s_lshl_b32 s{s_t}, s{s_rt}, 16")
    for i in range(8):
        e(f"buffer_load_dwordx4 {vr(XR+4*i,4)}, v3, {sr(sX,4)}, s{s_t} offen offset:{i*128}")
    e(f"s_mul_i32 s{s_t2}, s{s_wn}, 192")
    for i in range(3):
        e(f"v_add_u32 v11, s{s_t2}, v2")
        if i: e(f"v_add_u32 v11, {i*64}, v11")
        e("v_mul_u32_u24 v12, 2731, v11")
        e("v_lshrrev_b32 v12, 16, v12")
        e("v_mul_u32_u24 v13, 24, v12")
        e("v_sub_u32 v13, v11, v13")
        e("v_bfe_u32 v14, v12, 1, 1")
        e("v_bfe_u32 v15, v12, 3, 1")
        e("v_lshl_or_b32 v14, v15, 1, v14")
        e("v_lshlrev_b32 v14, 1, v14")
        if not os.environ.get("NOSWZ"): e("v_xor_b32 v13, v13, v14")
        e(f"s_mov_b32 s{s_t}, {WROW}")
        e(f"v_mul_lo_u32 v12, v12, s{s_t}")
        e(f"v_lshl_add_u32 v{8+i}, v13, 4, v12")
    e(f"s_mul_i32 s{s_k}, s{s_cg}, 384")
    if qkv:
        e(f"s_mul_i32 s{s_t}, s{s_wm}, {32*3072}")
        e(f"s_add_u32 s{s_k}, s{s_k}, s{s_t}")
    e(f"s_mul_i32 s{s_m0}, s{s_wave}, 3072")
    e(f"s_add_u32 s{s_m0}, s{s_m0}, {WB}")
    def dma(st):
        slot = st % R
        for i in range(3):
            e(f"s_add_u32 m0, s{s_m0}, {slot*SLOT + i*1024}")
            e("s_nop 0")
            e(f"buffer_load_dwordx4 v{8+i}, {sr(sW,4)}, s{s_k} offen {DFL} lds")
        e(f"s_add_u32 s{s_k}, s{s_k}, {KADV}")
    dma(0)
    e("v_mov_b32 v28, v4"); e("v_mov_b32 v29, v5"); e("v_mov_b32 v30, v6")
    e("v_and_b32 v4, 15, v2")
    e("v_lshrrev_b32 v5, 4, v2")
    e(f"s_lshl_b32 s{s_t}, s{s_wm}, 15")
    e("v_lshlrev_b32 v6, 10, v4")
    e(f"v_add_u32 v6, s{s_t}, v6")
    e("v_and_b32 v7, 3, v4")
    e("v_xor_b32 v7, v7, v5")
    e("v_lshrrev_b32 v11, 2, v4")
    for k in range(4):
        e(f"v_xor_b32 v12, {k}, v11")
        e("v_lshl_or_b32 v12, v12, 2, v7")
        e(f"v_lshl_add_u32 v{24+k}, v12, 4, v6")
    e("v_lshrrev_b32 v11, 2, v4")
    e("v_and_b32 v12, 3, v4")
    e("v_lshl_add_u32 v13, v5, 3, v11")
    e("v_mul_u32_u24 v13, 384, v13")
    e("v_lshl_add_u32 v13, v12, 3, v13")
    e(f"v_add_u32 v13, {WB}, v13")
    e("v_lshrrev_b32 v14, 1, v11")
    e("v_and_b32 v15, 1, v5")
    e("v_lshl_or_b32 v14, v15, 1, v14")
    e(f"s_mul_i32 s{s_t}, s{s_wn}, 3")
    for j in range(3):
        e(f"s_add_u32 s{s_t2}, s{s_t}, {j}")
        e(f"v_xor_b32 v15, s{s_t2}, v14")
        e(f"v_lshl_add_u32 v{16+j}, v15, 5, v13")
        e(f"v_add_u32 v{19+j}, {2*SLOT}, v{16+j}")
    ACC = 128
    NACC = 6 if qkv else 12
    for i in range(NACC * 4):
        e(f"v_mov_b32 v{ACC+i}, 0")
    e(f"s_waitcnt vmcnt(3)")
    stamp(name)
    e(f"s_mov_b32 s31, 0x3f803f80")
    e(f"v_dot2_f32_bf16 v{RS+6}, v{XR}, s31, 0")
    e(f"v_dot2_f32_bf16 v{RS+7}, v{XR+1}, s31, 0")
    e(f"v_dot2_f32_bf16 v{RS+8}, v{XR}, v{XR}, 0")
    e(f"v_dot2_f32_bf16 v{RS+9}, v{XR+1}, v{XR+1}, 0")
    for i in range(2, 32, 2):
        e(f"v_dot2_f32_bf16 v{RS+6}, v{XR+i}, s31, v{RS+6}")
        e(f"v_dot2_f32_bf16 v{RS+7}, v{XR+i+1}, s31, v{RS+7}")
        e(f"v_dot2_f32_bf16 v{RS+8}, v{XR+i}, v{XR+i}, v{RS+8}")
        e(f"v_dot2_f32_bf16 v{RS+9}, v{XR+i+1}, v{XR+i+1}, v{RS+9}")
    e(f"s_nop 3")
    e(f"v_add_f32 v{RS+6}, v{RS+6}, v{RS+7}")
    e(f"v_add_f32 v{RS+8}, v{RS+8}, v{RS+9}")
    for ctl in ("quad_perm:[1,0,3,2]", "quad_perm:[2,3,0,1]", "row_half_mirror"):
        e(f"s_nop 1")
        e(f"v_add_f32_dpp v{RS+6}, v{RS+6}, v{RS+6} {ctl} row_mask:0xf bank_mask:0xf")
        e(f"v_add_f32_dpp v{RS+8}, v{RS+8}, v{RS+8} {ctl} row_mask:0xf bank_mask:0xf")
    dma(1)
    e(f"v_mul_f32 v{RS+6}, 0x3b000000, v{RS+6}")
    e(f"v_mul_f32 v{RS+8}, 0x3b000000, v{RS+8}")
    e(f"v_fma_f32 v{RS+8}, -v{RS+6}, v{RS+6}, v{RS+8}")
    e(f"v_max_f32 v{RS+8}, 0, v{RS+8}")
    e(f"v_add_f32 v{RS+8}, 0x3727c5ac, v{RS+8}")
    e(f"v_rsq_f32 v{RS}, v{RS+8}")
    e(f"s_nop 0")
    e(f"v_mul_f32 v{RS+1}, v{RS+6}, v{RS}")
    e(f"v_sub_f32 v{RS+1}, 0, v{RS+1}")
    e(f"v_xor_b32 v{RS+10}, v28, v29")
    e(f"s_and_b32 s{s_t}, s{s_wave}, 1")
    e(f"s_lshl_b32 s{s_t}, s{s_t}, 3")
    e(f"v_add_u32 v{RS+11}, s{s_t}, v{RS+10}")
    e(f"s_xor_b32 s{s_t}, s{s_t}, 8")
    e(f"v_add_u32 v{RS+12}, s{s_t}, v{RS+10}")
    e(f"v_lshlrev_b32 v{RS+2}, 10, v30")
    e(f"v_lshl_add_u32 v{RS+3}, v{RS+12}, 4, v{RS+2}")
    e(f"v_lshl_add_u32 v{RS+2}, v{RS+11}, 4, v{RS+2}")
    def norm(i):
        for r in range(4):
            x = XR + 4*i + r
            e(f"v_lshlrev_b32 v{RS+4}, 16, v{x}")
            e(f"v_and_b32 v{RS+5}, 0xffff0000, v{x}")
            e(f"v_fma_f32 v{RS+4}, v{RS+4}, v{RS}, v{RS+1}")
            e(f"v_fma_f32 v{RS+5}, v{RS+5}, v{RS}, v{RS+1}")
            e(f"v_cvt_pk_bf16_f32 v{x}, v{RS+4}, v{RS+5}")
        e(f"ds_write_b128 v{RS+2+(i&1)}, {vr(XR+4*i,4)} offset:{XB+(i>>1)*256}")
    norm(0); norm(1)
    stamp(name)
    FS = [32, 80]
    def reads(st):
        base = FS[st & 1]; slot = st % R
        wa = 16 if slot < 2 else 19; so = (slot & 1) * SLOT
        nk = 2 if qkv else 1
        for kk in range(nk):
            ks = st * nk + kk
            for mt in range(2):
                e(f"ds_read_b128 {vr(base+(kk*2+mt)*4,4)}, v{24+(ks&3)} offset:{XB+(ks>>2)*256+mt*16384}")
        for b in range(2):
            for j in range(3):
                for t2 in range(2):
                    e(f"ds_read_b64_tr_b16 {vr(base+16+(b*3+j)*4+t2*2,2)}, v{wa+j} offset:{so+b*12288+t2*1536}")
    def mfmas(st):
        base = FS[st & 1]
        for b in range(2):
            for j in range(3):
                for mt in range(2):
                    if qkv: a = ACC + (mt*3+j)*4; x = base + (b*2+mt)*4
                    else:   a = ACC + ((b*2+mt)*3+j)*4; x = base + mt*4
                    e(f"v_mfma_f32_16x16x32_bf16 {vr(a,4)}, {vr(base+16+(b*3+j)*4,4)}, {vr(x,4)}, {vr(a,4)}")
    issued = 2
    for st in range(S):
        e(f"s_waitcnt vmcnt({(issued-1-st)*3}) lgkmcnt(0)")
        e("s_barrier")
        if st in (0, 1, 2, 4, 6, S-1): stamp(name)
        B = chunks_of(capture(reads, st)) if not (os.environ.get("NORD") and st > 1) else []
        while issued < S and issued <= st + PDL:
            if not os.environ.get("NODMA"): B += chunks_of(capture(dma, issued))
            issued += 1
        if qkv:
            if st + 2 < 8: B += chunks_of(capture(norm, st + 2))
        else:
            if st % 2 == 0 and st // 2 + 2 < 8: B += chunks_of(capture(norm, st // 2 + 2))
        if st >= 1: interleave(capture(mfmas, st - 1), B)
        else:
            for c in B: L.extend(c)
    e("s_waitcnt lgkmcnt(0)")
    mfmas(S - 1)
    e("s_barrier")
    stamp(name)
    e("v_lshlrev_b32 v6, 5, v4")
    e("v_lshl_add_u32 v6, v5, 3, v6")
    if qkv:
        e(f"s_lshl_b32 s{s_t}, s{s_wave}, 9")
        e(f"v_add_u32 v7, s{s_t}, v6")
        e("v_lshrrev_b32 v11, 2, v4")
        e("v_and_b32 v12, 3, v4")
        e("v_lshl_add_u32 v11, v5, 2, v11")
        e("v_lshlrev_b32 v11, 5, v11")
        e("v_lshl_add_u32 v11, v12, 3, v11")
        e(f"v_add_u32 v11, s{s_t}, v11")
        e(f"s_mul_i32 s29, s{s_cg}, 12")
        e(f"s_mul_i32 s{s_t}, s{s_wn}, 3")
        e(f"s_add_u32 s29, s29, s{s_t}")
        e(f"s_lshl_b32 s30, s{s_rt}, 2")
        e(f"s_lshl_b32 s{s_t}, s{s_wm}, 1")
        e(f"s_add_u32 s30, s30, s{s_t}")
        e("s_nop 4")
        for j in range(3):
            for mt in range(2):
                a = ACC + (mt*3+j)*4
                e(f"v_cvt_pk_bf16_f32 v32, v{a}, v{a+1}")
                e(f"v_cvt_pk_bf16_f32 v33, v{a+2}, v{a+3}")
                e(f"s_add_u32 s{s_t}, s29, {j}")
                e(f"s_add_u32 s{s_t2}, s30, {mt}")
                e(f"s_cmp_ge_u32 s{s_t}, 64")
                e(f"s_cbranch_scc1 {name}_v{j}{mt}")
                e(f"s_lshl_b32 s{s_t}, s{s_t}, 16")
                e(f"s_lshl_b32 s{s_t2}, s{s_t2}, 9")
                e(f"s_add_u32 s{s_t}, s{s_t}, s{s_t2}")
                e(f"buffer_store_dwordx2 v[32:33], v6, {sr(sO,4)}, s{s_t} offen")
                e(f"s_branch {name}_n{j}{mt}")
                lab(f"{name}_v{j}{mt}")
                e("ds_write_b64 v7, v[32:33]")
                e("s_waitcnt lgkmcnt(0)")
                e("ds_read_b64_tr_b16 v[34:35], v11")
                e(f"s_sub_u32 s{s_t}, s{s_t}, 64")
                e(f"s_lshl_b32 s{s_t}, s{s_t}, 16")
                e(f"s_lshl_b32 s{s_t2}, s{s_t2}, 9")
                e(f"s_add_u32 s{s_t}, s{s_t}, s{s_t2}")
                e(f"s_add_u32 s{s_t}, s{s_t}, {WS_VT}")
                e("s_waitcnt lgkmcnt(0)")
                e(f"buffer_store_dwordx2 v[34:35], v6, {sr(sO,4)}, s{s_t} offen")
                lab(f"{name}_n{j}{mt}")
                e("s_nop 1")
    else:
        e(f"s_lshl_b32 s{s_t}, s{s_rt}, 6")
        e(f"s_lshl_b32 s{s_t2}, s{s_wm}, 5")
        e(f"s_add_u32 s{s_t}, s{s_t}, s{s_t2}")
        e(f"v_add_u32 v7, s{s_t}, v4")
        e(f"s_mov_b32 s{s_t}, 2752")
        e(f"v_mul_lo_u32 v7, v7, s{s_t}")
        e("v_lshl_add_u32 v7, v5, 3, v7")
        e(f"s_mul_i32 s29, s{s_cg}, 12")
        e(f"s_mul_i32 s{s_t}, s{s_wn}, 3")
        e(f"s_add_u32 s29, s29, s{s_t}")
        e("s_mov_b32 s30, 0xbfb8aa3b")
        e("s_nop 4")
        for j in range(3):
            e(f"s_add_u32 s{s_t}, s29, {j}")
            e(f"s_cmp_ge_u32 s{s_t}, 86")
            e(f"s_cbranch_scc1 {name}_skip{j}")
            e(f"s_lshl_b32 s{s_t}, s{s_t}, 5")
            for mt in range(2):
                g = ACC + (mt*3+j)*4; u = ACC + ((2+mt)*3+j)*4
                for r in range(4): e(f"v_mul_f32 v{32+r}, s30, v{g+r}")
                for r in range(4): e(f"v_exp_f32 v{32+r}, v{32+r}")
                e("s_nop 0")
                for r in range(4): e(f"v_add_f32 v{32+r}, 1.0, v{32+r}")
                for r in range(4): e(f"v_rcp_f32 v{32+r}, v{32+r}")
                e("s_nop 0")
                for r in range(4): e(f"v_mul_f32 v{32+r}, v{32+r}, v{u+r}")
                e(f"v_cvt_pk_bf16_f32 v{36+2*mt}, v32, v33")
                e(f"v_cvt_pk_bf16_f32 v{37+2*mt}, v34, v35")
                e(f"buffer_store_dwordx2 {vr(36+2*mt,2)}, v7, {sr(sO,4)}, s{s_t} offen offset:0" if mt == 0 else
                  f"buffer_store_dwordx2 {vr(36+2*mt,2)}, v41, {sr(sO,4)}, s{s_t} offen")
                if mt == 0: e(f"v_add_u32 v41, {16*2752}, v7")
            e("s_nop 1")
            lab(f"{name}_skip{j}")
    stamp(name)
    stamp_out(name)
    lab(f"{name}_done")
    e("s_endpgm")
    return name, 256, 512, 163840, 224

def gen_ln_gemm2(mode):
    qkv = mode == "qkv"
    name = "k_qkv_kernel" if qkv else "k_gu_kernel"
    MAPMODE = MAPS[mode]
    header(name)
    R = 4; S = 8 if qkv else 16
    WROW = 3072 if qkv else 2752
    KADV = (64 if qkv else 32) * WROW
    XB = 0; WB = 65536; SLOT = 24576
    XR = 176; RS = 208
    sX, sW, sO = 8, 12, 16
    s_wave, s_cg, s_rt, s_wm, s_wn, s_m0, s_k, s_t, s_t2 = 20, 21, 22, 23, 24, 25, 26, 27, 28
    e(f"s_cmp_ge_u32 s2, 256")
    e(f"s_cbranch_scc1 {name}_done")
    stamp(name)
    e("s_load_dwordx4 s[32:35], s[0:1], 0")
    e("s_load_dwordx4 s[36:39], s[0:1], 32")
    e("s_load_dwordx2 s[40:41], s[0:1], 72")
    e("v_lshrrev_b32 v1, 6, v0")
    e("v_and_b32 v2, 63, v0")
    e("s_nop 0")
    e(f"v_readfirstlane_b32 s{s_wave}, v1")
    wgmap(s_cg, s_rt, MAPMODE)
    e(f"s_lshr_b32 s{s_wm}, s{s_wave}, 2")
    e(f"s_and_b32 s{s_wn}, s{s_wave}, 3")
    e("s_waitcnt lgkmcnt(0)")
    if qkv:
        srd(sX, 32, 2048 * 1024)
        srd(sW, 34, 512 * 3072)
        srd(sO, 40, 6 << 20)
    else:
        srd(sX, 40, 2048 * 1024, WS_H)
        e(f"s_cmp_eq_u32 s{s_wm}, 0")
        e("s_cselect_b32 s42, s36, s38")
        e("s_cselect_b32 s43, s37, s39")
        srd(sW, 42, 512 * 2752)
        srd(sO, 40, 2048 * 2752, WS_HM)

    CS = 224; ONES = 236; WA1 = 240; XA = 246
    s_mx, s_kx = 44, 45
    seq = []
    for i in range(2):
        e(f"s_lshl_b32 s{s_t}, s{s_wave}, 7")
        e(f"v_add_u32 v12, s{s_t}, v2")
        if i: e("v_add_u32 v12, 64, v12")
        e("v_lshrrev_b32 v13, 4, v12")
        e("v_and_b32 v14, 15, v12")
        e("v_and_b32 v15, 15, v13")
        e("v_xor_b32 v14, v14, v15")
        e("v_lshlrev_b32 v13, 10, v13")
        e(f"v_lshl_add_u32 v{XA+i}, v14, 4, v13")
    e(f"s_lshl_b32 s{s_kx}, s{s_rt}, 16")
    e(f"s_lshl_b32 s{s_mx}, s{s_wave}, 11")
    def dmax(g):
        for i in range(2):
            e(f"s_add_u32 m0, s{s_mx}, {XB + g*16384 + i*1024}")
            e("s_nop 0")
            e(f"buffer_load_dwordx4 v{XA+i}, {sr(sX,4)}, s{s_kx} offen lds")
        e(f"s_add_u32 s{s_kx}, s{s_kx}, 256")
        seq.extend([("X", g)] * 2)
    dmax(0)
    e(f"s_mul_i32 s{s_t2}, s{s_wn}, 192")
    for i in range(3):
        e(f"v_add_u32 v11, s{s_t2}, v2")
        if i: e(f"v_add_u32 v11, {i*64}, v11")
        e("v_mul_u32_u24 v12, 2731, v11")
        e("v_lshrrev_b32 v12, 16, v12")
        e("v_mul_u32_u24 v13, 24, v12")
        e("v_sub_u32 v13, v11, v13")
        e("v_bfe_u32 v14, v12, 1, 1")
        e("v_bfe_u32 v15, v12, 3, 1")
        e("v_lshl_or_b32 v14, v15, 1, v14")
        e("v_lshlrev_b32 v14, 1, v14")
        e("v_xor_b32 v13, v13, v14")
        e(f"s_mov_b32 s{s_t}, {WROW}")
        e(f"v_mul_lo_u32 v12, v12, s{s_t}")
        e(f"v_lshl_add_u32 v{8+i}, v13, 4, v12")
    e(f"s_mul_i32 s{s_k}, s{s_cg}, 384")
    if qkv:
        e(f"s_mul_i32 s{s_t}, s{s_wm}, {32*3072}")
        e(f"s_add_u32 s{s_k}, s{s_k}, s{s_t}")
    e(f"s_mul_i32 s{s_m0}, s{s_wave}, 3072")
    e(f"s_add_u32 s{s_m0}, s{s_m0}, {WB}")
    def dma(st):
        slot = st % R
        for i in range(3):
            e(f"s_add_u32 m0, s{s_m0}, {slot*SLOT + i*1024}")
            e("s_nop 0")
            e(f"buffer_load_dwordx4 v{8+i}, {sr(sW,4)}, s{s_k} offen lds")
        e(f"s_add_u32 s{s_k}, s{s_k}, {KADV}")
        seq.extend([("W", st)] * 3)
    dma(0); dma(1); dmax(1); dmax(2); dmax(3)
    e("v_lshrrev_b32 v4, 3, v2")
    e("v_and_b32 v5, 7, v2")
    e(f"s_lshl_b32 s{s_t}, s{s_wave}, 3")
    e(f"v_add_u32 v6, s{s_t}, v4")
    e(f"v_lshlrev_b32 v{RS+2}, 8, v6")
    e(f"v_lshl_add_u32 v{RS+2}, v5, 4, v{RS+2}")
    e(f"v_lshlrev_b32 v{RS+3}, 3, v6")
    e(f"v_add_u32 v{RS+3}, {WB}, v{RS+3}")
    e(f"s_mul_i32 s{s_t}, s{s_wave}, 3072")
    e(f"s_add_u32 s{s_t}, s{s_t}, {WB+1024}")
    e(f"v_lshl_add_u32 v{RS+4}, v2, 4, s{s_t}")
    e(f"s_xor_b32 s{s_t}, s{s_wave}, 4")
    e(f"s_mul_i32 s{s_t}, s{s_t}, 3072")
    e(f"s_add_u32 s{s_t}, s{s_t}, {WB+1024}")
    e(f"v_lshl_add_u32 v{RS+10}, v2, 4, s{s_t}")
    e("v_and_b32 v4, 15, v2")
    e("v_lshrrev_b32 v5, 4, v2")
    e(f"s_lshl_b32 s{s_t}, s{s_wm}, 8")
    e(f"s_add_u32 s{s_t}, s{s_t}, {WB}")
    e(f"v_lshl_add_u32 v{RS+5}, v4, 3, s{s_t}")
    e(f"s_lshl_b32 s{s_t}, s{s_wm}, 13")
    e("v_lshlrev_b32 v6, 8, v4")
    e(f"v_add_u32 v6, s{s_t}, v6")
    e("v_and_b32 v7, 3, v4")
    e("v_xor_b32 v7, v7, v5")
    e("v_lshrrev_b32 v11, 2, v4")
    for k in range(4):
        if qkv:
            e(f"s_xor_b32 s{s_t}, s{s_wm}, {k}")
            e(f"v_xor_b32 v12, s{s_t}, v11")
        else:
            e(f"v_xor_b32 v12, {k}, v11")
        e("v_lshl_or_b32 v12, v12, 2, v7")
        e(f"v_lshl_add_u32 v{24+k}, v12, 4, v6")
    e("v_lshrrev_b32 v11, 2, v4")
    e("v_and_b32 v12, 3, v4")
    e("v_lshl_add_u32 v13, v5, 3, v11")
    e("v_mul_u32_u24 v13, 384, v13")
    e("v_lshl_add_u32 v13, v12, 3, v13")
    e(f"v_add_u32 v13, {WB}, v13")
    e("v_lshrrev_b32 v14, 1, v11")
    e("v_and_b32 v15, 1, v5")
    e("v_lshl_or_b32 v14, v15, 1, v14")
    e(f"s_mul_i32 s{s_t}, s{s_wn}, 3")
    e(f"s_mul_i32 s29, s{s_wm}, 12288")
    e(f"s_sub_u32 s30, 12288, s29")
    for j in range(3):
        e(f"s_add_u32 s{s_t2}, s{s_t}, {j}")
        e(f"v_xor_b32 v15, s{s_t2}, v14")
        e(f"v_lshl_add_u32 v15, v15, 5, v13")
        e(f"v_add_u32 v{16+j}, s29, v15")
        e(f"v_add_u32 v{19+j}, {2*SLOT}, v{16+j}")
        e(f"v_add_u32 v{WA1+j}, s30, v15")
        e(f"v_add_u32 v{WA1+3+j}, {2*SLOT}, v{WA1+j}")
    ACC = 128
    NACC = 6 if qkv else 12
    for i in range(NACC * 4):
        e(f"v_mov_b32 v{ACC+i}, 0")
    for i in range(12): e(f"v_mov_b32 v{CS+i}, 0")
    for i in range(4): e(f"v_mov_b32 v{ONES+i}, 0x3f803f80")
    e(f"s_mov_b32 s31, 0x3f803f80")
    stamp(name)
    def stat_reads():
        for i in range(8):
            e(f"ds_read_b128 {vr(XR+4*i,4)}, v{RS+2} offset:{XB+(i>>1)*16384+(i&1)*128}")
    SC = []
    def c(*ls): SC.append(["    " + l for l in ls])
    c(f"v_dot2_f32_bf16 v{RS+6}, v{XR}, s31, 0")
    c(f"v_dot2_f32_bf16 v{RS+7}, v{XR+1}, s31, 0")
    c(f"v_dot2_f32_bf16 v{RS+8}, v{XR}, v{XR}, 0")
    c(f"v_dot2_f32_bf16 v{RS+9}, v{XR+1}, v{XR+1}, 0")
    for i in range(2, 32, 2):
        c(f"v_dot2_f32_bf16 v{RS+6}, v{XR+i}, s31, v{RS+6}")
        c(f"v_dot2_f32_bf16 v{RS+7}, v{XR+i+1}, s31, v{RS+7}")
        c(f"v_dot2_f32_bf16 v{RS+8}, v{XR+i}, v{XR+i}, v{RS+8}")
        c(f"v_dot2_f32_bf16 v{RS+9}, v{XR+i+1}, v{XR+i+1}, v{RS+9}")
    c("s_nop 3", f"v_add_f32 v{RS+6}, v{RS+6}, v{RS+7}", f"v_add_f32 v{RS+8}, v{RS+8}, v{RS+9}")
    for ctl in ("quad_perm:[1,0,3,2]", "quad_perm:[2,3,0,1]", "row_half_mirror"):
        c("s_nop 1",
          f"v_add_f32_dpp v{RS+6}, v{RS+6}, v{RS+6} {ctl} row_mask:0xf bank_mask:0xf",
          f"v_add_f32_dpp v{RS+8}, v{RS+8}, v{RS+8} {ctl} row_mask:0xf bank_mask:0xf")
    c(f"v_mul_f32 v{RS+6}, 0x3b000000, v{RS+6}",
      f"v_mul_f32 v{RS+8}, 0x3b000000, v{RS+8}",
      f"v_fma_f32 v{RS+8}, -v{RS+6}, v{RS+6}, v{RS+8}",
      f"v_max_f32 v{RS+8}, 0, v{RS+8}",
      f"v_add_f32 v{RS+8}, 0x3727c5ac, v{RS+8}",
      f"v_rsq_f32 v{RS}, v{RS+8}",
      "s_nop 0",
      f"v_mul_f32 v{RS+1}, v{RS+6}, v{RS}",
      f"v_sub_f32 v{RS+1}, 0, v{RS+1}")
    NSC = len(SC)
    FS = [32, 80]
    def reads(st):
        base = FS[st & 1]; slot = st % R
        hi = 0 if slot < 2 else 3; so = (slot & 1) * SLOT
        nk = 2 if qkv else 1
        for kk in range(nk):
            ks = st * nk + kk
            for mt in range(2):
                e(f"ds_read_b128 {vr(base+(kk*2+mt)*4,4)}, v{24+(ks&3)} offset:{XB+(ks>>2)*16384+mt*4096}")
        for b in range(2):
            for j in range(3):
                wa = (16 if b == 0 else WA1) + hi + j
                for t2 in range(2):
                    e(f"ds_read_b64_tr_b16 {vr(base+16+(b*3+j)*4+t2*2,2)}, v{wa} offset:{so+t2*1536}")
    def mfmas(st):
        base = FS[st & 1]
        for b in range(2):
            for j in range(3):
                for mt in range(2):
                    if qkv: a = ACC + (mt*3+j)*4; x = base + (b*2+mt)*4
                    else:   a = ACC + ((b*2+mt)*3+j)*4; x = base + mt*4
                    e(f"v_mfma_f32_16x16x32_bf16 {vr(a,4)}, {vr(base+16+(b*3+j)*4,4)}, {vr(x,4)}, {vr(a,4)}")
                if b == 0:
                    e(f"v_mfma_f32_16x16x32_bf16 {vr(CS+4*j,4)}, {vr(base+16+j*4,4)}, {vr(ONES,4)}, {vr(CS+4*j,4)}")
    grp = (lambda st: st >> 1) if qkv else (lambda st: st >> 2)
    issued = 2
    ST0 = int(os.environ.get("ST0", "2"))
    NSS = 3
    for st in range(S):
        tags = {("W", st), ("X", grp(st))}
        if st == ST0: tags |= {("X", g) for g in range(4)}
        last = max(i for i, t in enumerate(seq) if t in tags)
        e(f"s_waitcnt vmcnt({len(seq)-1-last}) lgkmcnt(0)")
        e("s_barrier")
        if st in (0, 1, 2, 4, 6, S-1): stamp(name)
        B = chunks_of(capture(reads, st))
        while issued < S and issued <= st + PDL:
            B += chunks_of(capture(dma, issued))
            issued += 1
        if st == ST0: B += chunks_of(capture(stat_reads))
        if ST0 < st <= ST0 + NSS:
            q = st - ST0 - 1
            B += SC[q*NSC//NSS:(q+1)*NSC//NSS]
        if st >= 1: interleave(capture(mfmas, st - 1), B)
        else:
            for ch in B: L.extend(ch)
    e("s_waitcnt lgkmcnt(0)")
    mfmas(S - 1)
    e("s_barrier")
    stamp(name)
    e("s_nop 7"); e("s_nop 3")
    e(f"ds_write_b64 v{RS+3}, v[{RS}:{RS+1}]")
    for j in range(3):
        e(f"ds_write_b128 v{RS+4}, {vr(CS+4*j,4)} offset:{j*1024}")
    e("s_waitcnt lgkmcnt(0)")
    e("s_barrier")
    e(f"ds_read_b64 v[32:33], v{RS+5}")
    e(f"ds_read_b64 v[34:35], v{RS+5} offset:128")
    for j in range(3):
        e(f"ds_read_b128 {vr(36+4*j,4)}, v{RS+10} offset:{j*1024}")
    e("s_waitcnt lgkmcnt(0)")
    if qkv:
        for p in range(6):
            e(f"v_pk_add_f32 {vr(CS+2*p,2)}, {vr(CS+2*p,2)}, {vr(36+2*p,2)}")
    tn = 0
    for b in range(1 if qkv else 2):
        for mt in range(2):
            for j in range(3):
                a = (ACC + (mt*3+j)*4) if qkv else (ACC + ((b*2+mt)*3+j)*4)
                cc = (CS if b == 0 else 36) + 4*j
                for p in range(2):
                    t = 48 + 2*(tn % 4); tn += 1
                    e(f"v_pk_mul_f32 {vr(t,2)}, {vr(cc+2*p,2)}, {vr(32+2*mt,2)} op_sel:[0,1] op_sel_hi:[1,1]")
                    e(f"v_pk_fma_f32 {vr(a+2*p,2)}, {vr(a+2*p,2)}, {vr(32+2*mt,2)}, {vr(t,2)} op_sel_hi:[1,0,1]")
    if not qkv:
        e(f"s_cmp_eq_u32 s{s_wm}, 0")
        e(f"s_cbranch_scc1 {name}_nosw")
        for i in range(24):
            e(f"v_swap_b32 v{ACC+i}, v{ACC+24+i}")
        lab(f"{name}_nosw")
    e("v_lshlrev_b32 v6, 5, v4")
    e("v_lshl_add_u32 v6, v5, 3, v6")
    if qkv:
        e(f"s_lshl_b32 s{s_t}, s{s_wave}, 9")
        e(f"v_add_u32 v7, s{s_t}, v6")
        e("v_lshrrev_b32 v11, 2, v4")
        e("v_and_b32 v12, 3, v4")
        e("v_lshl_add_u32 v11, v5, 2, v11")
        e("v_lshlrev_b32 v11, 5, v11")
        e("v_lshl_add_u32 v11, v12, 3, v11")
        e(f"v_add_u32 v11, s{s_t}, v11")
        e(f"s_mul_i32 s29, s{s_cg}, 12")
        e(f"s_mul_i32 s{s_t}, s{s_wn}, 3")
        e(f"s_add_u32 s29, s29, s{s_t}")
        e(f"s_lshl_b32 s30, s{s_rt}, 2")
        e(f"s_lshl_b32 s{s_t}, s{s_wm}, 1")
        e(f"s_add_u32 s30, s30, s{s_t}")
        e("s_nop 4")
        for j in range(3):
            for mt in range(2):
                a = ACC + (mt*3+j)*4
                e(f"v_cvt_pk_bf16_f32 v32, v{a}, v{a+1}")
                e(f"v_cvt_pk_bf16_f32 v33, v{a+2}, v{a+3}")
                e(f"s_add_u32 s{s_t}, s29, {j}")
                e(f"s_add_u32 s{s_t2}, s30, {mt}")
                e(f"s_cmp_ge_u32 s{s_t}, 64")
                e(f"s_cbranch_scc1 {name}_v{j}{mt}")
                e(f"s_lshl_b32 s{s_t}, s{s_t}, 16")
                e(f"s_lshl_b32 s{s_t2}, s{s_t2}, 9")
                e(f"s_add_u32 s{s_t}, s{s_t}, s{s_t2}")
                e(f"buffer_store_dwordx2 v[32:33], v6, {sr(sO,4)}, s{s_t} offen")
                e(f"s_branch {name}_n{j}{mt}")
                lab(f"{name}_v{j}{mt}")
                e("ds_write_b64 v7, v[32:33]")
                e("s_waitcnt lgkmcnt(0)")
                e("ds_read_b64_tr_b16 v[34:35], v11")
                e(f"s_sub_u32 s{s_t}, s{s_t}, 64")
                e(f"s_lshl_b32 s{s_t}, s{s_t}, 16")
                e(f"s_lshl_b32 s{s_t2}, s{s_t2}, 9")
                e(f"s_add_u32 s{s_t}, s{s_t}, s{s_t2}")
                e(f"s_add_u32 s{s_t}, s{s_t}, {WS_VT}")
                e("s_waitcnt lgkmcnt(0)")
                e(f"buffer_store_dwordx2 v[34:35], v6, {sr(sO,4)}, s{s_t} offen")
                lab(f"{name}_n{j}{mt}")
                e("s_nop 1")
    else:
        e(f"s_lshl_b32 s{s_t}, s{s_rt}, 6")
        e(f"s_lshl_b32 s{s_t2}, s{s_wm}, 5")
        e(f"s_add_u32 s{s_t}, s{s_t}, s{s_t2}")
        e(f"v_add_u32 v7, s{s_t}, v4")
        e(f"s_mov_b32 s{s_t}, 2752")
        e(f"v_mul_lo_u32 v7, v7, s{s_t}")
        e("v_lshl_add_u32 v7, v5, 3, v7")
        e(f"s_mul_i32 s29, s{s_cg}, 12")
        e(f"s_mul_i32 s{s_t}, s{s_wn}, 3")
        e(f"s_add_u32 s29, s29, s{s_t}")
        e("s_mov_b32 s30, 0xbfb8aa3b")
        e("s_nop 4")
        for j in range(3):
            e(f"s_add_u32 s{s_t}, s29, {j}")
            e(f"s_cmp_ge_u32 s{s_t}, 86")
            e(f"s_cbranch_scc1 {name}_skip{j}")
            e(f"s_lshl_b32 s{s_t}, s{s_t}, 5")
            for mt in range(2):
                g = ACC + (mt*3+j)*4; u = ACC + ((2+mt)*3+j)*4
                for r in range(4): e(f"v_mul_f32 v{32+r}, s30, v{g+r}")
                for r in range(4): e(f"v_exp_f32 v{32+r}, v{32+r}")
                e("s_nop 0")
                for r in range(4): e(f"v_add_f32 v{32+r}, 1.0, v{32+r}")
                for r in range(4): e(f"v_rcp_f32 v{32+r}, v{32+r}")
                e("s_nop 0")
                for r in range(4): e(f"v_mul_f32 v{32+r}, v{32+r}, v{u+r}")
                e(f"v_cvt_pk_bf16_f32 v{36+2*mt}, v32, v33")
                e(f"v_cvt_pk_bf16_f32 v{37+2*mt}, v34, v35")
                e(f"buffer_store_dwordx2 {vr(36+2*mt,2)}, v7, {sr(sO,4)}, s{s_t} offen offset:0" if mt == 0 else
                  f"buffer_store_dwordx2 {vr(36+2*mt,2)}, v41, {sr(sO,4)}, s{s_t} offen")
                if mt == 0: e(f"v_add_u32 v41, {16*2752}, v7")
            e("s_nop 1")
            lab(f"{name}_skip{j}")
    stamp(name)
    stamp_out(name)
    lab(f"{name}_done")
    e("s_endpgm")
    return name, 256, 512, 163840, 256

def gen_plain(mode):
    wo = mode == "wo"
    name = "k_wo_kernel" if wo else "k_down_kernel"
    MAPMODE = MAPS[mode]
    header(name)
    R = 4
    K = 512 if wo else 1376
    AS = 1024 if wo else 2752
    stages = [(k0, min(128, K - k0)) for k0 in range(0, K, 128)]
    S = len(stages)
    SLOT = 32768
    sA, sW, sR, sO = 8, 12, 16, 44
    s_wave, s_cg, s_rt, s_wm, s_wn, s_m0, s_ka, s_kw, s_t, s_t2 = 20, 21, 22, 23, 24, 25, 26, 27, 28, 29
    e(f"s_cmp_ge_u32 s2, 256")
    e(f"s_cbranch_scc1 {name}_done")
    stamp(name)
    e("s_load_dwordx2 s[32:33], s[0:1], 0")
    e("s_load_dwordx2 s[34:35], s[0:1], %d" % (16 if wo else 48))
    e("s_load_dwordx2 s[36:37], s[0:1], 56")
    e("s_load_dwordx2 s[40:41], s[0:1], 72")
    e("v_lshrrev_b32 v1, 6, v0")
    e("v_and_b32 v2, 63, v0")
    e("s_nop 0")
    e(f"v_readfirstlane_b32 s{s_wave}, v1")
    wgmap(s_cg, s_rt, MAPMODE)
    e(f"s_lshr_b32 s{s_wm}, s{s_wave}, 2")
    e(f"s_and_b32 s{s_wn}, s{s_wave}, 3")
    e("s_waitcnt lgkmcnt(0)")
    if wo:
        srd(sA, 40, 2048 * 1024, WS_O); srd(sW, 34, 512 * 1024)
        srd(sR, 32, 2048 * 1024); srd(sO, 40, 2048 * 1024, WS_H)
    else:
        srd(sA, 40, 2048 * 2752, WS_HM); srd(sW, 34, 1376 * 1024)
        srd(sR, 40, 2048 * 1024, WS_H); srd(sO, 36, 2048 * 1024)
    for i in range(2):
        e(f"s_lshl_b32 s{s_t}, s{s_wave}, 7")
        e(f"v_add_u32 v12, s{s_t}, v2")
        if i: e("v_add_u32 v12, 64, v12")
        e("v_lshrrev_b32 v13, 4, v12")
        e("v_and_b32 v14, 15, v12")
        e("v_and_b32 v15, 15, v13")
        e("v_xor_b32 v14, v14, v15")
        e(f"s_mov_b32 s{s_t}, {AS}")
        e(f"v_mul_lo_u32 v13, v13, s{s_t}")
        e(f"v_lshl_add_u32 v{8+i}, v14, 4, v13")
        e("v_lshrrev_b32 v13, 3, v12")
        e("v_and_b32 v14, 7, v12")
        e("v_bfe_u32 v15, v13, 1, 1")
        e("v_bfe_u32 v16, v13, 3, 1")
        e("v_lshl_or_b32 v15, v16, 1, v15")
        e("v_lshlrev_b32 v15, 1, v15")
        e("v_xor_b32 v14, v14, v15")
        e("v_lshlrev_b32 v13, 10, v13")
        e(f"v_lshl_add_u32 v{10+i}, v14, 4, v13")
    e(f"s_mul_i32 s{s_ka}, s{s_rt}, {64*AS}")
    e(f"s_lshl_b32 s{s_kw}, s{s_cg}, 7")
    e(f"s_lshl_b32 s{s_m0}, s{s_wave}, 11")
    VG = os.environ.get("VG", "") == "1" and wo
    def dma(st):
        slot = st % R
        if VG:
            for i in range(2):
                e(f"buffer_load_dwordx4 {vr(160+st*16+i*8,4)}, v{8+i}, {sr(sA,4)}, s{s_ka} offen")
                e(f"buffer_load_dwordx4 {vr(164+st*16+i*8,4)}, v{10+i}, {sr(sW,4)}, s{s_kw} offen")
            e(f"s_add_u32 s{s_ka}, s{s_ka}, 256")
            e(f"s_add_u32 s{s_kw}, s{s_kw}, {128*1024}")
            return
        for i in range(2):
            e(f"s_add_u32 m0, s{s_m0}, {slot*SLOT + i*1024}")
            e("s_nop 0")
            e(f"buffer_load_dwordx4 v{8+i}, {sr(sA,4)}, s{s_ka} offen {DFL} lds")
            e(f"s_add_u32 m0, s{s_m0}, {slot*SLOT + 16384 + i*1024}")
            e("s_nop 0")
            e(f"buffer_load_dwordx4 v{10+i}, {sr(sW,4)}, s{s_kw} offen {DFL} lds")
        e(f"s_add_u32 s{s_ka}, s{s_ka}, 256")
        e(f"s_add_u32 s{s_kw}, s{s_kw}, {128*1024}")
    D = int(os.environ.get("PD", "2"))
    D0 = int(os.environ.get("PD0", "2"))
    issued = min(D0, S)
    for st in range(issued): dma(st)
    e("v_and_b32 v4, 15, v2")
    e("v_lshrrev_b32 v5, 4, v2")
    e(f"v_lshl_add_u32 v140, v2, 4, s{s_m0}")
    e(f"v_add_u32 v141, {2*SLOT}, v140")
    e(f"s_lshl_b32 s{s_t}, s{s_rt}, 6")
    e(f"s_lshl_b32 s{s_t2}, s{s_wm}, 5")
    e(f"s_add_u32 s{s_t}, s{s_t}, s{s_t2}")
    e(f"v_add_u32 v6, s{s_t}, v4")
    e("v_lshlrev_b32 v6, 10, v6")
    e("v_lshl_add_u32 v6, v5, 3, v6")
    e(f"s_lshl_b32 s{s_t}, s{s_cg}, 7")
    e(f"s_lshl_b32 s{s_t2}, s{s_wn}, 5")
    e(f"s_add_u32 s30, s{s_t}, s{s_t2}")
    e("v_add_u32 v7, 16384, v6")
    e(f"buffer_load_dwordx2 v[136:137], v6, {sr(sR,4)}, s30 offen")
    e(f"buffer_load_dwordx2 v[138:139], v7, {sr(sR,4)}, s30 offen")
    e(f"s_lshl_b32 s{s_t}, s{s_wm}, 13")
    e("v_lshlrev_b32 v12, 8, v4")
    e(f"v_add_u32 v12, s{s_t}, v12")
    e("v_and_b32 v13, 3, v4")
    e("v_xor_b32 v13, v13, v5")
    e("v_lshrrev_b32 v14, 2, v4")
    for k in range(4):
        e(f"v_xor_b32 v15, {k}, v14")
        e("v_lshl_or_b32 v15, v15, 2, v13")
        e(f"v_lshl_add_u32 v{16+k}, v15, 4, v12")
        e(f"v_add_u32 v{20+k}, {2*SLOT}, v{16+k}")
    e("v_lshrrev_b32 v12, 2, v4")
    e("v_and_b32 v13, 3, v4")
    e("v_lshl_add_u32 v14, v5, 3, v12")
    e("v_lshlrev_b32 v14, 7, v14")
    e("v_lshl_add_u32 v14, v13, 3, v14")
    e("v_lshrrev_b32 v15, 1, v12")
    e("v_and_b32 v13, 1, v5")
    e("v_lshl_or_b32 v15, v13, 1, v15")
    e(f"v_xor_b32 v15, s{s_wn}, v15")
    e("v_lshl_add_u32 v24, v15, 5, v14")
    e("v_add_u32 v24, 16384, v24")
    e(f"v_add_u32 v25, {2*SLOT}, v24")
    ACC = 128
    for i in range(8): e(f"v_mov_b32 v{ACC+i}, 0")
    FS = [28, 76]
    def reads(st):
        base = FS[st & 1]; slot = st % R; hi = slot >= 2; so = (slot & 1) * SLOT
        for ks in range(stages[st][1] // 32):
            for mt in range(2):
                e(f"ds_read_b128 {vr(base+(ks*2+mt)*4,4)}, v{(20 if hi else 16)+ks} offset:{so+mt*4096}")
            for t2 in range(2):
                e(f"ds_read_b64_tr_b16 {vr(base+32+ks*4+t2*2,2)}, v{25 if hi else 24} offset:{so+ks*4096+t2*512}")
    def mfmas(st):
        base = FS[st & 1]
        for ks in range(stages[st][1] // 32):
            for mt in range(2):
                a = ACC + mt * 4
                e(f"v_mfma_f32_16x16x32_bf16 {vr(a,4)}, {vr(base+32+ks*4,4)}, {vr(base+(ks*2+mt)*4,4)}, {vr(a,4)}")
    for st in range(S):
        after = (issued - 1 - st) * 4 + (2 if st < min(D0, S) else 0)
        if VG:
            e(f"s_waitcnt vmcnt({after})")
            for i in range(2):
                e(f"ds_write_b128 v{140+(st>>1)}, {vr(160+st*16+i*8,4)} offset:{(st&1)*SLOT+i*1024}")
                e(f"ds_write_b128 v{140+(st>>1)}, {vr(164+st*16+i*8,4)} offset:{(st&1)*SLOT+16384+i*1024}")
        e(f"s_waitcnt vmcnt({after}) lgkmcnt(0)")
        e("s_barrier")
        if st in (0,1,2,3,5,8): stamp(name)
        B = chunks_of(capture(reads, st))
        while issued < S and issued <= st + D:
            B += chunks_of(capture(dma, issued)); issued += 1
        if st >= 1: interleave(capture(mfmas, st - 1), B)
        else:
            for c in B: L.extend(c)
    e("s_waitcnt vmcnt(0) lgkmcnt(0)")
    mfmas(S - 1)
    e("s_nop 7"); e("s_nop 1")
    for mt in range(2):
        a = ACC + mt*4; r = 136 + 2*mt
        e(f"v_lshlrev_b32 v12, 16, v{r}")
        e(f"v_and_b32 v13, 0xffff0000, v{r}")
        e(f"v_lshlrev_b32 v14, 16, v{r+1}")
        e(f"v_and_b32 v15, 0xffff0000, v{r+1}")
        for i in range(4): e(f"v_add_f32 v{12+i}, v{12+i}, v{a+i}")
        e(f"v_cvt_pk_bf16_f32 v{r}, v12, v13")
        e(f"v_cvt_pk_bf16_f32 v{r+1}, v14, v15")
        e(f"buffer_store_dwordx2 {vr(r,2)}, v{6+mt}, {sr(sO,4)}, s30 offen")
    stamp(name)
    stamp_out(name)
    lab(f"{name}_done")
    e("s_endpgm")
    return name, 256, 512, 131072, 224

def gen_attn():
    name = "k_attn_kernel"
    header(name)
    sWS, sO = 8, 12
    s_wave, s_head, s_qt, s_t, s_t2, s_kb, s_vb = 20, 21, 22, 23, 24, 25, 26
    e("s_cmp_ge_u32 s2, 512")
    e(f"s_cbranch_scc1 {name}_done")
    stamp(name)
    e("s_load_dwordx2 s[40:41], s[0:1], 72")
    e("v_lshrrev_b32 v1, 6, v0")
    e("v_and_b32 v2, 63, v0")
    e("s_nop 0")
    e(f"v_readfirstlane_b32 s{s_wave}, v1")
    e(f"s_lshr_b32 s{s_head}, s2, 4")
    e(f"s_and_b32 s{s_qt}, s2, 15")
    e(f"s_lshl_b32 s{s_qt}, s{s_qt}, 3")
    e("v_and_b32 v4, 15, v2")
    e("v_lshrrev_b32 v5, 4, v2")
    e("v_lshlrev_b32 v6, 5, v4")
    e("v_lshl_add_u32 v6, v5, 3, v6")
    e("v_lshlrev_b32 v7, 4, v2")
    e("s_waitcnt lgkmcnt(0)")
    srd(sWS, 40, 6 << 20)
    srd(sO, 40, 2048 * 1024, WS_O)
    e(f"s_lshl_b32 s{s_t}, s{s_head}, 16")
    e(f"s_lshl_b32 s{s_t2}, s{s_qt}, 9")
    e(f"s_add_u32 s{s_t2}, s{s_t2}, s{s_t}")
    QF, KF, SS = 8, 12, 48
    VF = KF
    T = 116
    e(f"s_lshl_b32 s{s_t}, s{s_wave}, 9")
    e(f"s_add_u32 s{s_t}, s{s_t2}, s{s_t}")
    e(f"buffer_load_dwordx2 {vr(QF,2)}, v6, {sr(sWS,4)}, s{s_t} offen")
    e(f"s_cmp_lt_u32 s{s_wave}, 4")
    e(f"s_mov_b32 s{s_vb}, {WS_VT-8192-12288}")
    e(f"s_cselect_b32 s{s_kb}, {32*65536-8192}, s{s_vb}")
    e(f"s_add_u32 s{s_kb}, s{s_kb}, s{s_t2}")
    e(f"s_mul_i32 s{s_vb}, s{s_wave}, 3072")
    e(f"s_add_u32 s{s_kb}, s{s_kb}, s{s_vb}")
    for i in range(3):
        e(f"s_add_u32 m0, s{s_vb}, {i*1024}")
        e("s_nop 0")
        e(f"buffer_load_dwordx4 v7, {sr(sWS,4)}, s{s_kb} offen lds")
        if i < 2: e(f"s_add_u32 s{s_kb}, s{s_kb}, 1024")
    e(f"s_add_u32 s{s_qt}, s{s_qt}, s{s_wave}")
    e(f"s_lshl_b32 s{s_t}, s{s_wave}, 9")
    e(f"v_add_u32 v10, s{s_t}, v6")
    e("v_lshlrev_b32 v7, 2, v5")
    e("v_sub_u32 v7, v7, v4")
    e("v_mov_b32 v3, 0xf149f2ca")
    e(f"s_cmp_lt_u32 s{s_wave}, 4")
    e(f"s_cbranch_scc1 {name}_w0")
    e("s_waitcnt vmcnt(3)")
    e(f"s_branch {name}_w1")
    lab(f"{name}_w0")
    e("s_waitcnt vmcnt(0)")
    lab(f"{name}_w1")
    e("s_barrier")
    stamp(name)
    for t in range(17):
        e(f"ds_read_b64 {vr(KF+2*t,2)}, v10 offset:{t*512}")
    for t in range(17):
        e(f"s_waitcnt lgkmcnt({min(15,16-t)})")
        e(f"v_mfma_f32_16x16x16_bf16 {vr(SS+4*t,4)}, {vr(KF+2*t,2)}, {vr(QF,2)}, 0")
    e("s_waitcnt vmcnt(0)")
    e("s_barrier")
    e("s_nop 4")
    for t in range(17):
        e(f"ds_read_b64 {vr(VF+2*t,2)}, v10 offset:{12288+t*512}")
    stamp(name)
    for r in range(4):
        e(f"v_add_u32 v1, {r}, v7")
        e("v_cmp_lt_i32 vcc, 0, v1")
        e("s_nop 1")
        e(f"v_cndmask_b32 v{SS+r}, v3, v{SS+r}, vcc")
        e(f"v_cndmask_b32 v{SS+64+r}, v{SS+64+r}, v3, vcc")
    for t in range(16):
        e(f"s_cmp_ge_u32 s{s_qt}, {16-t}")
        e(f"s_cbranch_scc1 {name}_m{t}")
        for r in range(4): e(f"v_mov_b32 v{SS+4*t+r}, v3")
        lab(f"{name}_m{t}")
    e(f"v_max3_f32 v{T}, v{SS}, v{SS+1}, v{SS+2}")
    e(f"v_max3_f32 v{T+1}, v{SS+3}, v{SS+4}, v{SS+5}")
    i = 6
    while i + 3 < 68:
        e(f"v_max3_f32 v{T}, v{T}, v{SS+i}, v{SS+i+1}")
        e(f"v_max3_f32 v{T+1}, v{T+1}, v{SS+i+2}, v{SS+i+3}")
        i += 4
    assert i == 66
    e(f"v_max3_f32 v{T}, v{T}, v{SS+66}, v{SS+67}")
    e(f"v_max_f32 v{T}, v{T}, v{T+1}")
    e(f"v_xor_b32 v{T+2}, 16, v2"); e(f"v_lshlrev_b32 v{T+2}, 2, v{T+2}")
    e(f"v_xor_b32 v{T+3}, 32, v2"); e(f"v_lshlrev_b32 v{T+3}, 2, v{T+3}")
    for a in (T+2, T+3):
        e(f"ds_bpermute_b32 v{T+1}, v{a}, v{T}")
        e("s_waitcnt lgkmcnt(0)")
        e(f"v_max_f32 v{T}, v{T}, v{T+1}")
    e("s_mov_b32 s30, 0x3eb8aa3b")
    e(f"v_mul_f32 v{T}, s30, v{T}")
    e(f"v_sub_f32 v{T}, 0, v{T}")
    e(f"v_mov_b32 v{T+4}, s30")
    for i in range(68):
        e(f"v_fma_f32 v{SS+i}, v{SS+i}, v{T+4}, v{T}")
    for i in range(68):
        e(f"v_exp_f32 v{SS+i}, v{SS+i}")
    e("s_nop 0")
    e(f"v_pk_add_f32 {vr(T+6,2)}, {vr(SS,2)}, {vr(SS+2,2)}")
    e(f"v_pk_add_f32 {vr(T+8,2)}, {vr(SS+4,2)}, {vr(SS+6,2)}")
    for i in range(8, 68, 4):
        e(f"v_pk_add_f32 {vr(T+6,2)}, {vr(T+6,2)}, {vr(SS+i,2)}")
        e(f"v_pk_add_f32 {vr(T+8,2)}, {vr(T+8,2)}, {vr(SS+i+2,2)}")
    e(f"v_pk_add_f32 {vr(T+6,2)}, {vr(T+6,2)}, {vr(T+8,2)}")
    e(f"v_add_f32 v{T+6}, v{T+6}, v{T+7}")
    for p in range(9):
        for h in range(4 if p < 8 else 2):
            e(f"v_cvt_pk_bf16_f32 v{SS+8*p+h}, v{SS+8*p+2*h}, v{SS+8*p+2*h+1}")
    for a in (T+2, T+3):
        e(f"ds_bpermute_b32 v{T+7}, v{a}, v{T+6}")
        e("s_waitcnt lgkmcnt(0)")
        e(f"v_add_f32 v{T+6}, v{T+6}, v{T+7}")
    e(f"v_rcp_f32 v{T}, v{T+6}")
    stamp(name)
    O1, O2 = 120, 124
    e(f"v_mfma_f32_16x16x16_bf16 {vr(O1,4)}, {vr(VF+32,2)}, {vr(SS+64,2)}, 0")
    e(f"v_mfma_f32_16x16x32_bf16 {vr(O2,4)}, {vr(VF,4)}, {vr(SS,4)}, 0")
    for p in range(1, 8):
        a = O1 if p & 1 else O2
        if p == 1:
            e("s_nop 7")
        e(f"v_mfma_f32_16x16x32_bf16 {vr(a,4)}, {vr(VF+4*p,4)}, {vr(SS+8*p,4)}, {vr(a,4)}")
    e("s_nop 7"); e("s_nop 1")
    for r in range(4):
        e(f"v_add_f32 v{O1+r}, v{O1+r}, v{O2+r}")
    for r in range(4):
        e(f"v_mul_f32 v{O1+r}, v{O1+r}, v{T}")
    e(f"v_cvt_pk_bf16_f32 v160, v{O1}, v{O1+1}".replace("v160", f"v{O1}"))
    e(f"v_cvt_pk_bf16_f32 v{O1+1}, v{O1+2}, v{O1+3}")
    e("v_lshlrev_b32 v7, 10, v4")
    e("v_lshl_add_u32 v7, v5, 3, v7")
    e(f"s_lshl_b32 s{s_t}, s{s_qt}, 14")
    e(f"s_lshl_b32 s{s_t2}, s{s_head}, 5")
    e(f"s_add_u32 s{s_t}, s{s_t}, s{s_t2}")
    e(f"buffer_store_dwordx2 v[120:121], v7, {sr(sO,4)}, s{s_t} offen")
    stamp(name)
    stamp_out(name)
    lab(f"{name}_done")
    e("s_endpgm")
    return name, 512, 512, 24576, 128

def main():
    kernels = []
    RAW = os.environ.get("RAW", "11")
    kernels.append((gen_ln_gemm2 if RAW[0] == "1" else gen_ln_gemm)("qkv"))
    kernels.append(gen_attn())
    kernels.append(gen_plain("wo"))
    kernels.append((gen_ln_gemm2 if RAW[1] == "1" else gen_ln_gemm)("gu"))
    kernels.append(gen_plain("down"))
    out = []
    src = open("cdna_kernels/%s.s.ref" % NAME).read().split("\n")
    for ln in src:
        if ln.startswith("; Override"): break
        out.append(ln)
    for (n, g, b, lds, vg) in kernels:
        out.append(f"; @launch kernel={n} grid=({g},1,1) block=({b},1,1) lds={lds}")
    out.append('.amdgcn_target "amdgcn-amd-amdhsa--gfx950"')
    out += L
    out.append('.section .rodata,"a"')
    for (n, g, b, lds, vg) in kernels:
        out.append(".p2align 6")
        out.append(f".amdhsa_kernel {n}")
        out.append(f"  .amdhsa_next_free_vgpr {vg}")
        out.append("  .amdhsa_next_free_sgpr 102")
        out.append(f"  .amdhsa_accum_offset {vg}")
        out.append("  .amdhsa_group_segment_fixed_size 0")
        out.append("  .amdhsa_kernarg_size 80")
        out.append("  .amdhsa_user_sgpr_count 2")
        out.append("  .amdhsa_user_sgpr_kernarg_segment_ptr 1")
        out.append("  .amdhsa_system_sgpr_workgroup_id_x 1")
        out.append(".end_amdhsa_kernel")
    open("cdna_kernels/%s.s" % NAME, "w").write("\n".join(out) + "\n")

if __name__ == "__main__":
    main()
```

```python
import sys
NAME = "sequential_preLN__sliding_block__glu_gated_glu__prompt"
WS_QK, WS_VT, WS_O, WS_H, WS_HM = 0, 4 << 20, 6 << 20, 8 << 20, 10 << 20
WS_SIZE = 268435456
L = []
MAPS = dict(qkv="4x2", wo="4x2", gu="4x2", down="4x2")
import os
for _k in MAPS:
    if os.environ.get("MAP_"+_k): MAPS[_k] = os.environ["MAP_"+_k]
def e(s): L.append("    " + s)
def lab(s): L.append(s + ":")
def cmt(s): L.append("    ; " + s)
def vr(a, n=1): return f"v{a}" if n == 1 else f"v[{a}:{a+n-1}]"
def sr(a, n=1): return f"s{a}" if n == 1 else f"s[{a}:{a+n-1}]"

def srd(d, ptr, nbytes, add=0):
    if add:
        e(f"s_add_u32 s{d}, s{ptr}, {add}")
        e(f"s_addc_u32 s{d+1}, s{ptr+1}, 0")
    else:
        e(f"s_mov_b32 s{d}, s{ptr}")
        e(f"s_mov_b32 s{d+1}, s{ptr+1}")
    e(f"s_mov_b32 s{d+2}, {nbytes}")
    e(f"s_mov_b32 s{d+3}, 0x00020000")

def wgmap(s_cg, s_rt, m):
    if m == "cols":
        e(f"s_and_b32 s{s_cg}, s2, 7")
        e(f"s_lshr_b32 s{s_rt}, s2, 3")
    elif m == "rows":
        e(f"s_and_b32 s{s_rt}, s2, 7")
        e(f"s_lshl_b32 s{s_rt}, s{s_rt}, 2")
        e(f"s_bfe_u32 s{s_cg}, s2, 0x20003")
        e(f"s_add_u32 s{s_rt}, s{s_rt}, s{s_cg}")
        e(f"s_lshr_b32 s{s_cg}, s2, 5")
    elif m == "4x2":
        e(f"s_and_b32 s{s_rt}, s2, 3")
        e(f"s_lshl_b32 s{s_rt}, s{s_rt}, 3")
        e(f"s_bfe_u32 s{s_cg}, s2, 0x30003")
        e(f"s_add_u32 s{s_rt}, s{s_rt}, s{s_cg}")
        e(f"s_bfe_u32 s{s_cg}, s2, 0x10002")
        e(f"s_lshl_b32 s{s_cg}, s{s_cg}, 2")
        e(f"s_lshr_b32 s100, s2, 6")
        e(f"s_add_u32 s{s_cg}, s{s_cg}, s100")
    elif m == "2d":
        e(f"s_and_b32 s{s_rt}, s2, 1")
        e(f"s_lshl_b32 s{s_rt}, s{s_rt}, 4")
        e(f"s_bfe_u32 s{s_cg}, s2, 0x40003")
        e(f"s_add_u32 s{s_rt}, s{s_rt}, s{s_cg}")
        e(f"s_bfe_u32 s{s_cg}, s2, 0x20001")
        e(f"s_lshl_b32 s{s_cg}, s{s_cg}, 1")
        e(f"s_lshr_b32 s100, s2, 7")
        e(f"s_add_u32 s{s_cg}, s{s_cg}, s100")

import os
STAMP = os.environ.get("STAMP", "")
DFL = os.environ.get("DFL", "")
PDL = int(os.environ.get("PDL", "3"))
NST = [0]
def stamp(kn):
    if STAMP != kn: return
    i = NST[0]; NST[0] += 1
    e(f"s_memtime s[{70+2*i}:{71+2*i}]")
def stamp_out(kn, wg=37):
    if STAMP != kn: return
    e("s_waitcnt lgkmcnt(0) vmcnt(0)")
    e(f"s_cmp_lg_u32 s2, {wg}")
    e(f"s_cbranch_scc1 {kn}_nost")
    e("s_load_dwordx2 s[96:97], s[0:1], 64")
    e("v_lshrrev_b32 v1, 6, v0")
    e("v_lshlrev_b32 v1, 5, v1")
    e("s_waitcnt lgkmcnt(0)")
    for i in range(min(8, NST[0])):
        e(f"s_sub_u32 s98, s{70+2*i}, s70")
        e(f"v_mov_b32 v2, s98")
        e(f"global_store_dword v1, v2, s[96:97] offset:{4*i}")
    lab(f"{kn}_nost")

def capture(fn, *a):
    global L
    old = L; L = []
    fn(*a)
    r = L; L = old
    return r
def chunks_of(lines):
    out = []; i = 0
    while i < len(lines):
        if "m0" in lines[i]:
            out.append(lines[i:i+3]); i += 3
        else:
            out.append([lines[i]]); i += 1
    return out
def interleave(A, B):
    global L
    n = len(A); m = len(B); j = 0
    for i, a in enumerate(A):
        L.append(a)
        tgt = (i + 1) * m // n
        while j < tgt:
            L += B[j]; j += 1
    while j < m:
        L += B[j]; j += 1

def header(name):
    L.append(".text")
    L.append(f".globl {name}")
    L.append(".p2align 8")
    L.append(f".type {name},@function")
    lab(name)

for p in range(768):
    assert (p * 2731) >> 16 == p // 24

def gen_ln_gemm(mode):
    qkv = mode == "qkv"
    name = "k_qkv_kernel" if qkv else "k_gu_kernel"
    MAPMODE = MAPS[mode]
    header(name)
    R = 4; S = 8 if qkv else 16
    WROW = 3072 if qkv else 2752
    KADV = (64 if qkv else 32) * WROW
    XB = 0; WB = 65536; SLOT = 24576
    XR = 176; RS = 208
    sX, sW, sO = 8, 12, 16
    s_wave, s_cg, s_rt, s_wm, s_wn, s_m0, s_k, s_t, s_t2 = 20, 21, 22, 23, 24, 25, 26, 27, 28
    e(f"s_cmp_ge_u32 s2, 256")
    e(f"s_cbranch_scc1 {name}_done")
    stamp(name)
    e("s_load_dwordx4 s[32:35], s[0:1], 0")
    e("s_load_dwordx4 s[36:39], s[0:1], 32")
    e("s_load_dwordx2 s[40:41], s[0:1], 72")
    e("v_lshrrev_b32 v1, 6, v0")
    e("v_and_b32 v2, 63, v0")
    e("s_nop 0")
    e(f"v_readfirstlane_b32 s{s_wave}, v1")
    wgmap(s_cg, s_rt, MAPMODE)
    e(f"s_lshr_b32 s{s_wm}, s{s_wave}, 2")
    e(f"s_and_b32 s{s_wn}, s{s_wave}, 3")
    e("s_waitcnt lgkmcnt(0)")
    if qkv:
        srd(sX, 32, 2048 * 1024)
        srd(sW, 34, 512 * 3072)
        srd(sO, 40, 6 << 20)
    else:
        srd(sX, 40, 2048 * 1024, WS_H)
        e(f"s_cmp_eq_u32 s{s_wm}, 0")
        e("s_cselect_b32 s42, s36, s38")
        e("s_cselect_b32 s43, s37, s39")
        srd(sW, 42, 512 * 2752)
        srd(sO, 40, 2048 * 2752, WS_HM)
    TP = os.environ.get("TP", "1") == "1" and qkv
    if TP:
        e("s_lshr_b32 s44, s2, 3")
        e("s_lshl_b32 s44, s44, 3")
        e(f"s_add_u32 s44, s44, s{s_wave}")
        e("s_mul_i32 s44, s44, 6144")
        e("s_bfe_u32 s45, s2, 0x10002")
        e("s_mul_i32 s45, s45, 1536")
        e("s_add_u32 s44, s44, s45")
        e("v_lshlrev_b32 v3, 4, v2")
        e("v_cmp_gt_u32 vcc, 32, v2")
        e("v_mov_b32 v4, 2560")
        e("v_mov_b32 v5, 1024")
        e("v_cndmask_b32 v4, v4, v5, vcc")
        e("v_add_u32 v4, v4, v3")
        e(f"buffer_load_dwordx4 v[224:227], v3, {sr(sW,4)}, s44 offen")
        e(f"buffer_load_dwordx4 v[228:231], v4, {sr(sW,4)}, s44 offen")
        e(f"buffer_load_dwordx4 v[232:235], v3, {sr(sW,4)}, s44 offen offset:3584")
    e("v_lshrrev_b32 v4, 3, v2")
    e("v_and_b32 v5, 7, v2")
    e(f"s_lshl_b32 s{s_t}, s{s_wave}, 3")
    e(f"v_add_u32 v6, s{s_t}, v4")
    e("v_lshlrev_b32 v3, 10, v6")
    e("v_lshl_add_u32 v3, v5, 4, v3")
    e(f"s_lshl_b32 s{s_t}, s{s_rt}, 16")
    for i in range(8):
        e(f"buffer_load_dwordx4 {vr(XR+4*i,4)}, v3, {sr(sX,4)}, s{s_t} offen offset:{i*128}")
    e(f"s_mul_i32 s{s_t2}, s{s_wn}, 192")
    for i in range(3):
        e(f"v_add_u32 v11, s{s_t2}, v2")
        if i: e(f"v_add_u32 v11, {i*64}, v11")
        e("v_mul_u32_u24 v12, 2731, v11")
        e("v_lshrrev_b32 v12, 16, v12")
        e("v_mul_u32_u24 v13, 24, v12")
        e("v_sub_u32 v13, v11, v13")
        e("v_bfe_u32 v14, v12, 1, 1")
        e("v_bfe_u32 v15, v12, 3, 1")
        e("v_lshl_or_b32 v14, v15, 1, v14")
        e("v_lshlrev_b32 v14, 1, v14")
        if not os.environ.get("NOSWZ"): e("v_xor_b32 v13, v13, v14")
        e(f"s_mov_b32 s{s_t}, {WROW}")
        e(f"v_mul_lo_u32 v12, v12, s{s_t}")
        e(f"v_lshl_add_u32 v{8+i}, v13, 4, v12")
    e(f"s_mul_i32 s{s_k}, s{s_cg}, 384")
    if qkv:
        e(f"s_mul_i32 s{s_t}, s{s_wm}, {32*3072}")
        e(f"s_add_u32 s{s_k}, s{s_k}, s{s_t}")
    e(f"s_mul_i32 s{s_m0}, s{s_wave}, 3072")
    e(f"s_add_u32 s{s_m0}, s{s_m0}, {WB}")
    def dma(st):
        slot = st % R
        for i in range(3):
            e(f"s_add_u32 m0, s{s_m0}, {slot*SLOT + i*1024}")
            e("s_nop 0")
            e(f"buffer_load_dwordx4 v{8+i}, {sr(sW,4)}, s{s_k} offen {DFL} lds")
        e(f"s_add_u32 s{s_k}, s{s_k}, {KADV}")
    dma(0)
    e("v_mov_b32 v28, v4"); e("v_mov_b32 v29, v5"); e("v_mov_b32 v30, v6")
    e("v_and_b32 v4, 15, v2")
    e("v_lshrrev_b32 v5, 4, v2")
    e(f"s_lshl_b32 s{s_t}, s{s_wm}, 15")
    e("v_lshlrev_b32 v6, 10, v4")
    e(f"v_add_u32 v6, s{s_t}, v6")
    e("v_and_b32 v7, 3, v4")
    e("v_xor_b32 v7, v7, v5")
    e("v_lshrrev_b32 v11, 2, v4")
    for k in range(4):
        e(f"v_xor_b32 v12, {k}, v11")
        e("v_lshl_or_b32 v12, v12, 2, v7")
        e(f"v_lshl_add_u32 v{24+k}, v12, 4, v6")
    e("v_lshrrev_b32 v11, 2, v4")
    e("v_and_b32 v12, 3, v4")
    e("v_lshl_add_u32 v13, v5, 3, v11")
    e("v_mul_u32_u24 v13, 384, v13")
    e("v_lshl_add_u32 v13, v12, 3, v13")
    e(f"v_add_u32 v13, {WB}, v13")
    e("v_lshrrev_b32 v14, 1, v11")
    e("v_and_b32 v15, 1, v5")
    e("v_lshl_or_b32 v14, v15, 1, v14")
    e(f"s_mul_i32 s{s_t}, s{s_wn}, 3")
    for j in range(3):
        e(f"s_add_u32 s{s_t2}, s{s_t}, {j}")
        e(f"v_xor_b32 v15, s{s_t2}, v14")
        e(f"v_lshl_add_u32 v{16+j}, v15, 5, v13")
        e(f"v_add_u32 v{19+j}, {2*SLOT}, v{16+j}")
    ACC = 128
    NACC = 6 if qkv else 12
    for i in range(NACC * 4):
        e(f"v_mov_b32 v{ACC+i}, 0")
    e(f"s_waitcnt vmcnt(3)")
    stamp(name)
    e(f"s_mov_b32 s31, 0x3f803f80")
    e(f"v_dot2_f32_bf16 v{RS+6}, v{XR}, s31, 0")
    e(f"v_dot2_f32_bf16 v{RS+7}, v{XR+1}, s31, 0")
    e(f"v_dot2_f32_bf16 v{RS+8}, v{XR}, v{XR}, 0")
    e(f"v_dot2_f32_bf16 v{RS+9}, v{XR+1}, v{XR+1}, 0")
    for i in range(2, 32, 2):
        e(f"v_dot2_f32_bf16 v{RS+6}, v{XR+i}, s31, v{RS+6}")
        e(f"v_dot2_f32_bf16 v{RS+7}, v{XR+i+1}, s31, v{RS+7}")
        e(f"v_dot2_f32_bf16 v{RS+8}, v{XR+i}, v{XR+i}, v{RS+8}")
        e(f"v_dot2_f32_bf16 v{RS+9}, v{XR+i+1}, v{XR+i+1}, v{RS+9}")
    e(f"s_nop 3")
    e(f"v_add_f32 v{RS+6}, v{RS+6}, v{RS+7}")
    e(f"v_add_f32 v{RS+8}, v{RS+8}, v{RS+9}")
    for ctl in ("quad_perm:[1,0,3,2]", "quad_perm:[2,3,0,1]", "row_half_mirror"):
        e(f"s_nop 1")
        e(f"v_add_f32_dpp v{RS+6}, v{RS+6}, v{RS+6} {ctl} row_mask:0xf bank_mask:0xf")
        e(f"v_add_f32_dpp v{RS+8}, v{RS+8}, v{RS+8} {ctl} row_mask:0xf bank_mask:0xf")
    dma(1)
    e(f"v_mul_f32 v{RS+6}, 0x3b000000, v{RS+6}")
    e(f"v_mul_f32 v{RS+8}, 0x3b000000, v{RS+8}")
    e(f"v_fma_f32 v{RS+8}, -v{RS+6}, v{RS+6}, v{RS+8}")
    e(f"v_max_f32 v{RS+8}, 0, v{RS+8}")
    e(f"v_add_f32 v{RS+8}, 0x3727c5ac, v{RS+8}")
    e(f"v_rsq_f32 v{RS}, v{RS+8}")
    e(f"s_nop 0")
    e(f"v_mul_f32 v{RS+1}, v{RS+6}, v{RS}")
    e(f"v_sub_f32 v{RS+1}, 0, v{RS+1}")
    e(f"v_xor_b32 v{RS+10}, v28, v29")
    e(f"s_and_b32 s{s_t}, s{s_wave}, 1")
    e(f"s_lshl_b32 s{s_t}, s{s_t}, 3")
    e(f"v_add_u32 v{RS+11}, s{s_t}, v{RS+10}")
    e(f"s_xor_b32 s{s_t}, s{s_t}, 8")
    e(f"v_add_u32 v{RS+12}, s{s_t}, v{RS+10}")
    e(f"v_lshlrev_b32 v{RS+2}, 10, v30")
    e(f"v_lshl_add_u32 v{RS+3}, v{RS+12}, 4, v{RS+2}")
    e(f"v_lshl_add_u32 v{RS+2}, v{RS+11}, 4, v{RS+2}")
    def norm(i):
        for r in range(4):
            x = XR + 4*i + r
            e(f"v_lshlrev_b32 v{RS+4}, 16, v{x}")
            e(f"v_and_b32 v{RS+5}, 0xffff0000, v{x}")
            e(f"v_fma_f32 v{RS+4}, v{RS+4}, v{RS}, v{RS+1}")
            e(f"v_fma_f32 v{RS+5}, v{RS+5}, v{RS}, v{RS+1}")
            e(f"v_cvt_pk_bf16_f32 v{x}, v{RS+4}, v{RS+5}")
        e(f"ds_write_b128 v{RS+2+(i&1)}, {vr(XR+4*i,4)} offset:{XB+(i>>1)*256}")
    norm(0); norm(1)
    stamp(name)
    FS = [32, 80]
    def reads(st):
        base = FS[st & 1]; slot = st % R
        wa = 16 if slot < 2 else 19; so = (slot & 1) * SLOT
        nk = 2 if qkv else 1
        for kk in range(nk):
            ks = st * nk + kk
            for mt in range(2):
                e(f"ds_read_b128 {vr(base+(kk*2+mt)*4,4)}, v{24+(ks&3)} offset:{XB+(ks>>2)*256+mt*16384}")
        for b in range(2):
            for j in range(3):
                for t2 in range(2):
                    e(f"ds_read_b64_tr_b16 {vr(base+16+(b*3+j)*4+t2*2,2)}, v{wa+j} offset:{so+b*12288+t2*1536}")
    def mfmas(st):
        base = FS[st & 1]
        for b in range(2):
            for j in range(3):
                for mt in range(2):
                    if qkv: a = ACC + (mt*3+j)*4; x = base + (b*2+mt)*4
                    else:   a = ACC + ((b*2+mt)*3+j)*4; x = base + mt*4
                    e(f"v_mfma_f32_16x16x32_bf16 {vr(a,4)}, {vr(base+16+(b*3+j)*4,4)}, {vr(x,4)}, {vr(a,4)}")
    issued = 2
    for st in range(S):
        e(f"s_waitcnt vmcnt({(issued-1-st)*3}) lgkmcnt(0)")
        e("s_barrier")
        if st in (0, 1, 2, 4, 6, S-1): stamp(name)
        B = chunks_of(capture(reads, st)) if not (os.environ.get("NORD") and st > 1) else []
        while issued < S and issued <= st + PDL:
            if not os.environ.get("NODMA"): B += chunks_of(capture(dma, issued))
            issued += 1
        if qkv:
            if st + 2 < 8: B += chunks_of(capture(norm, st + 2))
        else:
            if st % 2 == 0 and st // 2 + 2 < 8: B += chunks_of(capture(norm, st // 2 + 2))
        if st >= 1: interleave(capture(mfmas, st - 1), B)
        else:
            for c in B: L.extend(c)
    e("s_waitcnt lgkmcnt(0)")
    mfmas(S - 1)
    e("s_barrier")
    stamp(name)
    e("v_lshlrev_b32 v6, 5, v4")
    e("v_lshl_add_u32 v6, v5, 3, v6")
    if qkv:
        e(f"s_lshl_b32 s{s_t}, s{s_wave}, 9")
        e(f"v_add_u32 v7, s{s_t}, v6")
        e("v_lshrrev_b32 v11, 2, v4")
        e("v_and_b32 v12, 3, v4")
        e("v_lshl_add_u32 v11, v5, 2, v11")
        e("v_lshlrev_b32 v11, 5, v11")
        e("v_lshl_add_u32 v11, v12, 3, v11")
        e(f"v_add_u32 v11, s{s_t}, v11")
        e(f"s_mul_i32 s29, s{s_cg}, 12")
        e(f"s_mul_i32 s{s_t}, s{s_wn}, 3")
        e(f"s_add_u32 s29, s29, s{s_t}")
        e(f"s_lshl_b32 s30, s{s_rt}, 2")
        e(f"s_lshl_b32 s{s_t}, s{s_wm}, 1")
        e(f"s_add_u32 s30, s30, s{s_t}")
        e("s_nop 4")
        for j in range(3):
            for mt in range(2):
                a = ACC + (mt*3+j)*4
                e(f"v_cvt_pk_bf16_f32 v32, v{a}, v{a+1}")
                e(f"v_cvt_pk_bf16_f32 v33, v{a+2}, v{a+3}")
                e(f"s_add_u32 s{s_t}, s29, {j}")
                e(f"s_add_u32 s{s_t2}, s30, {mt}")
                e(f"s_cmp_ge_u32 s{s_t}, 64")
                e(f"s_cbranch_scc1 {name}_v{j}{mt}")
                e(f"s_lshl_b32 s{s_t}, s{s_t}, 16")
                e(f"s_lshl_b32 s{s_t2}, s{s_t2}, 9")
                e(f"s_add_u32 s{s_t}, s{s_t}, s{s_t2}")
                e(f"buffer_store_dwordx2 v[32:33], v6, {sr(sO,4)}, s{s_t} offen")
                e(f"s_branch {name}_n{j}{mt}")
                lab(f"{name}_v{j}{mt}")
                e("ds_write_b64 v7, v[32:33]")
                e("s_waitcnt lgkmcnt(0)")
                e("ds_read_b64_tr_b16 v[34:35], v11")
                e(f"s_sub_u32 s{s_t}, s{s_t}, 64")
                e(f"s_lshl_b32 s{s_t}, s{s_t}, 16")
                e(f"s_lshl_b32 s{s_t2}, s{s_t2}, 9")
                e(f"s_add_u32 s{s_t}, s{s_t}, s{s_t2}")
                e(f"s_add_u32 s{s_t}, s{s_t}, {WS_VT}")
                e("s_waitcnt lgkmcnt(0)")
                e(f"buffer_store_dwordx2 v[34:35], v6, {sr(sO,4)}, s{s_t} offen")
                lab(f"{name}_n{j}{mt}")
                e("s_nop 1")
    else:
        e(f"s_lshl_b32 s{s_t}, s{s_rt}, 6")
        e(f"s_lshl_b32 s{s_t2}, s{s_wm}, 5")
        e(f"s_add_u32 s{s_t}, s{s_t}, s{s_t2}")
        e(f"v_add_u32 v7, s{s_t}, v4")
        e(f"s_mov_b32 s{s_t}, 2752")
        e(f"v_mul_lo_u32 v7, v7, s{s_t}")
        e("v_lshl_add_u32 v7, v5, 3, v7")
        e(f"s_mul_i32 s29, s{s_cg}, 12")
        e(f"s_mul_i32 s{s_t}, s{s_wn}, 3")
        e(f"s_add_u32 s29, s29, s{s_t}")
        e("s_mov_b32 s30, 0xbfb8aa3b")
        e("s_nop 4")
        for j in range(3):
            e(f"s_add_u32 s{s_t}, s29, {j}")
            e(f"s_cmp_ge_u32 s{s_t}, 86")
            e(f"s_cbranch_scc1 {name}_skip{j}")
            e(f"s_lshl_b32 s{s_t}, s{s_t}, 5")
            for mt in range(2):
                g = ACC + (mt*3+j)*4; u = ACC + ((2+mt)*3+j)*4
                for r in range(4): e(f"v_mul_f32 v{32+r}, s30, v{g+r}")
                for r in range(4): e(f"v_exp_f32 v{32+r}, v{32+r}")
                e("s_nop 0")
                for r in range(4): e(f"v_add_f32 v{32+r}, 1.0, v{32+r}")
                for r in range(4): e(f"v_rcp_f32 v{32+r}, v{32+r}")
                e("s_nop 0")
                for r in range(4): e(f"v_mul_f32 v{32+r}, v{32+r}, v{u+r}")
                e(f"v_cvt_pk_bf16_f32 v{36+2*mt}, v32, v33")
                e(f"v_cvt_pk_bf16_f32 v{37+2*mt}, v34, v35")
                e(f"buffer_store_dwordx2 {vr(36+2*mt,2)}, v7, {sr(sO,4)}, s{s_t} offen offset:0" if mt == 0 else
                  f"buffer_store_dwordx2 {vr(36+2*mt,2)}, v41, {sr(sO,4)}, s{s_t} offen")
                if mt == 0: e(f"v_add_u32 v41, {16*2752}, v7")
            e("s_nop 1")
            lab(f"{name}_skip{j}")
    stamp(name)
    stamp_out(name)
    lab(f"{name}_done")
    e("s_endpgm")
    return name, 256, 512, 163840, (236 if qkv else 224)

def gen_ln_gemm2(mode):
    qkv = mode == "qkv"
    name = "k_qkv_kernel" if qkv else "k_gu_kernel"
    MAPMODE = MAPS[mode]
    header(name)
    R = 4; S = 8 if qkv else 16
    WROW = 3072 if qkv else 2752
    KADV = (64 if qkv else 32) * WROW
    XB = 0; WB = 65536; SLOT = 24576
    XR = 176; RS = 208
    sX, sW, sO = 8, 12, 16
    s_wave, s_cg, s_rt, s_wm, s_wn, s_m0, s_k, s_t, s_t2 = 20, 21, 22, 23, 24, 25, 26, 27, 28
    e(f"s_cmp_ge_u32 s2, 256")
    e(f"s_cbranch_scc1 {name}_done")
    stamp(name)
    e("s_load_dwordx4 s[32:35], s[0:1], 0")
    e("s_load_dwordx4 s[36:39], s[0:1], 32")
    e("s_load_dwordx2 s[40:41], s[0:1], 72")
    e("v_lshrrev_b32 v1, 6, v0")
    e("v_and_b32 v2, 63, v0")
    e("s_nop 0")
    e(f"v_readfirstlane_b32 s{s_wave}, v1")
    wgmap(s_cg, s_rt, MAPMODE)
    e(f"s_lshr_b32 s{s_wm}, s{s_wave}, 2")
    e(f"s_and_b32 s{s_wn}, s{s_wave}, 3")
    e("s_waitcnt lgkmcnt(0)")
    if qkv:
        srd(sX, 32, 2048 * 1024)
        srd(sW, 34, 512 * 3072)
        srd(sO, 40, 6 << 20)
    else:
        srd(sX, 40, 2048 * 1024, WS_H)
        e(f"s_cmp_eq_u32 s{s_wm}, 0")
        e("s_cselect_b32 s42, s36, s38")
        e("s_cselect_b32 s43, s37, s39")
        srd(sW, 42, 512 * 2752)
        srd(sO, 40, 2048 * 2752, WS_HM)

    CS = 224; ONES = 236; WA1 = 240; XA = 246
    s_mx, s_kx = 44, 45
    seq = []
    for i in range(2):
        e(f"s_lshl_b32 s{s_t}, s{s_wave}, 7")
        e(f"v_add_u32 v12, s{s_t}, v2")
        if i: e("v_add_u32 v12, 64, v12")
        e("v_lshrrev_b32 v13, 4, v12")
        e("v_and_b32 v14, 15, v12")
        e("v_and_b32 v15, 15, v13")
        e("v_xor_b32 v14, v14, v15")
        e("v_lshlrev_b32 v13, 10, v13")
        e(f"v_lshl_add_u32 v{XA+i}, v14, 4, v13")
    e(f"s_lshl_b32 s{s_kx}, s{s_rt}, 16")
    e(f"s_lshl_b32 s{s_mx}, s{s_wave}, 11")
    def dmax(g):
        for i in range(2):
            e(f"s_add_u32 m0, s{s_mx}, {XB + g*16384 + i*1024}")
            e("s_nop 0")
            e(f"buffer_load_dwordx4 v{XA+i}, {sr(sX,4)}, s{s_kx} offen lds")
        e(f"s_add_u32 s{s_kx}, s{s_kx}, 256")
        seq.extend([("X", g)] * 2)
    dmax(0)
    e(f"s_mul_i32 s{s_t2}, s{s_wn}, 192")
    for i in range(3):
        e(f"v_add_u32 v11, s{s_t2}, v2")
        if i: e(f"v_add_u32 v11, {i*64}, v11")
        e("v_mul_u32_u24 v12, 2731, v11")
        e("v_lshrrev_b32 v12, 16, v12")
        e("v_mul_u32_u24 v13, 24, v12")
        e("v_sub_u32 v13, v11, v13")
        e("v_bfe_u32 v14, v12, 1, 1")
        e("v_bfe_u32 v15, v12, 3, 1")
        e("v_lshl_or_b32 v14, v15, 1, v14")
        e("v_lshlrev_b32 v14, 1, v14")
        e("v_xor_b32 v13, v13, v14")
        e(f"s_mov_b32 s{s_t}, {WROW}")
        e(f"v_mul_lo_u32 v12, v12, s{s_t}")
        e(f"v_lshl_add_u32 v{8+i}, v13, 4, v12")
    e(f"s_mul_i32 s{s_k}, s{s_cg}, 384")
    if qkv:
        e(f"s_mul_i32 s{s_t}, s{s_wm}, {32*3072}")
        e(f"s_add_u32 s{s_k}, s{s_k}, s{s_t}")
    e(f"s_mul_i32 s{s_m0}, s{s_wave}, 3072")
    e(f"s_add_u32 s{s_m0}, s{s_m0}, {WB}")
    def dma(st):
        slot = st % R
        for i in range(3):
            e(f"s_add_u32 m0, s{s_m0}, {slot*SLOT + i*1024}")
            e("s_nop 0")
            e(f"buffer_load_dwordx4 v{8+i}, {sr(sW,4)}, s{s_k} offen lds")
        e(f"s_add_u32 s{s_k}, s{s_k}, {KADV}")
        seq.extend([("W", st)] * 3)
    XS = os.environ.get("XS", "1") == "1"
    dma(0); dma(1)
    if not XS: dmax(1); dmax(2); dmax(3)
    e("v_lshrrev_b32 v4, 3, v2")
    e("v_and_b32 v5, 7, v2")
    e(f"s_lshl_b32 s{s_t}, s{s_wave}, 3")
    e(f"v_add_u32 v6, s{s_t}, v4")
    e(f"v_lshlrev_b32 v{RS+2}, 8, v6")
    e(f"v_lshl_add_u32 v{RS+2}, v5, 4, v{RS+2}")
    e(f"v_lshlrev_b32 v{RS+3}, 3, v6")
    e(f"v_add_u32 v{RS+3}, {WB}, v{RS+3}")
    e(f"s_mul_i32 s{s_t}, s{s_wave}, 3072")
    e(f"s_add_u32 s{s_t}, s{s_t}, {WB+1024}")
    e(f"v_lshl_add_u32 v{RS+4}, v2, 4, s{s_t}")
    e(f"s_xor_b32 s{s_t}, s{s_wave}, 4")
    e(f"s_mul_i32 s{s_t}, s{s_t}, 3072")
    e(f"s_add_u32 s{s_t}, s{s_t}, {WB+1024}")
    e(f"v_lshl_add_u32 v{RS+10}, v2, 4, s{s_t}")
    e("v_and_b32 v4, 15, v2")
    e("v_lshrrev_b32 v5, 4, v2")
    e(f"s_lshl_b32 s{s_t}, s{s_wm}, 8")
    e(f"s_add_u32 s{s_t}, s{s_t}, {WB}")
    e(f"v_lshl_add_u32 v{RS+5}, v4, 3, s{s_t}")
    e(f"s_lshl_b32 s{s_t}, s{s_wm}, 13")
    e("v_lshlrev_b32 v6, 8, v4")
    e(f"v_add_u32 v6, s{s_t}, v6")
    e("v_and_b32 v7, 3, v4")
    e("v_xor_b32 v7, v7, v5")
    e("v_lshrrev_b32 v11, 2, v4")
    for k in range(4):
        if qkv:
            e(f"s_xor_b32 s{s_t}, s{s_wm}, {k}")
            e(f"v_xor_b32 v12, s{s_t}, v11")
        else:
            e(f"v_xor_b32 v12, {k}, v11")
        e("v_lshl_or_b32 v12, v12, 2, v7")
        e(f"v_lshl_add_u32 v{24+k}, v12, 4, v6")
    e("v_lshrrev_b32 v11, 2, v4")
    e("v_and_b32 v12, 3, v4")
    e("v_lshl_add_u32 v13, v5, 3, v11")
    e("v_mul_u32_u24 v13, 384, v13")
    e("v_lshl_add_u32 v13, v12, 3, v13")
    e(f"v_add_u32 v13, {WB}, v13")
    e("v_lshrrev_b32 v14, 1, v11")
    e("v_and_b32 v15, 1, v5")
    e("v_lshl_or_b32 v14, v15, 1, v14")
    e(f"s_mul_i32 s{s_t}, s{s_wn}, 3")
    e(f"s_mul_i32 s29, s{s_wm}, 12288")
    e(f"s_sub_u32 s30, 12288, s29")
    for j in range(3):
        e(f"s_add_u32 s{s_t2}, s{s_t}, {j}")
        e(f"v_xor_b32 v15, s{s_t2}, v14")
        e(f"v_lshl_add_u32 v15, v15, 5, v13")
        e(f"v_add_u32 v{16+j}, s29, v15")
        e(f"v_add_u32 v{19+j}, {2*SLOT}, v{16+j}")
        e(f"v_add_u32 v{WA1+j}, s30, v15")
        e(f"v_add_u32 v{WA1+3+j}, {2*SLOT}, v{WA1+j}")
    ACC = 128
    NACC = 6 if qkv else 12
    for i in range(NACC * 4):
        e(f"v_mov_b32 v{ACC+i}, 0")
    for i in range(12): e(f"v_mov_b32 v{CS+i}, 0")
    for i in range(4): e(f"v_mov_b32 v{ONES+i}, 0x3f803f80")
    e(f"s_mov_b32 s31, 0x3f803f80")
    stamp(name)
    def stat_reads():
        for i in range(8):
            e(f"ds_read_b128 {vr(XR+4*i,4)}, v{RS+2} offset:{XB+(i>>1)*16384+(i&1)*128}")
    SC = []
    def c(*ls): SC.append(["    " + l for l in ls])
    c(f"v_dot2_f32_bf16 v{RS+6}, v{XR}, s31, 0")
    c(f"v_dot2_f32_bf16 v{RS+7}, v{XR+1}, s31, 0")
    c(f"v_dot2_f32_bf16 v{RS+8}, v{XR}, v{XR}, 0")
    c(f"v_dot2_f32_bf16 v{RS+9}, v{XR+1}, v{XR+1}, 0")
    for i in range(2, 32, 2):
        c(f"v_dot2_f32_bf16 v{RS+6}, v{XR+i}, s31, v{RS+6}")
        c(f"v_dot2_f32_bf16 v{RS+7}, v{XR+i+1}, s31, v{RS+7}")
        c(f"v_dot2_f32_bf16 v{RS+8}, v{XR+i}, v{XR+i}, v{RS+8}")
        c(f"v_dot2_f32_bf16 v{RS+9}, v{XR+i+1}, v{XR+i+1}, v{RS+9}")
    c("s_nop 3", f"v_add_f32 v{RS+6}, v{RS+6}, v{RS+7}", f"v_add_f32 v{RS+8}, v{RS+8}, v{RS+9}")
    for ctl in ("quad_perm:[1,0,3,2]", "quad_perm:[2,3,0,1]", "row_half_mirror"):
        c("s_nop 1",
          f"v_add_f32_dpp v{RS+6}, v{RS+6}, v{RS+6} {ctl} row_mask:0xf bank_mask:0xf",
          f"v_add_f32_dpp v{RS+8}, v{RS+8}, v{RS+8} {ctl} row_mask:0xf bank_mask:0xf")
    c(f"v_mul_f32 v{RS+6}, 0x3b000000, v{RS+6}",
      f"v_mul_f32 v{RS+8}, 0x3b000000, v{RS+8}",
      f"v_fma_f32 v{RS+8}, -v{RS+6}, v{RS+6}, v{RS+8}",
      f"v_max_f32 v{RS+8}, 0, v{RS+8}",
      f"v_add_f32 v{RS+8}, 0x3727c5ac, v{RS+8}",
      f"v_rsq_f32 v{RS}, v{RS+8}",
      "s_nop 0",
      f"v_mul_f32 v{RS+1}, v{RS+6}, v{RS}",
      f"v_sub_f32 v{RS+1}, 0, v{RS+1}")
    NSC = len(SC)
    FS = [32, 80]
    def reads(st):
        base = FS[st & 1]; slot = st % R
        hi = 0 if slot < 2 else 3; so = (slot & 1) * SLOT
        nk = 2 if qkv else 1
        for kk in range(nk):
            ks = st * nk + kk
            for mt in range(2):
                e(f"ds_read_b128 {vr(base+(kk*2+mt)*4,4)}, v{24+(ks&3)} offset:{XB+(ks>>2)*16384+mt*4096}")
        for b in range(2):
            for j in range(3):
                wa = (16 if b == 0 else WA1) + hi + j
                for t2 in range(2):
                    e(f"ds_read_b64_tr_b16 {vr(base+16+(b*3+j)*4+t2*2,2)}, v{wa} offset:{so+t2*1536}")
    def mfmas(st):
        base = FS[st & 1]
        for b in range(2):
            for j in range(3):
                for mt in range(2):
                    if qkv: a = ACC + (mt*3+j)*4; x = base + (b*2+mt)*4
                    else:   a = ACC + ((b*2+mt)*3+j)*4; x = base + mt*4
                    e(f"v_mfma_f32_16x16x32_bf16 {vr(a,4)}, {vr(base+16+(b*3+j)*4,4)}, {vr(x,4)}, {vr(a,4)}")
                if b == 0:
                    e(f"v_mfma_f32_16x16x32_bf16 {vr(CS+4*j,4)}, {vr(base+16+j*4,4)}, {vr(ONES,4)}, {vr(CS+4*j,4)}")
    grp = (lambda st: st >> 1) if qkv else (lambda st: st >> 2)
    issued = 2
    ST0 = int(os.environ.get("ST0", "4" if XS else "2"))
    NSS = 3
    for st in range(S):
        tags = {("W", st), ("X", grp(st))}
        if st == ST0: tags |= {("X", g) for g in range(4)}
        last = max(i for i, t in enumerate(seq) if t in tags)
        e(f"s_waitcnt vmcnt({len(seq)-1-last}) lgkmcnt(0)")
        e("s_barrier")
        if st in (0, 1, 2, 4, 6, S-1): stamp(name)
        B = chunks_of(capture(reads, st))
        while issued < S and issued <= st + PDL:
            B += chunks_of(capture(dma, issued))
            issued += 1
        if XS and st < 3: B += chunks_of(capture(dmax, st + 1))
        if st == ST0: B += chunks_of(capture(stat_reads))
        if ST0 < st <= ST0 + NSS:
            q = st - ST0 - 1
            B += SC[q*NSC//NSS:(q+1)*NSC//NSS]
        if st >= 1: interleave(capture(mfmas, st - 1), B)
        else:
            for ch in B: L.extend(ch)
    e("s_waitcnt lgkmcnt(0)")
    mfmas(S - 1)
    e("s_barrier")
    stamp(name)
    e("s_nop 7"); e("s_nop 3")
    e(f"ds_write_b64 v{RS+3}, v[{RS}:{RS+1}]")
    for j in range(3):
        e(f"ds_write_b128 v{RS+4}, {vr(CS+4*j,4)} offset:{j*1024}")
    e("s_waitcnt lgkmcnt(0)")
    e("s_barrier")
    e(f"ds_read_b64 v[32:33], v{RS+5}")
    e(f"ds_read_b64 v[34:35], v{RS+5} offset:128")
    for j in range(3):
        e(f"ds_read_b128 {vr(36+4*j,4)}, v{RS+10} offset:{j*1024}")
    e("s_waitcnt lgkmcnt(0)")
    if qkv:
        for p in range(6):
            e(f"v_pk_add_f32 {vr(CS+2*p,2)}, {vr(CS+2*p,2)}, {vr(36+2*p,2)}")
    tn = 0
    for b in range(1 if qkv else 2):
        for mt in range(2):
            for j in range(3):
                a = (ACC + (mt*3+j)*4) if qkv else (ACC + ((b*2+mt)*3+j)*4)
                cc = (CS if b == 0 else 36) + 4*j
                for p in range(2):
                    t = 48 + 2*(tn % 4); tn += 1
                    e(f"v_pk_mul_f32 {vr(t,2)}, {vr(cc+2*p,2)}, {vr(32+2*mt,2)} op_sel:[0,1] op_sel_hi:[1,1]")
                    e(f"v_pk_fma_f32 {vr(a+2*p,2)}, {vr(a+2*p,2)}, {vr(32+2*mt,2)}, {vr(t,2)} op_sel_hi:[1,0,1]")
    if not qkv:
        e(f"s_cmp_eq_u32 s{s_wm}, 0")
        e(f"s_cbranch_scc1 {name}_nosw")
        for i in range(24):
            e(f"v_swap_b32 v{ACC+i}, v{ACC+24+i}")
        lab(f"{name}_nosw")
    e("v_lshlrev_b32 v6, 5, v4")
    e("v_lshl_add_u32 v6, v5, 3, v6")
    if qkv:
        e(f"s_lshl_b32 s{s_t}, s{s_wave}, 9")
        e(f"v_add_u32 v7, s{s_t}, v6")
        e("v_lshrrev_b32 v11, 2, v4")
        e("v_and_b32 v12, 3, v4")
        e("v_lshl_add_u32 v11, v5, 2, v11")
        e("v_lshlrev_b32 v11, 5, v11")
        e("v_lshl_add_u32 v11, v12, 3, v11")
        e(f"v_add_u32 v11, s{s_t}, v11")
        e(f"s_mul_i32 s29, s{s_cg}, 12")
        e(f"s_mul_i32 s{s_t}, s{s_wn}, 3")
        e(f"s_add_u32 s29, s29, s{s_t}")
        e(f"s_lshl_b32 s30, s{s_rt}, 2")
        e(f"s_lshl_b32 s{s_t}, s{s_wm}, 1")
        e(f"s_add_u32 s30, s30, s{s_t}")
        e("s_nop 4")
        for j in range(3):
            for mt in range(2):
                a = ACC + (mt*3+j)*4
                e(f"v_cvt_pk_bf16_f32 v32, v{a}, v{a+1}")
                e(f"v_cvt_pk_bf16_f32 v33, v{a+2}, v{a+3}")
                e(f"s_add_u32 s{s_t}, s29, {j}")
                e(f"s_add_u32 s{s_t2}, s30, {mt}")
                e(f"s_cmp_ge_u32 s{s_t}, 64")
                e(f"s_cbranch_scc1 {name}_v{j}{mt}")
                e(f"s_lshl_b32 s{s_t}, s{s_t}, 16")
                e(f"s_lshl_b32 s{s_t2}, s{s_t2}, 9")
                e(f"s_add_u32 s{s_t}, s{s_t}, s{s_t2}")
                e(f"buffer_store_dwordx2 v[32:33], v6, {sr(sO,4)}, s{s_t} offen")
                e(f"s_branch {name}_n{j}{mt}")
                lab(f"{name}_v{j}{mt}")
                e("ds_write_b64 v7, v[32:33]")
                e("s_waitcnt lgkmcnt(0)")
                e("ds_read_b64_tr_b16 v[34:35], v11")
                e(f"s_sub_u32 s{s_t}, s{s_t}, 64")
                e(f"s_lshl_b32 s{s_t}, s{s_t}, 16")
                e(f"s_lshl_b32 s{s_t2}, s{s_t2}, 9")
                e(f"s_add_u32 s{s_t}, s{s_t}, s{s_t2}")
                e(f"s_add_u32 s{s_t}, s{s_t}, {WS_VT}")
                e("s_waitcnt lgkmcnt(0)")
                e(f"buffer_store_dwordx2 v[34:35], v6, {sr(sO,4)}, s{s_t} offen")
                lab(f"{name}_n{j}{mt}")
                e("s_nop 1")
    else:
        e(f"s_lshl_b32 s{s_t}, s{s_rt}, 6")
        e(f"s_lshl_b32 s{s_t2}, s{s_wm}, 5")
        e(f"s_add_u32 s{s_t}, s{s_t}, s{s_t2}")
        e(f"v_add_u32 v7, s{s_t}, v4")
        e(f"s_mov_b32 s{s_t}, 2752")
        e(f"v_mul_lo_u32 v7, v7, s{s_t}")
        e("v_lshl_add_u32 v7, v5, 3, v7")
        e(f"s_mul_i32 s29, s{s_cg}, 12")
        e(f"s_mul_i32 s{s_t}, s{s_wn}, 3")
        e(f"s_add_u32 s29, s29, s{s_t}")
        e("s_mov_b32 s30, 0xbfb8aa3b")
        e("s_nop 4")
        for j in range(3):
            e(f"s_add_u32 s{s_t}, s29, {j}")
            e(f"s_cmp_ge_u32 s{s_t}, 86")
            e(f"s_cbranch_scc1 {name}_skip{j}")
            e(f"s_lshl_b32 s{s_t}, s{s_t}, 5")
            for mt in range(2):
                g = ACC + (mt*3+j)*4; u = ACC + ((2+mt)*3+j)*4
                for r in range(4): e(f"v_mul_f32 v{32+r}, s30, v{g+r}")
                for r in range(4): e(f"v_exp_f32 v{32+r}, v{32+r}")
                e("s_nop 0")
                for r in range(4): e(f"v_add_f32 v{32+r}, 1.0, v{32+r}")
                for r in range(4): e(f"v_rcp_f32 v{32+r}, v{32+r}")
                e("s_nop 0")
                for r in range(4): e(f"v_mul_f32 v{32+r}, v{32+r}, v{u+r}")
                e(f"v_cvt_pk_bf16_f32 v{36+2*mt}, v32, v33")
                e(f"v_cvt_pk_bf16_f32 v{37+2*mt}, v34, v35")
                e(f"buffer_store_dwordx2 {vr(36+2*mt,2)}, v7, {sr(sO,4)}, s{s_t} offen offset:0" if mt == 0 else
                  f"buffer_store_dwordx2 {vr(36+2*mt,2)}, v41, {sr(sO,4)}, s{s_t} offen")
                if mt == 0: e(f"v_add_u32 v41, {16*2752}, v7")
            e("s_nop 1")
            lab(f"{name}_skip{j}")
    stamp(name)
    stamp_out(name)
    lab(f"{name}_done")
    e("s_endpgm")
    return name, 256, 512, 163840, 256

def gen_plain(mode):
    wo = mode == "wo"
    name = "k_wo_kernel" if wo else "k_down_kernel"
    MAPMODE = MAPS[mode]
    header(name)
    R = 4
    K = 512 if wo else 1376
    AS = 1024 if wo else 2752
    stages = [(k0, min(128, K - k0)) for k0 in range(0, K, 128)]
    S = len(stages)
    SLOT = 32768
    sA, sW, sR, sO = 8, 12, 16, 44
    s_wave, s_cg, s_rt, s_wm, s_wn, s_m0, s_ka, s_kw, s_t, s_t2 = 20, 21, 22, 23, 24, 25, 26, 27, 28, 29
    e(f"s_cmp_ge_u32 s2, 256")
    e(f"s_cbranch_scc1 {name}_done")
    stamp(name)
    e("s_load_dwordx2 s[32:33], s[0:1], 0")
    e("s_load_dwordx2 s[34:35], s[0:1], %d" % (16 if wo else 48))
    e("s_load_dwordx2 s[36:37], s[0:1], 56")
    e("s_load_dwordx2 s[40:41], s[0:1], 72")
    e("v_lshrrev_b32 v1, 6, v0")
    e("v_and_b32 v2, 63, v0")
    e("s_nop 0")
    e(f"v_readfirstlane_b32 s{s_wave}, v1")
    wgmap(s_cg, s_rt, MAPMODE)
    e(f"s_lshr_b32 s{s_wm}, s{s_wave}, 2")
    e(f"s_and_b32 s{s_wn}, s{s_wave}, 3")
    e("s_waitcnt lgkmcnt(0)")
    if wo:
        srd(sA, 40, 2048 * 1024, WS_O); srd(sW, 34, 512 * 1024)
        srd(sR, 32, 2048 * 1024); srd(sO, 40, 2048 * 1024, WS_H)
    else:
        srd(sA, 40, 2048 * 2752, WS_HM); srd(sW, 34, 1376 * 1024)
        srd(sR, 40, 2048 * 1024, WS_H); srd(sO, 36, 2048 * 1024)
    for i in range(2):
        e(f"s_lshl_b32 s{s_t}, s{s_wave}, 7")
        e(f"v_add_u32 v12, s{s_t}, v2")
        if i: e("v_add_u32 v12, 64, v12")
        e("v_lshrrev_b32 v13, 4, v12")
        e("v_and_b32 v14, 15, v12")
        e("v_and_b32 v15, 15, v13")
        e("v_xor_b32 v14, v14, v15")
        e(f"s_mov_b32 s{s_t}, {AS}")
        e(f"v_mul_lo_u32 v13, v13, s{s_t}")
        e(f"v_lshl_add_u32 v{8+i}, v14, 4, v13")
        e("v_lshrrev_b32 v13, 3, v12")
        e("v_and_b32 v14, 7, v12")
        e("v_bfe_u32 v15, v13, 1, 1")
        e("v_bfe_u32 v16, v13, 3, 1")
        e("v_lshl_or_b32 v15, v16, 1, v15")
        e("v_lshlrev_b32 v15, 1, v15")
        e("v_xor_b32 v14, v14, v15")
        e("v_lshlrev_b32 v13, 10, v13")
        e(f"v_lshl_add_u32 v{10+i}, v14, 4, v13")
    e(f"s_mul_i32 s{s_ka}, s{s_rt}, {64*AS}")
    e(f"s_lshl_b32 s{s_kw}, s{s_cg}, 7")
    e(f"s_lshl_b32 s{s_m0}, s{s_wave}, 11")
    VG = os.environ.get("VG", "") == "1" and wo
    def dma(st):
        slot = st % R
        if VG:
            for i in range(2):
                e(f"buffer_load_dwordx4 {vr(160+st*16+i*8,4)}, v{8+i}, {sr(sA,4)}, s{s_ka} offen")
                e(f"buffer_load_dwordx4 {vr(164+st*16+i*8,4)}, v{10+i}, {sr(sW,4)}, s{s_kw} offen")
            e(f"s_add_u32 s{s_ka}, s{s_ka}, 256")
            e(f"s_add_u32 s{s_kw}, s{s_kw}, {128*1024}")
            return
        for i in range(2):
            e(f"s_add_u32 m0, s{s_m0}, {slot*SLOT + i*1024}")
            e("s_nop 0")
            e(f"buffer_load_dwordx4 v{8+i}, {sr(sA,4)}, s{s_ka} offen {DFL} lds")
            e(f"s_add_u32 m0, s{s_m0}, {slot*SLOT + 16384 + i*1024}")
            e("s_nop 0")
            e(f"buffer_load_dwordx4 v{10+i}, {sr(sW,4)}, s{s_kw} offen {DFL} lds")
        e(f"s_add_u32 s{s_ka}, s{s_ka}, 256")
        e(f"s_add_u32 s{s_kw}, s{s_kw}, {128*1024}")
    D = int(os.environ.get("PD", "2"))
    D0 = int(os.environ.get("PD0", "2"))
    issued = min(D0, S)
    for st in range(issued): dma(st)
    e("v_and_b32 v4, 15, v2")
    e("v_lshrrev_b32 v5, 4, v2")
    e(f"v_lshl_add_u32 v140, v2, 4, s{s_m0}")
    e(f"v_add_u32 v141, {2*SLOT}, v140")
    e(f"s_lshl_b32 s{s_t}, s{s_rt}, 6")
    e(f"s_lshl_b32 s{s_t2}, s{s_wm}, 5")
    e(f"s_add_u32 s{s_t}, s{s_t}, s{s_t2}")
    e(f"v_add_u32 v6, s{s_t}, v4")
    e("v_lshlrev_b32 v6, 10, v6")
    e("v_lshl_add_u32 v6, v5, 3, v6")
    e(f"s_lshl_b32 s{s_t}, s{s_cg}, 7")
    e(f"s_lshl_b32 s{s_t2}, s{s_wn}, 5")
    e(f"s_add_u32 s30, s{s_t}, s{s_t2}")
    e("v_add_u32 v7, 16384, v6")
    e(f"buffer_load_dwordx2 v[136:137], v6, {sr(sR,4)}, s30 offen")
    e(f"buffer_load_dwordx2 v[138:139], v7, {sr(sR,4)}, s30 offen")
    e(f"s_lshl_b32 s{s_t}, s{s_wm}, 13")
    e("v_lshlrev_b32 v12, 8, v4")
    e(f"v_add_u32 v12, s{s_t}, v12")
    e("v_and_b32 v13, 3, v4")
    e("v_xor_b32 v13, v13, v5")
    e("v_lshrrev_b32 v14, 2, v4")
    for k in range(4):
        e(f"v_xor_b32 v15, {k}, v14")
        e("v_lshl_or_b32 v15, v15, 2, v13")
        e(f"v_lshl_add_u32 v{16+k}, v15, 4, v12")
        e(f"v_add_u32 v{20+k}, {2*SLOT}, v{16+k}")
    e("v_lshrrev_b32 v12, 2, v4")
    e("v_and_b32 v13, 3, v4")
    e("v_lshl_add_u32 v14, v5, 3, v12")
    e("v_lshlrev_b32 v14, 7, v14")
    e("v_lshl_add_u32 v14, v13, 3, v14")
    e("v_lshrrev_b32 v15, 1, v12")
    e("v_and_b32 v13, 1, v5")
    e("v_lshl_or_b32 v15, v13, 1, v15")
    e(f"v_xor_b32 v15, s{s_wn}, v15")
    e("v_lshl_add_u32 v24, v15, 5, v14")
    e("v_add_u32 v24, 16384, v24")
    e(f"v_add_u32 v25, {2*SLOT}, v24")
    ACC = 128
    for i in range(8): e(f"v_mov_b32 v{ACC+i}, 0")
    FS = [28, 76]
    def reads(st):
        base = FS[st & 1]; slot = st % R; hi = slot >= 2; so = (slot & 1) * SLOT
        for ks in range(stages[st][1] // 32):
            for mt in range(2):
                e(f"ds_read_b128 {vr(base+(ks*2+mt)*4,4)}, v{(20 if hi else 16)+ks} offset:{so+mt*4096}")
            for t2 in range(2):
                e(f"ds_read_b64_tr_b16 {vr(base+32+ks*4+t2*2,2)}, v{25 if hi else 24} offset:{so+ks*4096+t2*512}")
    def mfmas(st):
        base = FS[st & 1]
        for ks in range(stages[st][1] // 32):
            for mt in range(2):
                a = ACC + mt * 4
                e(f"v_mfma_f32_16x16x32_bf16 {vr(a,4)}, {vr(base+32+ks*4,4)}, {vr(base+(ks*2+mt)*4,4)}, {vr(a,4)}")
    for st in range(S):
        after = (issued - 1 - st) * 4 + (2 if st < min(D0, S) else 0)
        if VG:
            e(f"s_waitcnt vmcnt({after})")
            for i in range(2):
                e(f"ds_write_b128 v{140+(st>>1)}, {vr(160+st*16+i*8,4)} offset:{(st&1)*SLOT+i*1024}")
                e(f"ds_write_b128 v{140+(st>>1)}, {vr(164+st*16+i*8,4)} offset:{(st&1)*SLOT+16384+i*1024}")
        e(f"s_waitcnt vmcnt({after}) lgkmcnt(0)")
        e("s_barrier")
        if st in (0,1,2,3,5,8): stamp(name)
        B = chunks_of(capture(reads, st))
        while issued < S and issued <= st + D:
            B += chunks_of(capture(dma, issued)); issued += 1
        if st >= 1: interleave(capture(mfmas, st - 1), B)
        else:
            for c in B: L.extend(c)
    e("s_waitcnt vmcnt(0) lgkmcnt(0)")
    mfmas(S - 1)
    e("s_nop 7"); e("s_nop 1")
    for mt in range(2):
        a = ACC + mt*4; r = 136 + 2*mt
        e(f"v_lshlrev_b32 v12, 16, v{r}")
        e(f"v_and_b32 v13, 0xffff0000, v{r}")
        e(f"v_lshlrev_b32 v14, 16, v{r+1}")
        e(f"v_and_b32 v15, 0xffff0000, v{r+1}")
        for i in range(4): e(f"v_add_f32 v{12+i}, v{12+i}, v{a+i}")
        e(f"v_cvt_pk_bf16_f32 v{r}, v12, v13")
        e(f"v_cvt_pk_bf16_f32 v{r+1}, v14, v15")
        e(f"buffer_store_dwordx2 {vr(r,2)}, v{6+mt}, {sr(sO,4)}, s30 offen")
    stamp(name)
    stamp_out(name)
    lab(f"{name}_done")
    e("s_endpgm")
    return name, 256, 512, 131072, 224

def gen_attn():
    name = "k_attn_kernel"
    header(name)
    sWS, sO = 8, 12
    s_wave, s_head, s_qt, s_t, s_t2, s_kb, s_vb = 20, 21, 22, 23, 24, 25, 26
    e("s_cmp_ge_u32 s2, 512")
    e(f"s_cbranch_scc1 {name}_done")
    stamp(name)
    e("s_load_dwordx2 s[40:41], s[0:1], 72")
    PF = os.environ.get("PF", "1") == "1"
    if PF:
        e("s_load_dwordx2 s[42:43], s[0:1], 16")
        e("s_load_dwordx4 s[44:47], s[0:1], 32")
        e("s_load_dwordx2 s[48:49], s[0:1], 48")
    e("v_lshrrev_b32 v1, 6, v0")
    e("v_and_b32 v2, 63, v0")
    e("s_nop 0")
    e(f"v_readfirstlane_b32 s{s_wave}, v1")
    e(f"s_lshr_b32 s{s_head}, s2, 4")
    e(f"s_and_b32 s{s_qt}, s2, 15")
    e(f"s_lshl_b32 s{s_qt}, s{s_qt}, 3")
    e("v_and_b32 v4, 15, v2")
    e("v_lshrrev_b32 v5, 4, v2")
    e("v_lshlrev_b32 v6, 5, v4")
    e("v_lshl_add_u32 v6, v5, 3, v6")
    e("v_lshlrev_b32 v7, 4, v2")
    e("s_waitcnt lgkmcnt(0)")
    srd(sWS, 40, 6 << 20)
    srd(sO, 40, 2048 * 1024, WS_O)
    e(f"s_lshl_b32 s{s_t}, s{s_head}, 16")
    e(f"s_lshl_b32 s{s_t2}, s{s_qt}, 9")
    e(f"s_add_u32 s{s_t2}, s{s_t2}, s{s_t}")
    QF, KF, SS = 8, 12, 48
    VF = KF
    T = 116
    e(f"s_lshl_b32 s{s_t}, s{s_wave}, 9")
    e(f"s_add_u32 s{s_t}, s{s_t2}, s{s_t}")
    e(f"buffer_load_dwordx2 {vr(QF,2)}, v6, {sr(sWS,4)}, s{s_t} offen")
    e(f"s_cmp_lt_u32 s{s_wave}, 4")
    e(f"s_mov_b32 s{s_vb}, {WS_VT-8192-12288}")
    e(f"s_cselect_b32 s{s_kb}, {32*65536-8192}, s{s_vb}")
    e(f"s_add_u32 s{s_kb}, s{s_kb}, s{s_t2}")
    e(f"s_mul_i32 s{s_vb}, s{s_wave}, 3072")
    e(f"s_add_u32 s{s_kb}, s{s_kb}, s{s_vb}")
    for i in range(3):
        e(f"s_add_u32 m0, s{s_vb}, {i*1024}")
        e("s_nop 0")
        e(f"buffer_load_dwordx4 v7, {sr(sWS,4)}, s{s_kb} offen lds")
        if i < 2: e(f"s_add_u32 s{s_kb}, s{s_kb}, 1024")
    e(f"s_add_u32 s{s_qt}, s{s_qt}, s{s_wave}")
    e(f"s_lshl_b32 s{s_t}, s{s_wave}, 9")
    e(f"v_add_u32 v10, s{s_t}, v6")
    e("v_lshlrev_b32 v7, 2, v5")
    e("v_sub_u32 v7, v7, v4")
    e("v_mov_b32 v3, 0xf149f2ca")
    e(f"s_cmp_lt_u32 s{s_wave}, 4")
    e(f"s_cbranch_scc1 {name}_w0")
    e("s_waitcnt vmcnt(3)")
    e(f"s_branch {name}_w1")
    lab(f"{name}_w0")
    e("s_waitcnt vmcnt(0)")
    lab(f"{name}_w1")
    e("s_barrier")
    stamp(name)
    for t in range(17):
        e(f"ds_read_b64 {vr(KF+2*t,2)}, v10 offset:{t*512}")
    for t in range(17):
        e(f"s_waitcnt lgkmcnt({min(15,16-t)})")
        e(f"v_mfma_f32_16x16x16_bf16 {vr(SS+4*t,4)}, {vr(KF+2*t,2)}, {vr(QF,2)}, 0")
    e("s_waitcnt vmcnt(0)")
    e("s_barrier")
    e("s_nop 4")
    for t in range(17):
        e(f"ds_read_b64 {vr(VF+2*t,2)}, v10 offset:{12288+t*512}")
    if PF:
        srd(52, 42, 512 * 1024); srd(56, 44, 512 * 2752); srd(60, 46, 512 * 2752); srd(64, 48, 1376 * 1024)
        e("s_lshr_b32 s50, s2, 3")
        e("s_lshl_b32 s50, s50, 3")
        e(f"s_add_u32 s50, s50, s{s_wave}")
        e("s_bfe_u32 s51, s2, 0x10002")
        e(f"s_lshl_b32 m0, s{s_wave}, 10")
        e("v_lshrrev_b32 v1, 5, v2")
        e("v_lshlrev_b32 v1, 10, v1")
        e("v_and_b32 v3, 31, v2")
        e("v_lshl_add_u32 v1, v3, 4, v1")
        e("v_mov_b32 v3, 0xf149f2ca")
        e("s_lshl_b32 s68, s50, 11")
        e("s_lshl_b32 s69, s51, 9")
        e("s_add_u32 s68, s68, s69")
        e("buffer_load_dwordx4 v1, s[52:55], s68 offen lds")
        e("s_mul_i32 s69, s50, 2752")
        e("s_mul_i32 s51, s51, 1536")
        e("s_add_u32 s69, s69, s51")
        e("v_lshlrev_b32 v1, 4, v2")
        e("buffer_load_dwordx4 v1, s[56:59], s69 offen lds")
        e("buffer_load_dwordx4 v1, s[60:63], s69 offen lds")
        e("s_add_u32 s69, s69, 1024")
        e("buffer_load_dwordx4 v1, s[56:59], s69 offen lds")
        e("buffer_load_dwordx4 v1, s[60:63], s69 offen lds")
        e("v_lshrrev_b32 v1, 5, v2")
        e("v_lshlrev_b32 v1, 10, v1")
        e("v_and_b32 v3, 31, v2")
        e("v_lshl_add_u32 v1, v3, 4, v1")
        e("v_mov_b32 v3, 0xf149f2ca")
        e("buffer_load_dwordx4 v1, s[64:67], s68 offen lds")
        e("s_add_u32 s68, s68, 0x100000")
        e("buffer_load_dwordx4 v1, s[64:67], s68 offen lds")
    stamp(name)
    for r in range(4):
        e(f"v_add_u32 v1, {r}, v7")
        e("v_cmp_lt_i32 vcc, 0, v1")
        e("s_nop 1")
        e(f"v_cndmask_b32 v{SS+r}, v3, v{SS+r}, vcc")
        e(f"v_cndmask_b32 v{SS+64+r}, v{SS+64+r}, v3, vcc")
    for t in range(16):
        e(f"s_cmp_ge_u32 s{s_qt}, {16-t}")
        e(f"s_cbranch_scc1 {name}_m{t}")
        for r in range(4): e(f"v_mov_b32 v{SS+4*t+r}, v3")
        lab(f"{name}_m{t}")
    e(f"v_max3_f32 v{T}, v{SS}, v{SS+1}, v{SS+2}")
    e(f"v_max3_f32 v{T+1}, v{SS+3}, v{SS+4}, v{SS+5}")
    i = 6
    while i + 3 < 68:
        e(f"v_max3_f32 v{T}, v{T}, v{SS+i}, v{SS+i+1}")
        e(f"v_max3_f32 v{T+1}, v{T+1}, v{SS+i+2}, v{SS+i+3}")
        i += 4
    assert i == 66
    e(f"v_max3_f32 v{T}, v{T}, v{SS+66}, v{SS+67}")
    e(f"v_max_f32 v{T}, v{T}, v{T+1}")
    e(f"v_xor_b32 v{T+2}, 16, v2"); e(f"v_lshlrev_b32 v{T+2}, 2, v{T+2}")
    e(f"v_xor_b32 v{T+3}, 32, v2"); e(f"v_lshlrev_b32 v{T+3}, 2, v{T+3}")
    for a in (T+2, T+3):
        e(f"ds_bpermute_b32 v{T+1}, v{a}, v{T}")
        e("s_waitcnt lgkmcnt(0)")
        e(f"v_max_f32 v{T}, v{T}, v{T+1}")
    e("s_mov_b32 s30, 0x3eb8aa3b")
    e(f"v_mul_f32 v{T}, s30, v{T}")
    e(f"v_sub_f32 v{T}, 0, v{T}")
    e(f"v_mov_b32 v{T+4}, s30")
    for i in range(68):
        e(f"v_fma_f32 v{SS+i}, v{SS+i}, v{T+4}, v{T}")
    for i in range(68):
        e(f"v_exp_f32 v{SS+i}, v{SS+i}")
    e("s_nop 0")
    e(f"v_pk_add_f32 {vr(T+6,2)}, {vr(SS,2)}, {vr(SS+2,2)}")
    e(f"v_pk_add_f32 {vr(T+8,2)}, {vr(SS+4,2)}, {vr(SS+6,2)}")
    for i in range(8, 68, 4):
        e(f"v_pk_add_f32 {vr(T+6,2)}, {vr(T+6,2)}, {vr(SS+i,2)}")
        e(f"v_pk_add_f32 {vr(T+8,2)}, {vr(T+8,2)}, {vr(SS+i+2,2)}")
    e(f"v_pk_add_f32 {vr(T+6,2)}, {vr(T+6,2)}, {vr(T+8,2)}")
    e(f"v_add_f32 v{T+6}, v{T+6}, v{T+7}")
    for p in range(9):
        for h in range(4 if p < 8 else 2):
            e(f"v_cvt_pk_bf16_f32 v{SS+8*p+h}, v{SS+8*p+2*h}, v{SS+8*p+2*h+1}")
    for a in (T+2, T+3):
        e(f"ds_bpermute_b32 v{T+7}, v{a}, v{T+6}")
        e("s_waitcnt lgkmcnt(0)")
        e(f"v_add_f32 v{T+6}, v{T+6}, v{T+7}")
    e(f"v_rcp_f32 v{T}, v{T+6}")
    stamp(name)
    O1, O2 = 120, 124
    e(f"v_mfma_f32_16x16x16_bf16 {vr(O1,4)}, {vr(VF+32,2)}, {vr(SS+64,2)}, 0")
    e(f"v_mfma_f32_16x16x32_bf16 {vr(O2,4)}, {vr(VF,4)}, {vr(SS,4)}, 0")
    for p in range(1, 8):
        a = O1 if p & 1 else O2
        if p == 1:
            e("s_nop 7")
        e(f"v_mfma_f32_16x16x32_bf16 {vr(a,4)}, {vr(VF+4*p,4)}, {vr(SS+8*p,4)}, {vr(a,4)}")
    e("s_nop 7"); e("s_nop 1")
    for r in range(4):
        e(f"v_add_f32 v{O1+r}, v{O1+r}, v{O2+r}")
    for r in range(4):
        e(f"v_mul_f32 v{O1+r}, v{O1+r}, v{T}")
    e(f"v_cvt_pk_bf16_f32 v160, v{O1}, v{O1+1}".replace("v160", f"v{O1}"))
    e(f"v_cvt_pk_bf16_f32 v{O1+1}, v{O1+2}, v{O1+3}")
    e("v_lshlrev_b32 v7, 10, v4")
    e("v_lshl_add_u32 v7, v5, 3, v7")
    e(f"s_lshl_b32 s{s_t}, s{s_qt}, 14")
    e(f"s_lshl_b32 s{s_t2}, s{s_head}, 5")
    e(f"s_add_u32 s{s_t}, s{s_t}, s{s_t2}")
    e(f"buffer_store_dwordx2 v[120:121], v7, {sr(sO,4)}, s{s_t} offen")
    e("s_waitcnt vmcnt(0)")
    stamp(name)
    stamp_out(name)
    lab(f"{name}_done")
    e("s_endpgm")
    return name, 512, 512, 24576, 128

def main():
    kernels = []
    RAW = os.environ.get("RAW", "00")
    kernels.append((gen_ln_gemm2 if RAW[0] == "1" else gen_ln_gemm)("qkv"))
    kernels.append(gen_attn())
    kernels.append(gen_plain("wo"))
    kernels.append((gen_ln_gemm2 if RAW[1] == "1" else gen_ln_gemm)("gu"))
    kernels.append(gen_plain("down"))
    out = []
    src = open("cdna_kernels/%s.s.ref" % NAME).read().split("\n")
    for ln in src:
        if ln.startswith("; Override"): break
        out.append(ln)
    for (n, g, b, lds, vg) in kernels:
        out.append(f"; @launch kernel={n} grid=({g},1,1) block=({b},1,1) lds={lds}")
    out.append('.amdgcn_target "amdgcn-amd-amdhsa--gfx950"')
    out += L
    out.append('.section .rodata,"a"')
    for (n, g, b, lds, vg) in kernels:
        out.append(".p2align 6")
        out.append(f".amdhsa_kernel {n}")
        out.append(f"  .amdhsa_next_free_vgpr {vg}")
        out.append("  .amdhsa_next_free_sgpr 102")
        out.append(f"  .amdhsa_accum_offset {vg}")
        out.append("  .amdhsa_group_segment_fixed_size 0")
        out.append("  .amdhsa_kernarg_size 80")
        out.append("  .amdhsa_user_sgpr_count 2")
        out.append("  .amdhsa_user_sgpr_kernarg_segment_ptr 1")
        out.append("  .amdhsa_system_sgpr_workgroup_id_x 1")
        out.append(".end_amdhsa_kernel")
    open("cdna_kernels/%s.s" % NAME, "w").write("\n".join(out) + "\n")

if __name__ == "__main__":
    main()
```

```python
import sys
NAME = "sequential_preLN__sliding_block__glu_gated_glu__prompt"
WS_QK, WS_VT, WS_O, WS_H, WS_HM = 0, 4 << 20, 6 << 20, 8 << 20, 10 << 20
WS_SIZE = 268435456
L = []
MAPS = dict(qkv="4x2", wo="4x2", gu="4x2", down="4x2")
import os
for _k in MAPS:
    if os.environ.get("MAP_"+_k): MAPS[_k] = os.environ["MAP_"+_k]
def e(s): L.append("    " + s)
def lab(s): L.append(s + ":")
def cmt(s): L.append("    ; " + s)
def vr(a, n=1): return f"v{a}" if n == 1 else f"v[{a}:{a+n-1}]"
def sr(a, n=1): return f"s{a}" if n == 1 else f"s[{a}:{a+n-1}]"

def srd(d, ptr, nbytes, add=0):
    if add:
        e(f"s_add_u32 s{d}, s{ptr}, {add}")
        e(f"s_addc_u32 s{d+1}, s{ptr+1}, 0")
    else:
        e(f"s_mov_b32 s{d}, s{ptr}")
        e(f"s_mov_b32 s{d+1}, s{ptr+1}")
    e(f"s_mov_b32 s{d+2}, {nbytes}")
    e(f"s_mov_b32 s{d+3}, 0x00020000")

def wgmap(s_cg, s_rt, m):
    if m == "cols":
        e(f"s_and_b32 s{s_cg}, s2, 7")
        e(f"s_lshr_b32 s{s_rt}, s2, 3")
    elif m == "rows":
        e(f"s_and_b32 s{s_rt}, s2, 7")
        e(f"s_lshl_b32 s{s_rt}, s{s_rt}, 2")
        e(f"s_bfe_u32 s{s_cg}, s2, 0x20003")
        e(f"s_add_u32 s{s_rt}, s{s_rt}, s{s_cg}")
        e(f"s_lshr_b32 s{s_cg}, s2, 5")
    elif m == "4x2":
        e(f"s_and_b32 s{s_rt}, s2, 3")
        e(f"s_lshl_b32 s{s_rt}, s{s_rt}, 3")
        e(f"s_bfe_u32 s{s_cg}, s2, 0x30003")
        e(f"s_add_u32 s{s_rt}, s{s_rt}, s{s_cg}")
        e(f"s_bfe_u32 s{s_cg}, s2, 0x10002")
        e(f"s_lshl_b32 s{s_cg}, s{s_cg}, 2")
        e(f"s_lshr_b32 s100, s2, 6")
        e(f"s_add_u32 s{s_cg}, s{s_cg}, s100")
    elif m == "2d":
        e(f"s_and_b32 s{s_rt}, s2, 1")
        e(f"s_lshl_b32 s{s_rt}, s{s_rt}, 4")
        e(f"s_bfe_u32 s{s_cg}, s2, 0x40003")
        e(f"s_add_u32 s{s_rt}, s{s_rt}, s{s_cg}")
        e(f"s_bfe_u32 s{s_cg}, s2, 0x20001")
        e(f"s_lshl_b32 s{s_cg}, s{s_cg}, 1")
        e(f"s_lshr_b32 s100, s2, 7")
        e(f"s_add_u32 s{s_cg}, s{s_cg}, s100")

import os
STAMP = os.environ.get("STAMP", "")
DFL = os.environ.get("DFL", "")
PDL = int(os.environ.get("PDL", "3"))
NST = [0]
def stamp(kn):
    if STAMP != kn: return
    i = NST[0]; NST[0] += 1
    e(f"s_memtime s[{70+2*i}:{71+2*i}]")
def stamp_out(kn, wg=37):
    if STAMP != kn: return
    e("s_waitcnt lgkmcnt(0) vmcnt(0)")
    e(f"s_cmp_lg_u32 s2, {wg}")
    e(f"s_cbranch_scc1 {kn}_nost")
    e("s_load_dwordx2 s[96:97], s[0:1], 64")
    e("v_lshrrev_b32 v1, 6, v0")
    e("v_lshlrev_b32 v1, 5, v1")
    e("s_waitcnt lgkmcnt(0)")
    for i in range(min(8, NST[0])):
        e(f"s_sub_u32 s98, s{70+2*i}, s70")
        e(f"v_mov_b32 v2, s98")
        e(f"global_store_dword v1, v2, s[96:97] offset:{4*i}")
    lab(f"{kn}_nost")

def capture(fn, *a):
    global L
    old = L; L = []
    fn(*a)
    r = L; L = old
    return r
def chunks_of(lines):
    out = []; i = 0
    while i < len(lines):
        if "m0" in lines[i]:
            out.append(lines[i:i+3]); i += 3
        else:
            out.append([lines[i]]); i += 1
    return out
def interleave(A, B):
    global L
    n = len(A); m = len(B); j = 0
    for i, a in enumerate(A):
        L.append(a)
        tgt = (i + 1) * m // n
        while j < tgt:
            L += B[j]; j += 1
    while j < m:
        L += B[j]; j += 1

def header(name):
    L.append(".text")
    L.append(f".globl {name}")
    L.append(".p2align 8")
    L.append(f".type {name},@function")
    lab(name)

for p in range(768):
    assert (p * 2731) >> 16 == p // 24

def gen_ln_gemm(mode):
    qkv = mode == "qkv"
    name = "k_qkv_kernel" if qkv else "k_gu_kernel"
    MAPMODE = MAPS[mode]
    header(name)
    R = 4; S = 8 if qkv else 16
    WROW = 3072 if qkv else 2752
    KADV = (64 if qkv else 32) * WROW
    XB = 0; WB = 65536; SLOT = 24576
    XR = 176; RS = 208
    sX, sW, sO = 8, 12, 16
    s_wave, s_cg, s_rt, s_wm, s_wn, s_m0, s_k, s_t, s_t2 = 20, 21, 22, 23, 24, 25, 26, 27, 28
    e(f"s_cmp_ge_u32 s2, 256")
    e(f"s_cbranch_scc1 {name}_done")
    stamp(name)
    e("s_load_dwordx4 s[32:35], s[0:1], 0")
    e("s_load_dwordx4 s[36:39], s[0:1], 32")
    e("s_load_dwordx2 s[40:41], s[0:1], 72")
    e("v_lshrrev_b32 v1, 6, v0")
    e("v_and_b32 v2, 63, v0")
    e("s_nop 0")
    e(f"v_readfirstlane_b32 s{s_wave}, v1")
    wgmap(s_cg, s_rt, MAPMODE)
    e(f"s_lshr_b32 s{s_wm}, s{s_wave}, 2")
    e(f"s_and_b32 s{s_wn}, s{s_wave}, 3")
    e("s_waitcnt lgkmcnt(0)")
    if qkv:
        srd(sX, 32, 2048 * 1024)
        srd(sW, 34, 512 * 3072)
        srd(sO, 40, 6 << 20)
    else:
        srd(sX, 40, 2048 * 1024, WS_H)
        e(f"s_cmp_eq_u32 s{s_wm}, 0")
        e("s_cselect_b32 s42, s36, s38")
        e("s_cselect_b32 s43, s37, s39")
        srd(sW, 42, 512 * 2752)
        srd(sO, 40, 2048 * 2752, WS_HM)
    TP = os.environ.get("TP", "0") == "1" and qkv
    if TP:
        e("s_lshr_b32 s44, s2, 3")
        e("s_lshl_b32 s44, s44, 3")
        e(f"s_add_u32 s44, s44, s{s_wave}")
        e("s_mul_i32 s44, s44, 6144")
        e("s_bfe_u32 s45, s2, 0x10002")
        e("s_mul_i32 s45, s45, 1536")
        e("s_add_u32 s44, s44, s45")
        e("v_lshlrev_b32 v3, 4, v2")
        e("v_cmp_gt_u32 vcc, 32, v2")
        e("v_mov_b32 v4, 2560")
        e("v_mov_b32 v5, 1024")
        e("v_cndmask_b32 v4, v4, v5, vcc")
        e("v_add_u32 v4, v4, v3")
        e(f"buffer_load_dwordx4 v[224:227], v3, {sr(sW,4)}, s44 offen")
        e(f"buffer_load_dwordx4 v[228:231], v4, {sr(sW,4)}, s44 offen")
        e(f"buffer_load_dwordx4 v[232:235], v3, {sr(sW,4)}, s44 offen offset:3584")
    e("v_lshrrev_b32 v4, 3, v2")
    e("v_and_b32 v5, 7, v2")
    e(f"s_lshl_b32 s{s_t}, s{s_wave}, 3")
    e(f"v_add_u32 v6, s{s_t}, v4")
    e("v_lshlrev_b32 v3, 10, v6")
    e("v_lshl_add_u32 v3, v5, 4, v3")
    e(f"s_lshl_b32 s{s_t}, s{s_rt}, 16")
    for i in range(8):
        e(f"buffer_load_dwordx4 {vr(XR+4*i,4)}, v3, {sr(sX,4)}, s{s_t} offen offset:{i*128}")
    e(f"s_mul_i32 s{s_t2}, s{s_wn}, 192")
    for i in range(3):
        e(f"v_add_u32 v11, s{s_t2}, v2")
        if i: e(f"v_add_u32 v11, {i*64}, v11")
        e("v_mul_u32_u24 v12, 2731, v11")
        e("v_lshrrev_b32 v12, 16, v12")
        e("v_mul_u32_u24 v13, 24, v12")
        e("v_sub_u32 v13, v11, v13")
        e("v_bfe_u32 v14, v12, 1, 1")
        e("v_bfe_u32 v15, v12, 3, 1")
        e("v_lshl_or_b32 v14, v15, 1, v14")
        e("v_lshlrev_b32 v14, 1, v14")
        if not os.environ.get("NOSWZ"): e("v_xor_b32 v13, v13, v14")
        e(f"s_mov_b32 s{s_t}, {WROW}")
        e(f"v_mul_lo_u32 v12, v12, s{s_t}")
        e(f"v_lshl_add_u32 v{8+i}, v13, 4, v12")
    e(f"s_mul_i32 s{s_k}, s{s_cg}, 384")
    if qkv:
        e(f"s_mul_i32 s{s_t}, s{s_wm}, {32*3072}")
        e(f"s_add_u32 s{s_k}, s{s_k}, s{s_t}")
    e(f"s_mul_i32 s{s_m0}, s{s_wave}, 3072")
    e(f"s_add_u32 s{s_m0}, s{s_m0}, {WB}")
    def dma(st):
        slot = st % R
        for i in range(3):
            e(f"s_add_u32 m0, s{s_m0}, {slot*SLOT + i*1024}")
            e("s_nop 0")
            e(f"buffer_load_dwordx4 v{8+i}, {sr(sW,4)}, s{s_k} offen {DFL} lds")
        e(f"s_add_u32 s{s_k}, s{s_k}, {KADV}")
    dma(0)
    e("v_mov_b32 v28, v4"); e("v_mov_b32 v29, v5"); e("v_mov_b32 v30, v6")
    e("v_and_b32 v4, 15, v2")
    e("v_lshrrev_b32 v5, 4, v2")
    e(f"s_lshl_b32 s{s_t}, s{s_wm}, 15")
    e("v_lshlrev_b32 v6, 10, v4")
    e(f"v_add_u32 v6, s{s_t}, v6")
    e("v_and_b32 v7, 3, v4")
    e("v_xor_b32 v7, v7, v5")
    e("v_lshrrev_b32 v11, 2, v4")
    for k in range(4):
        e(f"v_xor_b32 v12, {k}, v11")
        e("v_lshl_or_b32 v12, v12, 2, v7")
        e(f"v_lshl_add_u32 v{24+k}, v12, 4, v6")
    e("v_lshrrev_b32 v11, 2, v4")
    e("v_and_b32 v12, 3, v4")
    e("v_lshl_add_u32 v13, v5, 3, v11")
    e("v_mul_u32_u24 v13, 384, v13")
    e("v_lshl_add_u32 v13, v12, 3, v13")
    e(f"v_add_u32 v13, {WB}, v13")
    e("v_lshrrev_b32 v14, 1, v11")
    e("v_and_b32 v15, 1, v5")
    e("v_lshl_or_b32 v14, v15, 1, v14")
    e(f"s_mul_i32 s{s_t}, s{s_wn}, 3")
    for j in range(3):
        e(f"s_add_u32 s{s_t2}, s{s_t}, {j}")
        e(f"v_xor_b32 v15, s{s_t2}, v14")
        e(f"v_lshl_add_u32 v{16+j}, v15, 5, v13")
        e(f"v_add_u32 v{19+j}, {2*SLOT}, v{16+j}")
    ACC = 128
    NACC = 6 if qkv else 12
    for i in range(NACC * 4):
        e(f"v_mov_b32 v{ACC+i}, 0")
    e(f"s_waitcnt vmcnt(3)")
    stamp(name)
    e(f"s_mov_b32 s31, 0x3f803f80")
    e(f"v_dot2_f32_bf16 v{RS+6}, v{XR}, s31, 0")
    e(f"v_dot2_f32_bf16 v{RS+7}, v{XR+1}, s31, 0")
    e(f"v_dot2_f32_bf16 v{RS+8}, v{XR}, v{XR}, 0")
    e(f"v_dot2_f32_bf16 v{RS+9}, v{XR+1}, v{XR+1}, 0")
    for i in range(2, 32, 2):
        e(f"v_dot2_f32_bf16 v{RS+6}, v{XR+i}, s31, v{RS+6}")
        e(f"v_dot2_f32_bf16 v{RS+7}, v{XR+i+1}, s31, v{RS+7}")
        e(f"v_dot2_f32_bf16 v{RS+8}, v{XR+i}, v{XR+i}, v{RS+8}")
        e(f"v_dot2_f32_bf16 v{RS+9}, v{XR+i+1}, v{XR+i+1}, v{RS+9}")
    e(f"s_nop 3")
    e(f"v_add_f32 v{RS+6}, v{RS+6}, v{RS+7}")
    e(f"v_add_f32 v{RS+8}, v{RS+8}, v{RS+9}")
    for ctl in ("quad_perm:[1,0,3,2]", "quad_perm:[2,3,0,1]", "row_half_mirror"):
        e(f"s_nop 1")
        e(f"v_add_f32_dpp v{RS+6}, v{RS+6}, v{RS+6} {ctl} row_mask:0xf bank_mask:0xf")
        e(f"v_add_f32_dpp v{RS+8}, v{RS+8}, v{RS+8} {ctl} row_mask:0xf bank_mask:0xf")
    dma(1)
    e(f"v_mul_f32 v{RS+6}, 0x3b000000, v{RS+6}")
    e(f"v_mul_f32 v{RS+8}, 0x3b000000, v{RS+8}")
    e(f"v_fma_f32 v{RS+8}, -v{RS+6}, v{RS+6}, v{RS+8}")
    e(f"v_max_f32 v{RS+8}, 0, v{RS+8}")
    e(f"v_add_f32 v{RS+8}, 0x3727c5ac, v{RS+8}")
    e(f"v_rsq_f32 v{RS}, v{RS+8}")
    e(f"s_nop 0")
    e(f"v_mul_f32 v{RS+1}, v{RS+6}, v{RS}")
    e(f"v_sub_f32 v{RS+1}, 0, v{RS+1}")
    e(f"v_xor_b32 v{RS+10}, v28, v29")
    e(f"s_and_b32 s{s_t}, s{s_wave}, 1")
    e(f"s_lshl_b32 s{s_t}, s{s_t}, 3")
    e(f"v_add_u32 v{RS+11}, s{s_t}, v{RS+10}")
    e(f"s_xor_b32 s{s_t}, s{s_t}, 8")
    e(f"v_add_u32 v{RS+12}, s{s_t}, v{RS+10}")
    e(f"v_lshlrev_b32 v{RS+2}, 10, v30")
    e(f"v_lshl_add_u32 v{RS+3}, v{RS+12}, 4, v{RS+2}")
    e(f"v_lshl_add_u32 v{RS+2}, v{RS+11}, 4, v{RS+2}")
    def norm(i):
        for r in range(4):
            x = XR + 4*i + r
            e(f"v_lshlrev_b32 v{RS+4}, 16, v{x}")
            e(f"v_and_b32 v{RS+5}, 0xffff0000, v{x}")
            e(f"v_fma_f32 v{RS+4}, v{RS+4}, v{RS}, v{RS+1}")
            e(f"v_fma_f32 v{RS+5}, v{RS+5}, v{RS}, v{RS+1}")
            e(f"v_cvt_pk_bf16_f32 v{x}, v{RS+4}, v{RS+5}")
        e(f"ds_write_b128 v{RS+2+(i&1)}, {vr(XR+4*i,4)} offset:{XB+(i>>1)*256}")
    norm(0); norm(1)
    stamp(name)
    FS = [32, 80]
    def reads(st):
        base = FS[st & 1]; slot = st % R
        wa = 16 if slot < 2 else 19; so = (slot & 1) * SLOT
        nk = 2 if qkv else 1
        for kk in range(nk):
            ks = st * nk + kk
            for mt in range(2):
                e(f"ds_read_b128 {vr(base+(kk*2+mt)*4,4)}, v{24+(ks&3)} offset:{XB+(ks>>2)*256+mt*16384}")
        for b in range(2):
            for j in range(3):
                for t2 in range(2):
                    e(f"ds_read_b64_tr_b16 {vr(base+16+(b*3+j)*4+t2*2,2)}, v{wa+j} offset:{so+b*12288+t2*1536}")
    def mfmas(st):
        base = FS[st & 1]
        for b in range(2):
            for j in range(3):
                for mt in range(2):
                    if qkv: a = ACC + (mt*3+j)*4; x = base + (b*2+mt)*4
                    else:   a = ACC + ((b*2+mt)*3+j)*4; x = base + mt*4
                    e(f"v_mfma_f32_16x16x32_bf16 {vr(a,4)}, {vr(base+16+(b*3+j)*4,4)}, {vr(x,4)}, {vr(a,4)}")
    issued = 2
    for st in range(S):
        e(f"s_waitcnt vmcnt({(issued-1-st)*3}) lgkmcnt(0)")
        e("s_barrier")
        if st in (0, 1, 2, 4, 6, S-1): stamp(name)
        B = chunks_of(capture(reads, st)) if not (os.environ.get("NORD") and st > 1) else []
        while issued < S and issued <= st + PDL:
            if not os.environ.get("NODMA"): B += chunks_of(capture(dma, issued))
            issued += 1
        if qkv:
            if st + 2 < 8: B += chunks_of(capture(norm, st + 2))
        else:
            if st % 2 == 0 and st // 2 + 2 < 8: B += chunks_of(capture(norm, st // 2 + 2))
        if st >= 1: interleave(capture(mfmas, st - 1), B)
        else:
            for c in B: L.extend(c)
    e("s_waitcnt lgkmcnt(0)")
    mfmas(S - 1)
    e("s_barrier")
    stamp(name)
    e("v_lshlrev_b32 v6, 5, v4")
    e("v_lshl_add_u32 v6, v5, 3, v6")
    if qkv:
        e(f"s_lshl_b32 s{s_t}, s{s_wave}, 9")
        e(f"v_add_u32 v7, s{s_t}, v6")
        e("v_lshrrev_b32 v11, 2, v4")
        e("v_and_b32 v12, 3, v4")
        e("v_lshl_add_u32 v11, v5, 2, v11")
        e("v_lshlrev_b32 v11, 5, v11")
        e("v_lshl_add_u32 v11, v12, 3, v11")
        e(f"v_add_u32 v11, s{s_t}, v11")
        e(f"s_mul_i32 s29, s{s_cg}, 12")
        e(f"s_mul_i32 s{s_t}, s{s_wn}, 3")
        e(f"s_add_u32 s29, s29, s{s_t}")
        e(f"s_lshl_b32 s30, s{s_rt}, 2")
        e(f"s_lshl_b32 s{s_t}, s{s_wm}, 1")
        e(f"s_add_u32 s30, s30, s{s_t}")
        e("s_nop 4")
        for j in range(3):
            for mt in range(2):
                a = ACC + (mt*3+j)*4
                e(f"v_cvt_pk_bf16_f32 v32, v{a}, v{a+1}")
                e(f"v_cvt_pk_bf16_f32 v33, v{a+2}, v{a+3}")
                e(f"s_add_u32 s{s_t}, s29, {j}")
                e(f"s_add_u32 s{s_t2}, s30, {mt}")
                e(f"s_cmp_ge_u32 s{s_t}, 64")
                e(f"s_cbranch_scc1 {name}_v{j}{mt}")
                e(f"s_lshl_b32 s{s_t}, s{s_t}, 16")
                e(f"s_lshl_b32 s{s_t2}, s{s_t2}, 9")
                e(f"s_add_u32 s{s_t}, s{s_t}, s{s_t2}")
                e(f"buffer_store_dwordx2 v[32:33], v6, {sr(sO,4)}, s{s_t} offen")
                e(f"s_branch {name}_n{j}{mt}")
                lab(f"{name}_v{j}{mt}")
                e("ds_write_b64 v7, v[32:33]")
                e("s_waitcnt lgkmcnt(0)")
                e("ds_read_b64_tr_b16 v[34:35], v11")
                e(f"s_sub_u32 s{s_t}, s{s_t}, 64")
                e(f"s_lshl_b32 s{s_t}, s{s_t}, 16")
                e(f"s_lshl_b32 s{s_t2}, s{s_t2}, 9")
                e(f"s_add_u32 s{s_t}, s{s_t}, s{s_t2}")
                e(f"s_add_u32 s{s_t}, s{s_t}, {WS_VT}")
                e("s_waitcnt lgkmcnt(0)")
                e(f"buffer_store_dwordx2 v[34:35], v6, {sr(sO,4)}, s{s_t} offen")
                lab(f"{name}_n{j}{mt}")
                e("s_nop 1")
    else:
        e(f"s_lshl_b32 s{s_t}, s{s_rt}, 6")
        e(f"s_lshl_b32 s{s_t2}, s{s_wm}, 5")
        e(f"s_add_u32 s{s_t}, s{s_t}, s{s_t2}")
        e(f"v_add_u32 v7, s{s_t}, v4")
        e(f"s_mov_b32 s{s_t}, 2752")
        e(f"v_mul_lo_u32 v7, v7, s{s_t}")
        e("v_lshl_add_u32 v7, v5, 3, v7")
        e(f"s_mul_i32 s29, s{s_cg}, 12")
        e(f"s_mul_i32 s{s_t}, s{s_wn}, 3")
        e(f"s_add_u32 s29, s29, s{s_t}")
        e("s_mov_b32 s30, 0xbfb8aa3b")
        e("s_nop 4")
        for j in range(3):
            e(f"s_add_u32 s{s_t}, s29, {j}")
            e(f"s_cmp_ge_u32 s{s_t}, 86")
            e(f"s_cbranch_scc1 {name}_skip{j}")
            e(f"s_lshl_b32 s{s_t}, s{s_t}, 5")
            for mt in range(2):
                g = ACC + (mt*3+j)*4; u = ACC + ((2+mt)*3+j)*4
                for r in range(4): e(f"v_mul_f32 v{32+r}, s30, v{g+r}")
                for r in range(4): e(f"v_exp_f32 v{32+r}, v{32+r}")
                e("s_nop 0")
                for r in range(4): e(f"v_add_f32 v{32+r}, 1.0, v{32+r}")
                for r in range(4): e(f"v_rcp_f32 v{32+r}, v{32+r}")
                e("s_nop 0")
                for r in range(4): e(f"v_mul_f32 v{32+r}, v{32+r}, v{u+r}")
                e(f"v_cvt_pk_bf16_f32 v{36+2*mt}, v32, v33")
                e(f"v_cvt_pk_bf16_f32 v{37+2*mt}, v34, v35")
                e(f"buffer_store_dwordx2 {vr(36+2*mt,2)}, v7, {sr(sO,4)}, s{s_t} offen offset:0" if mt == 0 else
                  f"buffer_store_dwordx2 {vr(36+2*mt,2)}, v41, {sr(sO,4)}, s{s_t} offen")
                if mt == 0: e(f"v_add_u32 v41, {16*2752}, v7")
            e("s_nop 1")
            lab(f"{name}_skip{j}")
    stamp(name)
    stamp_out(name)
    lab(f"{name}_done")
    e("s_endpgm")
    return name, 256, 512, 163840, (236 if qkv else 224)

def gen_ln_gemm2(mode):
    qkv = mode == "qkv"
    name = "k_qkv_kernel" if qkv else "k_gu_kernel"
    MAPMODE = MAPS[mode]
    header(name)
    R = 4; S = 8 if qkv else 16
    WROW = 3072 if qkv else 2752
    KADV = (64 if qkv else 32) * WROW
    XB = 0; WB = 65536; SLOT = 24576
    XR = 176; RS = 208
    sX, sW, sO = 8, 12, 16
    s_wave, s_cg, s_rt, s_wm, s_wn, s_m0, s_k, s_t, s_t2 = 20, 21, 22, 23, 24, 25, 26, 27, 28
    e(f"s_cmp_ge_u32 s2, 256")
    e(f"s_cbranch_scc1 {name}_done")
    stamp(name)
    e("s_load_dwordx4 s[32:35], s[0:1], 0")
    e("s_load_dwordx4 s[36:39], s[0:1], 32")
    e("s_load_dwordx2 s[40:41], s[0:1], 72")
    e("v_lshrrev_b32 v1, 6, v0")
    e("v_and_b32 v2, 63, v0")
    e("s_nop 0")
    e(f"v_readfirstlane_b32 s{s_wave}, v1")
    wgmap(s_cg, s_rt, MAPMODE)
    e(f"s_lshr_b32 s{s_wm}, s{s_wave}, 2")
    e(f"s_and_b32 s{s_wn}, s{s_wave}, 3")
    e("s_waitcnt lgkmcnt(0)")
    if qkv:
        srd(sX, 32, 2048 * 1024)
        srd(sW, 34, 512 * 3072)
        srd(sO, 40, 6 << 20)
    else:
        srd(sX, 40, 2048 * 1024, WS_H)
        e(f"s_cmp_eq_u32 s{s_wm}, 0")
        e("s_cselect_b32 s42, s36, s38")
        e("s_cselect_b32 s43, s37, s39")
        srd(sW, 42, 512 * 2752)
        srd(sO, 40, 2048 * 2752, WS_HM)

    CS = 224; ONES = 236; WA1 = 240; XA = 246
    s_mx, s_kx = 44, 45
    seq = []
    for i in range(2):
        e(f"s_lshl_b32 s{s_t}, s{s_wave}, 7")
        e(f"v_add_u32 v12, s{s_t}, v2")
        if i: e("v_add_u32 v12, 64, v12")
        e("v_lshrrev_b32 v13, 4, v12")
        e("v_and_b32 v14, 15, v12")
        e("v_and_b32 v15, 15, v13")
        e("v_xor_b32 v14, v14, v15")
        e("v_lshlrev_b32 v13, 10, v13")
        e(f"v_lshl_add_u32 v{XA+i}, v14, 4, v13")
    e(f"s_lshl_b32 s{s_kx}, s{s_rt}, 16")
    e(f"s_lshl_b32 s{s_mx}, s{s_wave}, 11")
    def dmax(g):
        for i in range(2):
            e(f"s_add_u32 m0, s{s_mx}, {XB + g*16384 + i*1024}")
            e("s_nop 0")
            e(f"buffer_load_dwordx4 v{XA+i}, {sr(sX,4)}, s{s_kx} offen lds")
        e(f"s_add_u32 s{s_kx}, s{s_kx}, 256")
        seq.extend([("X", g)] * 2)
    dmax(0)
    e(f"s_mul_i32 s{s_t2}, s{s_wn}, 192")
    for i in range(3):
        e(f"v_add_u32 v11, s{s_t2}, v2")
        if i: e(f"v_add_u32 v11, {i*64}, v11")
        e("v_mul_u32_u24 v12, 2731, v11")
        e("v_lshrrev_b32 v12, 16, v12")
        e("v_mul_u32_u24 v13, 24, v12")
        e("v_sub_u32 v13, v11, v13")
        e("v_bfe_u32 v14, v12, 1, 1")
        e("v_bfe_u32 v15, v12, 3, 1")
        e("v_lshl_or_b32 v14, v15, 1, v14")
        e("v_lshlrev_b32 v14, 1, v14")
        e("v_xor_b32 v13, v13, v14")
        e(f"s_mov_b32 s{s_t}, {WROW}")
        e(f"v_mul_lo_u32 v12, v12, s{s_t}")
        e(f"v_lshl_add_u32 v{8+i}, v13, 4, v12")
    e(f"s_mul_i32 s{s_k}, s{s_cg}, 384")
    if qkv:
        e(f"s_mul_i32 s{s_t}, s{s_wm}, {32*3072}")
        e(f"s_add_u32 s{s_k}, s{s_k}, s{s_t}")
    e(f"s_mul_i32 s{s_m0}, s{s_wave}, 3072")
    e(f"s_add_u32 s{s_m0}, s{s_m0}, {WB}")
    def dma(st):
        slot = st % R
        for i in range(3):
            e(f"s_add_u32 m0, s{s_m0}, {slot*SLOT + i*1024}")
            e("s_nop 0")
            e(f"buffer_load_dwordx4 v{8+i}, {sr(sW,4)}, s{s_k} offen lds")
        e(f"s_add_u32 s{s_k}, s{s_k}, {KADV}")
        seq.extend([("W", st)] * 3)
    XS = os.environ.get("XS", "1") == "1"
    dma(0); dma(1)
    if not XS: dmax(1); dmax(2); dmax(3)
    e("v_lshrrev_b32 v4, 3, v2")
    e("v_and_b32 v5, 7, v2")
    e(f"s_lshl_b32 s{s_t}, s{s_wave}, 3")
    e(f"v_add_u32 v6, s{s_t}, v4")
    e(f"v_lshlrev_b32 v{RS+2}, 8, v6")
    e(f"v_lshl_add_u32 v{RS+2}, v5, 4, v{RS+2}")
    e(f"v_lshlrev_b32 v{RS+3}, 3, v6")
    e(f"v_add_u32 v{RS+3}, {WB}, v{RS+3}")
    e(f"s_mul_i32 s{s_t}, s{s_wave}, 3072")
    e(f"s_add_u32 s{s_t}, s{s_t}, {WB+1024}")
    e(f"v_lshl_add_u32 v{RS+4}, v2, 4, s{s_t}")
    e(f"s_xor_b32 s{s_t}, s{s_wave}, 4")
    e(f"s_mul_i32 s{s_t}, s{s_t}, 3072")
    e(f"s_add_u32 s{s_t}, s{s_t}, {WB+1024}")
    e(f"v_lshl_add_u32 v{RS+10}, v2, 4, s{s_t}")
    e("v_and_b32 v4, 15, v2")
    e("v_lshrrev_b32 v5, 4, v2")
    e(f"s_lshl_b32 s{s_t}, s{s_wm}, 8")
    e(f"s_add_u32 s{s_t}, s{s_t}, {WB}")
    e(f"v_lshl_add_u32 v{RS+5}, v4, 3, s{s_t}")
    e(f"s_lshl_b32 s{s_t}, s{s_wm}, 13")
    e("v_lshlrev_b32 v6, 8, v4")
    e(f"v_add_u32 v6, s{s_t}, v6")
    e("v_and_b32 v7, 3, v4")
    e("v_xor_b32 v7, v7, v5")
    e("v_lshrrev_b32 v11, 2, v4")
    for k in range(4):
        if qkv:
            e(f"s_xor_b32 s{s_t}, s{s_wm}, {k}")
            e(f"v_xor_b32 v12, s{s_t}, v11")
        else:
            e(f"v_xor_b32 v12, {k}, v11")
        e("v_lshl_or_b32 v12, v12, 2, v7")
        e(f"v_lshl_add_u32 v{24+k}, v12, 4, v6")
    e("v_lshrrev_b32 v11, 2, v4")
    e("v_and_b32 v12, 3, v4")
    e("v_lshl_add_u32 v13, v5, 3, v11")
    e("v_mul_u32_u24 v13, 384, v13")
    e("v_lshl_add_u32 v13, v12, 3, v13")
    e(f"v_add_u32 v13, {WB}, v13")
    e("v_lshrrev_b32 v14, 1, v11")
    e("v_and_b32 v15, 1, v5")
    e("v_lshl_or_b32 v14, v15, 1, v14")
    e(f"s_mul_i32 s{s_t}, s{s_wn}, 3")
    e(f"s_mul_i32 s29, s{s_wm}, 12288")
    e(f"s_sub_u32 s30, 12288, s29")
    for j in range(3):
        e(f"s_add_u32 s{s_t2}, s{s_t}, {j}")
        e(f"v_xor_b32 v15, s{s_t2}, v14")
        e(f"v_lshl_add_u32 v15, v15, 5, v13")
        e(f"v_add_u32 v{16+j}, s29, v15")
        e(f"v_add_u32 v{19+j}, {2*SLOT}, v{16+j}")
        e(f"v_add_u32 v{WA1+j}, s30, v15")
        e(f"v_add_u32 v{WA1+3+j}, {2*SLOT}, v{WA1+j}")
    ACC = 128
    NACC = 6 if qkv else 12
    for i in range(NACC * 4):
        e(f"v_mov_b32 v{ACC+i}, 0")
    for i in range(12): e(f"v_mov_b32 v{CS+i}, 0")
    for i in range(4): e(f"v_mov_b32 v{ONES+i}, 0x3f803f80")
    e(f"s_mov_b32 s31, 0x3f803f80")
    stamp(name)
    def stat_reads():
        for i in range(8):
            e(f"ds_read_b128 {vr(XR+4*i,4)}, v{RS+2} offset:{XB+(i>>1)*16384+(i&1)*128}")
    SC = []
    def c(*ls): SC.append(["    " + l for l in ls])
    c(f"v_dot2_f32_bf16 v{RS+6}, v{XR}, s31, 0")
    c(f"v_dot2_f32_bf16 v{RS+7}, v{XR+1}, s31, 0")
    c(f"v_dot2_f32_bf16 v{RS+8}, v{XR}, v{XR}, 0")
    c(f"v_dot2_f32_bf16 v{RS+9}, v{XR+1}, v{XR+1}, 0")
    for i in range(2, 32, 2):
        c(f"v_dot2_f32_bf16 v{RS+6}, v{XR+i}, s31, v{RS+6}")
        c(f"v_dot2_f32_bf16 v{RS+7}, v{XR+i+1}, s31, v{RS+7}")
        c(f"v_dot2_f32_bf16 v{RS+8}, v{XR+i}, v{XR+i}, v{RS+8}")
        c(f"v_dot2_f32_bf16 v{RS+9}, v{XR+i+1}, v{XR+i+1}, v{RS+9}")
    c("s_nop 3", f"v_add_f32 v{RS+6}, v{RS+6}, v{RS+7}", f"v_add_f32 v{RS+8}, v{RS+8}, v{RS+9}")
    for ctl in ("quad_perm:[1,0,3,2]", "quad_perm:[2,3,0,1]", "row_half_mirror"):
        c("s_nop 1",
          f"v_add_f32_dpp v{RS+6}, v{RS+6}, v{RS+6} {ctl} row_mask:0xf bank_mask:0xf",
          f"v_add_f32_dpp v{RS+8}, v{RS+8}, v{RS+8} {ctl} row_mask:0xf bank_mask:0xf")
    c(f"v_mul_f32 v{RS+6}, 0x3b000000, v{RS+6}",
      f"v_mul_f32 v{RS+8}, 0x3b000000, v{RS+8}",
      f"v_fma_f32 v{RS+8}, -v{RS+6}, v{RS+6}, v{RS+8}",
      f"v_max_f32 v{RS+8}, 0, v{RS+8}",
      f"v_add_f32 v{RS+8}, 0x3727c5ac, v{RS+8}",
      f"v_rsq_f32 v{RS}, v{RS+8}",
      "s_nop 0",
      f"v_mul_f32 v{RS+1}, v{RS+6}, v{RS}",
      f"v_sub_f32 v{RS+1}, 0, v{RS+1}")
    NSC = len(SC)
    FS = [32, 80]
    def reads(st):
        base = FS[st & 1]; slot = st % R
        hi = 0 if slot < 2 else 3; so = (slot & 1) * SLOT
        nk = 2 if qkv else 1
        for kk in range(nk):
            ks = st * nk + kk
            for mt in range(2):
                e(f"ds_read_b128 {vr(base+(kk*2+mt)*4,4)}, v{24+(ks&3)} offset:{XB+(ks>>2)*16384+mt*4096}")
        for b in range(2):
            for j in range(3):
                wa = (16 if b == 0 else WA1) + hi + j
                for t2 in range(2):
                    e(f"ds_read_b64_tr_b16 {vr(base+16+(b*3+j)*4+t2*2,2)}, v{wa} offset:{so+t2*1536}")
    def mfmas(st):
        base = FS[st & 1]
        for b in range(2):
            for j in range(3):
                for mt in range(2):
                    if qkv: a = ACC + (mt*3+j)*4; x = base + (b*2+mt)*4
                    else:   a = ACC + ((b*2+mt)*3+j)*4; x = base + mt*4
                    e(f"v_mfma_f32_16x16x32_bf16 {vr(a,4)}, {vr(base+16+(b*3+j)*4,4)}, {vr(x,4)}, {vr(a,4)}")
                if b == 0:
                    e(f"v_mfma_f32_16x16x32_bf16 {vr(CS+4*j,4)}, {vr(base+16+j*4,4)}, {vr(ONES,4)}, {vr(CS+4*j,4)}")
    grp = (lambda st: st >> 1) if qkv else (lambda st: st >> 2)
    issued = 2
    ST0 = int(os.environ.get("ST0", "4" if XS else "2"))
    NSS = 3
    for st in range(S):
        tags = {("W", st), ("X", grp(st))}
        if st == ST0: tags |= {("X", g) for g in range(4)}
        last = max(i for i, t in enumerate(seq) if t in tags)
        e(f"s_waitcnt vmcnt({len(seq)-1-last}) lgkmcnt(0)")
        e("s_barrier")
        if st in (0, 1, 2, 4, 6, S-1): stamp(name)
        B = chunks_of(capture(reads, st))
        while issued < S and issued <= st + PDL:
            B += chunks_of(capture(dma, issued))
            issued += 1
        if XS and st < 3: B += chunks_of(capture(dmax, st + 1))
        if st == ST0: B += chunks_of(capture(stat_reads))
        if ST0 < st <= ST0 + NSS:
            q = st - ST0 - 1
            B += SC[q*NSC//NSS:(q+1)*NSC//NSS]
        if st >= 1: interleave(capture(mfmas, st - 1), B)
        else:
            for ch in B: L.extend(ch)
    e("s_waitcnt lgkmcnt(0)")
    mfmas(S - 1)
    e("s_barrier")
    stamp(name)
    e("s_nop 7"); e("s_nop 3")
    e(f"ds_write_b64 v{RS+3}, v[{RS}:{RS+1}]")
    for j in range(3):
        e(f"ds_write_b128 v{RS+4}, {vr(CS+4*j,4)} offset:{j*1024}")
    e("s_waitcnt lgkmcnt(0)")
    e("s_barrier")
    e(f"ds_read_b64 v[32:33], v{RS+5}")
    e(f"ds_read_b64 v[34:35], v{RS+5} offset:128")
    for j in range(3):
        e(f"ds_read_b128 {vr(36+4*j,4)}, v{RS+10} offset:{j*1024}")
    e("s_waitcnt lgkmcnt(0)")
    if qkv:
        for p in range(6):
            e(f"v_pk_add_f32 {vr(CS+2*p,2)}, {vr(CS+2*p,2)}, {vr(36+2*p,2)}")
    tn = 0
    for b in range(1 if qkv else 2):
        for mt in range(2):
            for j in range(3):
                a = (ACC + (mt*3+j)*4) if qkv else (ACC + ((b*2+mt)*3+j)*4)
                cc = (CS if b == 0 else 36) + 4*j
                for p in range(2):
                    t = 48 + 2*(tn % 4); tn += 1
                    e(f"v_pk_mul_f32 {vr(t,2)}, {vr(cc+2*p,2)}, {vr(32+2*mt,2)} op_sel:[0,1] op_sel_hi:[1,1]")
                    e(f"v_pk_fma_f32 {vr(a+2*p,2)}, {vr(a+2*p,2)}, {vr(32+2*mt,2)}, {vr(t,2)} op_sel_hi:[1,0,1]")
    if not qkv:
        e(f"s_cmp_eq_u32 s{s_wm}, 0")
        e(f"s_cbranch_scc1 {name}_nosw")
        for i in range(24):
            e(f"v_swap_b32 v{ACC+i}, v{ACC+24+i}")
        lab(f"{name}_nosw")
    e("v_lshlrev_b32 v6, 5, v4")
    e("v_lshl_add_u32 v6, v5, 3, v6")
    if qkv:
        e(f"s_lshl_b32 s{s_t}, s{s_wave}, 9")
        e(f"v_add_u32 v7, s{s_t}, v6")
        e("v_lshrrev_b32 v11, 2, v4")
        e("v_and_b32 v12, 3, v4")
        e("v_lshl_add_u32 v11, v5, 2, v11")
        e("v_lshlrev_b32 v11, 5, v11")
        e("v_lshl_add_u32 v11, v12, 3, v11")
        e(f"v_add_u32 v11, s{s_t}, v11")
        e(f"s_mul_i32 s29, s{s_cg}, 12")
        e(f"s_mul_i32 s{s_t}, s{s_wn}, 3")
        e(f"s_add_u32 s29, s29, s{s_t}")
        e(f"s_lshl_b32 s30, s{s_rt}, 2")
        e(f"s_lshl_b32 s{s_t}, s{s_wm}, 1")
        e(f"s_add_u32 s30, s30, s{s_t}")
        e("s_nop 4")
        for j in range(3):
            for mt in range(2):
                a = ACC + (mt*3+j)*4
                e(f"v_cvt_pk_bf16_f32 v32, v{a}, v{a+1}")
                e(f"v_cvt_pk_bf16_f32 v33, v{a+2}, v{a+3}")
                e(f"s_add_u32 s{s_t}, s29, {j}")
                e(f"s_add_u32 s{s_t2}, s30, {mt}")
                e(f"s_cmp_ge_u32 s{s_t}, 64")
                e(f"s_cbranch_scc1 {name}_v{j}{mt}")
                e(f"s_lshl_b32 s{s_t}, s{s_t}, 16")
                e(f"s_lshl_b32 s{s_t2}, s{s_t2}, 9")
                e(f"s_add_u32 s{s_t}, s{s_t}, s{s_t2}")
                e(f"buffer_store_dwordx2 v[32:33], v6, {sr(sO,4)}, s{s_t} offen")
                e(f"s_branch {name}_n{j}{mt}")
                lab(f"{name}_v{j}{mt}")
                e("ds_write_b64 v7, v[32:33]")
                e("s_waitcnt lgkmcnt(0)")
                e("ds_read_b64_tr_b16 v[34:35], v11")
                e(f"s_sub_u32 s{s_t}, s{s_t}, 64")
                e(f"s_lshl_b32 s{s_t}, s{s_t}, 16")
                e(f"s_lshl_b32 s{s_t2}, s{s_t2}, 9")
                e(f"s_add_u32 s{s_t}, s{s_t}, s{s_t2}")
                e(f"s_add_u32 s{s_t}, s{s_t}, {WS_VT}")
                e("s_waitcnt lgkmcnt(0)")
                e(f"buffer_store_dwordx2 v[34:35], v6, {sr(sO,4)}, s{s_t} offen")
                lab(f"{name}_n{j}{mt}")
                e("s_nop 1")
    else:
        e(f"s_lshl_b32 s{s_t}, s{s_rt}, 6")
        e(f"s_lshl_b32 s{s_t2}, s{s_wm}, 5")
        e(f"s_add_u32 s{s_t}, s{s_t}, s{s_t2}")
        e(f"v_add_u32 v7, s{s_t}, v4")
        e(f"s_mov_b32 s{s_t}, 2752")
        e(f"v_mul_lo_u32 v7, v7, s{s_t}")
        e("v_lshl_add_u32 v7, v5, 3, v7")
        e(f"s_mul_i32 s29, s{s_cg}, 12")
        e(f"s_mul_i32 s{s_t}, s{s_wn}, 3")
        e(f"s_add_u32 s29, s29, s{s_t}")
        e("s_mov_b32 s30, 0xbfb8aa3b")
        e("s_nop 4")
        for j in range(3):
            e(f"s_add_u32 s{s_t}, s29, {j}")
            e(f"s_cmp_ge_u32 s{s_t}, 86")
            e(f"s_cbranch_scc1 {name}_skip{j}")
            e(f"s_lshl_b32 s{s_t}, s{s_t}, 5")
            for mt in range(2):
                g = ACC + (mt*3+j)*4; u = ACC + ((2+mt)*3+j)*4
                for r in range(4): e(f"v_mul_f32 v{32+r}, s30, v{g+r}")
                for r in range(4): e(f"v_exp_f32 v{32+r}, v{32+r}")
                e("s_nop 0")
                for r in range(4): e(f"v_add_f32 v{32+r}, 1.0, v{32+r}")
                for r in range(4): e(f"v_rcp_f32 v{32+r}, v{32+r}")
                e("s_nop 0")
                for r in range(4): e(f"v_mul_f32 v{32+r}, v{32+r}, v{u+r}")
                e(f"v_cvt_pk_bf16_f32 v{36+2*mt}, v32, v33")
                e(f"v_cvt_pk_bf16_f32 v{37+2*mt}, v34, v35")
                e(f"buffer_store_dwordx2 {vr(36+2*mt,2)}, v7, {sr(sO,4)}, s{s_t} offen offset:0" if mt == 0 else
                  f"buffer_store_dwordx2 {vr(36+2*mt,2)}, v41, {sr(sO,4)}, s{s_t} offen")
                if mt == 0: e(f"v_add_u32 v41, {16*2752}, v7")
            e("s_nop 1")
            lab(f"{name}_skip{j}")
    stamp(name)
    stamp_out(name)
    lab(f"{name}_done")
    e("s_endpgm")
    return name, 256, 512, 163840, 256

def gen_plain(mode):
    wo = mode == "wo"
    name = "k_wo_kernel" if wo else "k_down_kernel"
    MAPMODE = MAPS[mode]
    header(name)
    R = 4
    K = 512 if wo else 1376
    AS = 1024 if wo else 2752
    stages = [(k0, min(128, K - k0)) for k0 in range(0, K, 128)]
    S = len(stages)
    SLOT = 32768
    sA, sW, sR, sO = 8, 12, 16, 44
    s_wave, s_cg, s_rt, s_wm, s_wn, s_m0, s_ka, s_kw, s_t, s_t2 = 20, 21, 22, 23, 24, 25, 26, 27, 28, 29
    e(f"s_cmp_ge_u32 s2, 256")
    e(f"s_cbranch_scc1 {name}_done")
    stamp(name)
    e("s_load_dwordx2 s[32:33], s[0:1], 0")
    e("s_load_dwordx2 s[34:35], s[0:1], %d" % (16 if wo else 48))
    e("s_load_dwordx2 s[36:37], s[0:1], 56")
    e("s_load_dwordx2 s[40:41], s[0:1], 72")
    e("v_lshrrev_b32 v1, 6, v0")
    e("v_and_b32 v2, 63, v0")
    e("s_nop 0")
    e(f"v_readfirstlane_b32 s{s_wave}, v1")
    wgmap(s_cg, s_rt, MAPMODE)
    e(f"s_lshr_b32 s{s_wm}, s{s_wave}, 2")
    e(f"s_and_b32 s{s_wn}, s{s_wave}, 3")
    e("s_waitcnt lgkmcnt(0)")
    if wo:
        srd(sA, 40, 2048 * 1024, WS_O); srd(sW, 34, 512 * 1024)
        srd(sR, 32, 2048 * 1024); srd(sO, 40, 2048 * 1024, WS_H)
    else:
        srd(sA, 40, 2048 * 2752, WS_HM); srd(sW, 34, 1376 * 1024)
        srd(sR, 40, 2048 * 1024, WS_H); srd(sO, 36, 2048 * 1024)
    for i in range(2):
        e(f"s_lshl_b32 s{s_t}, s{s_wave}, 7")
        e(f"v_add_u32 v12, s{s_t}, v2")
        if i: e("v_add_u32 v12, 64, v12")
        e("v_lshrrev_b32 v13, 4, v12")
        e("v_and_b32 v14, 15, v12")
        e("v_and_b32 v15, 15, v13")
        e("v_xor_b32 v14, v14, v15")
        e(f"s_mov_b32 s{s_t}, {AS}")
        e(f"v_mul_lo_u32 v13, v13, s{s_t}")
        e(f"v_lshl_add_u32 v{8+i}, v14, 4, v13")
        e("v_lshrrev_b32 v13, 3, v12")
        e("v_and_b32 v14, 7, v12")
        e("v_bfe_u32 v15, v13, 1, 1")
        e("v_bfe_u32 v16, v13, 3, 1")
        e("v_lshl_or_b32 v15, v16, 1, v15")
        e("v_lshlrev_b32 v15, 1, v15")
        e("v_xor_b32 v14, v14, v15")
        e("v_lshlrev_b32 v13, 10, v13")
        e(f"v_lshl_add_u32 v{10+i}, v14, 4, v13")
    e(f"s_mul_i32 s{s_ka}, s{s_rt}, {64*AS}")
    e(f"s_lshl_b32 s{s_kw}, s{s_cg}, 7")
    e(f"s_lshl_b32 s{s_m0}, s{s_wave}, 11")
    VG = os.environ.get("VG", "") == "1" and wo
    def dma(st):
        slot = st % R
        if VG:
            for i in range(2):
                e(f"buffer_load_dwordx4 {vr(160+st*16+i*8,4)}, v{8+i}, {sr(sA,4)}, s{s_ka} offen")
                e(f"buffer_load_dwordx4 {vr(164+st*16+i*8,4)}, v{10+i}, {sr(sW,4)}, s{s_kw} offen")
            e(f"s_add_u32 s{s_ka}, s{s_ka}, 256")
            e(f"s_add_u32 s{s_kw}, s{s_kw}, {128*1024}")
            return
        for i in range(2):
            e(f"s_add_u32 m0, s{s_m0}, {slot*SLOT + i*1024}")
            e("s_nop 0")
            e(f"buffer_load_dwordx4 v{8+i}, {sr(sA,4)}, s{s_ka} offen {DFL} lds")
            e(f"s_add_u32 m0, s{s_m0}, {slot*SLOT + 16384 + i*1024}")
            e("s_nop 0")
            e(f"buffer_load_dwordx4 v{10+i}, {sr(sW,4)}, s{s_kw} offen {DFL} lds")
        e(f"s_add_u32 s{s_ka}, s{s_ka}, 256")
        e(f"s_add_u32 s{s_kw}, s{s_kw}, {128*1024}")
    D = int(os.environ.get("PD", "2"))
    D0 = int(os.environ.get("PD0", "2"))
    issued = min(D0, S)
    for st in range(issued): dma(st)
    e("v_and_b32 v4, 15, v2")
    e("v_lshrrev_b32 v5, 4, v2")
    e(f"v_lshl_add_u32 v140, v2, 4, s{s_m0}")
    e(f"v_add_u32 v141, {2*SLOT}, v140")
    e(f"s_lshl_b32 s{s_t}, s{s_rt}, 6")
    e(f"s_lshl_b32 s{s_t2}, s{s_wm}, 5")
    e(f"s_add_u32 s{s_t}, s{s_t}, s{s_t2}")
    e(f"v_add_u32 v6, s{s_t}, v4")
    e("v_lshlrev_b32 v6, 10, v6")
    e("v_lshl_add_u32 v6, v5, 3, v6")
    e(f"s_lshl_b32 s{s_t}, s{s_cg}, 7")
    e(f"s_lshl_b32 s{s_t2}, s{s_wn}, 5")
    e(f"s_add_u32 s30, s{s_t}, s{s_t2}")
    e("v_add_u32 v7, 16384, v6")
    e(f"buffer_load_dwordx2 v[136:137], v6, {sr(sR,4)}, s30 offen")
    e(f"buffer_load_dwordx2 v[138:139], v7, {sr(sR,4)}, s30 offen")
    e(f"s_lshl_b32 s{s_t}, s{s_wm}, 13")
    e("v_lshlrev_b32 v12, 8, v4")
    e(f"v_add_u32 v12, s{s_t}, v12")
    e("v_and_b32 v13, 3, v4")
    e("v_xor_b32 v13, v13, v5")
    e("v_lshrrev_b32 v14, 2, v4")
    for k in range(4):
        e(f"v_xor_b32 v15, {k}, v14")
        e("v_lshl_or_b32 v15, v15, 2, v13")
        e(f"v_lshl_add_u32 v{16+k}, v15, 4, v12")
        e(f"v_add_u32 v{20+k}, {2*SLOT}, v{16+k}")
    e("v_lshrrev_b32 v12, 2, v4")
    e("v_and_b32 v13, 3, v4")
    e("v_lshl_add_u32 v14, v5, 3, v12")
    e("v_lshlrev_b32 v14, 7, v14")
    e("v_lshl_add_u32 v14, v13, 3, v14")
    e("v_lshrrev_b32 v15, 1, v12")
    e("v_and_b32 v13, 1, v5")
    e("v_lshl_or_b32 v15, v13, 1, v15")
    e(f"v_xor_b32 v15, s{s_wn}, v15")
    e("v_lshl_add_u32 v24, v15, 5, v14")
    e("v_add_u32 v24, 16384, v24")
    e(f"v_add_u32 v25, {2*SLOT}, v24")
    ACC = 128
    for i in range(8): e(f"v_mov_b32 v{ACC+i}, 0")
    FS = [28, 76]
    def reads(st):
        base = FS[st & 1]; slot = st % R; hi = slot >= 2; so = (slot & 1) * SLOT
        for ks in range(stages[st][1] // 32):
            for mt in range(2):
                e(f"ds_read_b128 {vr(base+(ks*2+mt)*4,4)}, v{(20 if hi else 16)+ks} offset:{so+mt*4096}")
            for t2 in range(2):
                e(f"ds_read_b64_tr_b16 {vr(base+32+ks*4+t2*2,2)}, v{25 if hi else 24} offset:{so+ks*4096+t2*512}")
    def mfmas(st):
        base = FS[st & 1]
        for ks in range(stages[st][1] // 32):
            for mt in range(2):
                a = ACC + mt * 4
                e(f"v_mfma_f32_16x16x32_bf16 {vr(a,4)}, {vr(base+32+ks*4,4)}, {vr(base+(ks*2+mt)*4,4)}, {vr(a,4)}")
    for st in range(S):
        after = (issued - 1 - st) * 4 + (2 if st < min(D0, S) else 0)
        if VG:
            e(f"s_waitcnt vmcnt({after})")
            for i in range(2):
                e(f"ds_write_b128 v{140+(st>>1)}, {vr(160+st*16+i*8,4)} offset:{(st&1)*SLOT+i*1024}")
                e(f"ds_write_b128 v{140+(st>>1)}, {vr(164+st*16+i*8,4)} offset:{(st&1)*SLOT+16384+i*1024}")
        e(f"s_waitcnt vmcnt({after}) lgkmcnt(0)")
        e("s_barrier")
        if st in (0,1,2,3,5,8): stamp(name)
        B = chunks_of(capture(reads, st))
        while issued < S and issued <= st + D:
            B += chunks_of(capture(dma, issued)); issued += 1
        if st >= 1: interleave(capture(mfmas, st - 1), B)
        else:
            for c in B: L.extend(c)
    e("s_waitcnt vmcnt(0) lgkmcnt(0)")
    mfmas(S - 1)
    e("s_nop 7"); e("s_nop 1")
    for mt in range(2):
        a = ACC + mt*4; r = 136 + 2*mt
        e(f"v_lshlrev_b32 v12, 16, v{r}")
        e(f"v_and_b32 v13, 0xffff0000, v{r}")
        e(f"v_lshlrev_b32 v14, 16, v{r+1}")
        e(f"v_and_b32 v15, 0xffff0000, v{r+1}")
        for i in range(4): e(f"v_add_f32 v{12+i}, v{12+i}, v{a+i}")
        e(f"v_cvt_pk_bf16_f32 v{r}, v12, v13")
        e(f"v_cvt_pk_bf16_f32 v{r+1}, v14, v15")
        e(f"buffer_store_dwordx2 {vr(r,2)}, v{6+mt}, {sr(sO,4)}, s30 offen")
    stamp(name)
    stamp_out(name)
    lab(f"{name}_done")
    e("s_endpgm")
    return name, 256, 512, 131072, 224

def gen_attn():
    name = "k_attn_kernel"
    header(name)
    sWS, sO = 8, 12
    s_wave, s_head, s_qt, s_t, s_t2, s_kb, s_vb = 20, 21, 22, 23, 24, 25, 26
    e("s_cmp_ge_u32 s2, 512")
    e(f"s_cbranch_scc1 {name}_done")
    stamp(name)
    e("s_load_dwordx2 s[40:41], s[0:1], 72")
    PF = os.environ.get("PF", "1") == "1"
    if PF:
        e("s_load_dwordx2 s[42:43], s[0:1], 16")
        e("s_load_dwordx4 s[44:47], s[0:1], 32")
        e("s_load_dwordx2 s[48:49], s[0:1], 48")
    e("v_lshrrev_b32 v1, 6, v0")
    e("v_and_b32 v2, 63, v0")
    e("s_nop 0")
    e(f"v_readfirstlane_b32 s{s_wave}, v1")
    e(f"s_lshr_b32 s{s_head}, s2, 4")
    e(f"s_and_b32 s{s_qt}, s2, 15")
    e(f"s_lshl_b32 s{s_qt}, s{s_qt}, 3")
    e("v_and_b32 v4, 15, v2")
    e("v_lshrrev_b32 v5, 4, v2")
    e("v_lshlrev_b32 v6, 5, v4")
    e("v_lshl_add_u32 v6, v5, 3, v6")
    e("v_lshlrev_b32 v7, 4, v2")
    e("s_waitcnt lgkmcnt(0)")
    srd(sWS, 40, 6 << 20)
    srd(sO, 40, 2048 * 1024, WS_O)
    e(f"s_lshl_b32 s{s_t}, s{s_head}, 16")
    e(f"s_lshl_b32 s{s_t2}, s{s_qt}, 9")
    e(f"s_add_u32 s{s_t2}, s{s_t2}, s{s_t}")
    QF, KF, SS = 8, 12, 48
    VF = KF
    T = 116
    e(f"s_lshl_b32 s{s_t}, s{s_wave}, 9")
    e(f"s_add_u32 s{s_t}, s{s_t2}, s{s_t}")
    e(f"buffer_load_dwordx2 {vr(QF,2)}, v6, {sr(sWS,4)}, s{s_t} offen")
    e(f"s_cmp_lt_u32 s{s_wave}, 4")
    e(f"s_mov_b32 s{s_vb}, {WS_VT-8192-12288}")
    e(f"s_cselect_b32 s{s_kb}, {32*65536-8192}, s{s_vb}")
    e(f"s_add_u32 s{s_kb}, s{s_kb}, s{s_t2}")
    e(f"s_mul_i32 s{s_vb}, s{s_wave}, 3072")
    e(f"s_add_u32 s{s_kb}, s{s_kb}, s{s_vb}")
    for i in range(3):
        e(f"s_add_u32 m0, s{s_vb}, {i*1024}")
        e("s_nop 0")
        e(f"buffer_load_dwordx4 v7, {sr(sWS,4)}, s{s_kb} offen lds")
        if i < 2: e(f"s_add_u32 s{s_kb}, s{s_kb}, 1024")
    e(f"s_add_u32 s{s_qt}, s{s_qt}, s{s_wave}")
    e(f"s_lshl_b32 s{s_t}, s{s_wave}, 9")
    e(f"v_add_u32 v10, s{s_t}, v6")
    e("v_lshlrev_b32 v7, 2, v5")
    e("v_sub_u32 v7, v7, v4")
    e("v_mov_b32 v3, 0xf149f2ca")
    e(f"s_cmp_lt_u32 s{s_wave}, 4")
    e(f"s_cbranch_scc1 {name}_w0")
    e("s_waitcnt vmcnt(3)")
    e(f"s_branch {name}_w1")
    lab(f"{name}_w0")
    e("s_waitcnt vmcnt(0)")
    lab(f"{name}_w1")
    e("s_barrier")
    stamp(name)
    for t in range(17):
        e(f"ds_read_b64 {vr(KF+2*t,2)}, v10 offset:{t*512}")
    for t in range(17):
        e(f"s_waitcnt lgkmcnt({min(15,16-t)})")
        e(f"v_mfma_f32_16x16x16_bf16 {vr(SS+4*t,4)}, {vr(KF+2*t,2)}, {vr(QF,2)}, 0")
    e("s_waitcnt vmcnt(0)")
    e("s_barrier")
    e("s_nop 4")
    for t in range(17):
        e(f"ds_read_b64 {vr(VF+2*t,2)}, v10 offset:{12288+t*512}")
    if PF:
        srd(52, 42, 512 * 1024); srd(56, 44, 512 * 2752); srd(60, 46, 512 * 2752); srd(64, 48, 1376 * 1024)
        e("s_lshr_b32 s50, s2, 3")
        e("s_lshl_b32 s50, s50, 3")
        e(f"s_add_u32 s50, s50, s{s_wave}")
        e("s_bfe_u32 s51, s2, 0x10002")
        e(f"s_lshl_b32 m0, s{s_wave}, 10")
        e("v_lshrrev_b32 v1, 5, v2")
        e("v_lshlrev_b32 v1, 10, v1")
        e("v_and_b32 v3, 31, v2")
        e("v_lshl_add_u32 v1, v3, 4, v1")
        e("v_mov_b32 v3, 0xf149f2ca")
        e("s_lshl_b32 s68, s50, 11")
        e("s_lshl_b32 s69, s51, 9")
        e("s_add_u32 s68, s68, s69")
        e("buffer_load_dwordx4 v1, s[52:55], s68 offen lds")
        e("s_mul_i32 s69, s50, 2752")
        e("s_mul_i32 s51, s51, 1536")
        e("s_add_u32 s69, s69, s51")
        e("v_lshlrev_b32 v1, 4, v2")
        e("buffer_load_dwordx4 v1, s[56:59], s69 offen lds")
        e("buffer_load_dwordx4 v1, s[60:63], s69 offen lds")
        e("s_add_u32 s69, s69, 1024")
        e("buffer_load_dwordx4 v1, s[56:59], s69 offen lds")
        e("buffer_load_dwordx4 v1, s[60:63], s69 offen lds")
        e("v_lshrrev_b32 v1, 5, v2")
        e("v_lshlrev_b32 v1, 10, v1")
        e("v_and_b32 v3, 31, v2")
        e("v_lshl_add_u32 v1, v3, 4, v1")
        e("v_mov_b32 v3, 0xf149f2ca")
        e("buffer_load_dwordx4 v1, s[64:67], s68 offen lds")
        e("s_add_u32 s68, s68, 0x100000")
        e("buffer_load_dwordx4 v1, s[64:67], s68 offen lds")
        if os.environ.get("CP", "1") == "1":
            e("s_cmp_ge_u32 s50, 15")
            e(f"s_cbranch_scc1 {name}_nocp")
            e("s_getpc_b64 s[68:69]")
            lab(f"{name}_pc")
            e(f"s_add_u32 s68, s68, k_wo_kernel-{name}_pc")
            e("s_addc_u32 s69, s69, 0")
            e("s_lshl_b32 s51, s50, 10")
            e("v_lshlrev_b32 v1, 4, v2")
            e("v_add_u32 v1, s51, v1")
            e("v_min_u32 v1, k_end_label-k_wo_kernel-16, v1")
            e("global_load_lds_dwordx4 v1, s[68:69]")
            lab(f"{name}_nocp")
    stamp(name)
    for r in range(4):
        e(f"v_add_u32 v1, {r}, v7")
        e("v_cmp_lt_i32 vcc, 0, v1")
        e("s_nop 1")
        e(f"v_cndmask_b32 v{SS+r}, v3, v{SS+r}, vcc")
        e(f"v_cndmask_b32 v{SS+64+r}, v{SS+64+r}, v3, vcc")
    for t in range(16):
        e(f"s_cmp_ge_u32 s{s_qt}, {16-t}")
        e(f"s_cbranch_scc1 {name}_m{t}")
        for r in range(4): e(f"v_mov_b32 v{SS+4*t+r}, v3")
        lab(f"{name}_m{t}")
    e(f"v_max3_f32 v{T}, v{SS}, v{SS+1}, v{SS+2}")
    e(f"v_max3_f32 v{T+1}, v{SS+3}, v{SS+4}, v{SS+5}")
    i = 6
    while i + 3 < 68:
        e(f"v_max3_f32 v{T}, v{T}, v{SS+i}, v{SS+i+1}")
        e(f"v_max3_f32 v{T+1}, v{T+1}, v{SS+i+2}, v{SS+i+3}")
        i += 4
    assert i == 66
    e(f"v_max3_f32 v{T}, v{T}, v{SS+66}, v{SS+67}")
    e(f"v_max_f32 v{T}, v{T}, v{T+1}")
    e(f"v_xor_b32 v{T+2}, 16, v2"); e(f"v_lshlrev_b32 v{T+2}, 2, v{T+2}")
    e(f"v_xor_b32 v{T+3}, 32, v2"); e(f"v_lshlrev_b32 v{T+3}, 2, v{T+3}")
    for a in (T+2, T+3):
        e(f"ds_bpermute_b32 v{T+1}, v{a}, v{T}")
        e("s_waitcnt lgkmcnt(0)")
        e(f"v_max_f32 v{T}, v{T}, v{T+1}")
    e("s_mov_b32 s30, 0x3eb8aa3b")
    e(f"v_mul_f32 v{T}, s30, v{T}")
    e(f"v_sub_f32 v{T}, 0, v{T}")
    e(f"v_mov_b32 v{T+4}, s30")
    for i in range(68):
        e(f"v_fma_f32 v{SS+i}, v{SS+i}, v{T+4}, v{T}")
    for i in range(68):
        e(f"v_exp_f32 v{SS+i}, v{SS+i}")
    e("s_nop 0")
    e(f"v_pk_add_f32 {vr(T+6,2)}, {vr(SS,2)}, {vr(SS+2,2)}")
    e(f"v_pk_add_f32 {vr(T+8,2)}, {vr(SS+4,2)}, {vr(SS+6,2)}")
    for i in range(8, 68, 4):
        e(f"v_pk_add_f32 {vr(T+6,2)}, {vr(T+6,2)}, {vr(SS+i,2)}")
        e(f"v_pk_add_f32 {vr(T+8,2)}, {vr(T+8,2)}, {vr(SS+i+2,2)}")
    e(f"v_pk_add_f32 {vr(T+6,2)}, {vr(T+6,2)}, {vr(T+8,2)}")
    e(f"v_add_f32 v{T+6}, v{T+6}, v{T+7}")
    for p in range(9):
        for h in range(4 if p < 8 else 2):
            e(f"v_cvt_pk_bf16_f32 v{SS+8*p+h}, v{SS+8*p+2*h}, v{SS+8*p+2*h+1}")
    for a in (T+2, T+3):
        e(f"ds_bpermute_b32 v{T+7}, v{a}, v{T+6}")
        e("s_waitcnt lgkmcnt(0)")
        e(f"v_add_f32 v{T+6}, v{T+6}, v{T+7}")
    e(f"v_rcp_f32 v{T}, v{T+6}")
    stamp(name)
    O1, O2 = 120, 124
    e(f"v_mfma_f32_16x16x16_bf16 {vr(O1,4)}, {vr(VF+32,2)}, {vr(SS+64,2)}, 0")
    e(f"v_mfma_f32_16x16x32_bf16 {vr(O2,4)}, {vr(VF,4)}, {vr(SS,4)}, 0")
    for p in range(1, 8):
        a = O1 if p & 1 else O2
        if p == 1:
            e("s_nop 7")
        e(f"v_mfma_f32_16x16x32_bf16 {vr(a,4)}, {vr(VF+4*p,4)}, {vr(SS+8*p,4)}, {vr(a,4)}")
    e("s_nop 7"); e("s_nop 1")
    for r in range(4):
        e(f"v_add_f32 v{O1+r}, v{O1+r}, v{O2+r}")
    for r in range(4):
        e(f"v_mul_f32 v{O1+r}, v{O1+r}, v{T}")
    e(f"v_cvt_pk_bf16_f32 v160, v{O1}, v{O1+1}".replace("v160", f"v{O1}"))
    e(f"v_cvt_pk_bf16_f32 v{O1+1}, v{O1+2}, v{O1+3}")
    e("v_lshlrev_b32 v7, 10, v4")
    e("v_lshl_add_u32 v7, v5, 3, v7")
    e(f"s_lshl_b32 s{s_t}, s{s_qt}, 14")
    e(f"s_lshl_b32 s{s_t2}, s{s_head}, 5")
    e(f"s_add_u32 s{s_t}, s{s_t}, s{s_t2}")
    e(f"buffer_store_dwordx2 v[120:121], v7, {sr(sO,4)}, s{s_t} offen")
    e("s_waitcnt vmcnt(0)")
    stamp(name)
    stamp_out(name)
    lab(f"{name}_done")
    e("s_endpgm")
    return name, 512, 512, 24576, 128

def main():
    kernels = []
    RAW = os.environ.get("RAW", "00")
    kernels.append((gen_ln_gemm2 if RAW[0] == "1" else gen_ln_gemm)("qkv"))
    kernels.append(gen_attn())
    kernels.append(gen_plain("wo"))
    kernels.append((gen_ln_gemm2 if RAW[1] == "1" else gen_ln_gemm)("gu"))
    kernels.append(gen_plain("down"))
    out = []
    src = open("cdna_kernels/%s.s.ref" % NAME).read().split("\n")
    for ln in src:
        if ln.startswith("; Override"): break
        out.append(ln)
    for (n, g, b, lds, vg) in kernels:
        out.append(f"; @launch kernel={n} grid=({g},1,1) block=({b},1,1) lds={lds}")
    out.append('.amdgcn_target "amdgcn-amd-amdhsa--gfx950"')
    out += L
    out.append("k_end_label:")
    out.append('.section .rodata,"a"')
    for (n, g, b, lds, vg) in kernels:
        out.append(".p2align 6")
        out.append(f".amdhsa_kernel {n}")
        out.append(f"  .amdhsa_next_free_vgpr {vg}")
        out.append("  .amdhsa_next_free_sgpr 102")
        out.append(f"  .amdhsa_accum_offset {vg}")
        out.append("  .amdhsa_group_segment_fixed_size 0")
        out.append("  .amdhsa_kernarg_size 80")
        out.append("  .amdhsa_user_sgpr_count 2")
        out.append("  .amdhsa_user_sgpr_kernarg_segment_ptr 1")
        out.append("  .amdhsa_system_sgpr_workgroup_id_x 1")
        out.append(".end_amdhsa_kernel")
    open("cdna_kernels/%s.s" % NAME, "w").write("\n".join(out) + "\n")

if __name__ == "__main__":
    main()
```

```python
import sys
NAME = "sequential_preLN__sliding_block__glu_gated_glu__prompt"
WS_QK, WS_VT, WS_O, WS_H, WS_HM = 0, 4 << 20, 6 << 20, 8 << 20, 10 << 20
WS_SIZE = 268435456
L = []
MAPS = dict(qkv="4x2", wo="4x2", gu="4x2", down="4x2")
import os
for _k in MAPS:
    if os.environ.get("MAP_"+_k): MAPS[_k] = os.environ["MAP_"+_k]
def e(s): L.append("    " + s)
def lab(s): L.append(s + ":")
def cmt(s): L.append("    ; " + s)
def vr(a, n=1): return f"v{a}" if n == 1 else f"v[{a}:{a+n-1}]"
def sr(a, n=1): return f"s{a}" if n == 1 else f"s[{a}:{a+n-1}]"

def srd(d, ptr, nbytes, add=0):
    if add:
        e(f"s_add_u32 s{d}, s{ptr}, {add}")
        e(f"s_addc_u32 s{d+1}, s{ptr+1}, 0")
    else:
        e(f"s_mov_b32 s{d}, s{ptr}")
        e(f"s_mov_b32 s{d+1}, s{ptr+1}")
    e(f"s_mov_b32 s{d+2}, {nbytes}")
    e(f"s_mov_b32 s{d+3}, 0x00020000")

def wgmap(s_cg, s_rt, m):
    if m == "cols":
        e(f"s_and_b32 s{s_cg}, s2, 7")
        e(f"s_lshr_b32 s{s_rt}, s2, 3")
    elif m == "rows":
        e(f"s_and_b32 s{s_rt}, s2, 7")
        e(f"s_lshl_b32 s{s_rt}, s{s_rt}, 2")
        e(f"s_bfe_u32 s{s_cg}, s2, 0x20003")
        e(f"s_add_u32 s{s_rt}, s{s_rt}, s{s_cg}")
        e(f"s_lshr_b32 s{s_cg}, s2, 5")
    elif m == "4x2":
        e(f"s_and_b32 s{s_rt}, s2, 3")
        e(f"s_lshl_b32 s{s_rt}, s{s_rt}, 3")
        e(f"s_bfe_u32 s{s_cg}, s2, 0x30003")
        e(f"s_add_u32 s{s_rt}, s{s_rt}, s{s_cg}")
        e(f"s_bfe_u32 s{s_cg}, s2, 0x10002")
        e(f"s_lshl_b32 s{s_cg}, s{s_cg}, 2")
        e(f"s_lshr_b32 s100, s2, 6")
        e(f"s_add_u32 s{s_cg}, s{s_cg}, s100")
    elif m == "2d":
        e(f"s_and_b32 s{s_rt}, s2, 1")
        e(f"s_lshl_b32 s{s_rt}, s{s_rt}, 4")
        e(f"s_bfe_u32 s{s_cg}, s2, 0x40003")
        e(f"s_add_u32 s{s_rt}, s{s_rt}, s{s_cg}")
        e(f"s_bfe_u32 s{s_cg}, s2, 0x20001")
        e(f"s_lshl_b32 s{s_cg}, s{s_cg}, 1")
        e(f"s_lshr_b32 s100, s2, 7")
        e(f"s_add_u32 s{s_cg}, s{s_cg}, s100")

import os
STAMP = os.environ.get("STAMP", "")
DFL = os.environ.get("DFL", "")
PDL = int(os.environ.get("PDL", "3"))
NST = [0]
def stamp(kn):
    if STAMP != kn: return
    i = NST[0]; NST[0] += 1
    e(f"s_memtime s[{70+2*i}:{71+2*i}]")
def stamp_out(kn, wg=37):
    if STAMP != kn: return
    e("s_waitcnt lgkmcnt(0) vmcnt(0)")
    e(f"s_cmp_lg_u32 s2, {wg}")
    e(f"s_cbranch_scc1 {kn}_nost")
    e("s_load_dwordx2 s[96:97], s[0:1], 64")
    e("v_lshrrev_b32 v1, 6, v0")
    e("v_lshlrev_b32 v1, 5, v1")
    e("s_waitcnt lgkmcnt(0)")
    for i in range(min(8, NST[0])):
        e(f"s_sub_u32 s98, s{70+2*i}, s70")
        e(f"v_mov_b32 v2, s98")
        e(f"global_store_dword v1, v2, s[96:97] offset:{4*i}")
    lab(f"{kn}_nost")

def capture(fn, *a):
    global L
    old = L; L = []
    fn(*a)
    r = L; L = old
    return r
def chunks_of(lines):
    out = []; i = 0
    while i < len(lines):
        if "m0" in lines[i]:
            out.append(lines[i:i+3]); i += 3
        else:
            out.append([lines[i]]); i += 1
    return out
def interleave(A, B):
    global L
    n = len(A); m = len(B); j = 0
    for i, a in enumerate(A):
        L.append(a)
        tgt = (i + 1) * m // n
        while j < tgt:
            L += B[j]; j += 1
    while j < m:
        L += B[j]; j += 1

def header(name):
    L.append(".text")
    L.append(f".globl {name}")
    L.append(".p2align 8")
    L.append(f".type {name},@function")
    lab(name)

for p in range(768):
    assert (p * 2731) >> 16 == p // 24

def gen_ln_gemm(mode):
    qkv = mode == "qkv"
    name = "k_qkv_kernel" if qkv else "k_gu_kernel"
    MAPMODE = MAPS[mode]
    header(name)
    R = 4; S = 8 if qkv else 16
    WROW = 3072 if qkv else 2752
    KADV = (64 if qkv else 32) * WROW
    XB = 0; WB = 65536; SLOT = 24576
    XR = 176; RS = 208
    sX, sW, sO = 8, 12, 16
    s_wave, s_cg, s_rt, s_wm, s_wn, s_m0, s_k, s_t, s_t2 = 20, 21, 22, 23, 24, 25, 26, 27, 28
    e(f"s_cmp_ge_u32 s2, 256")
    e(f"s_cbranch_scc1 {name}_done")
    stamp(name)
    e("s_load_dwordx4 s[32:35], s[0:1], 0")
    e("s_load_dwordx4 s[36:39], s[0:1], 32")
    e("s_load_dwordx2 s[40:41], s[0:1], 72")
    e("v_lshrrev_b32 v1, 6, v0")
    e("v_and_b32 v2, 63, v0")
    e("s_nop 0")
    e(f"v_readfirstlane_b32 s{s_wave}, v1")
    wgmap(s_cg, s_rt, MAPMODE)
    e(f"s_lshr_b32 s{s_wm}, s{s_wave}, 2")
    e(f"s_and_b32 s{s_wn}, s{s_wave}, 3")
    e("s_waitcnt lgkmcnt(0)")
    if qkv:
        srd(sX, 32, 2048 * 1024)
        srd(sW, 34, 512 * 3072)
        srd(sO, 40, 6 << 20)
    else:
        srd(sX, 40, 2048 * 1024, WS_H)
        e(f"s_cmp_eq_u32 s{s_wm}, 0")
        e("s_cselect_b32 s42, s36, s38")
        e("s_cselect_b32 s43, s37, s39")
        srd(sW, 42, 512 * 2752)
        srd(sO, 40, 2048 * 2752, WS_HM)
    TP = os.environ.get("TP", "0") == "1" and qkv
    if TP:
        e("s_lshr_b32 s44, s2, 3")
        e("s_lshl_b32 s44, s44, 3")
        e(f"s_add_u32 s44, s44, s{s_wave}")
        e("s_mul_i32 s44, s44, 6144")
        e("s_bfe_u32 s45, s2, 0x10002")
        e("s_mul_i32 s45, s45, 1536")
        e("s_add_u32 s44, s44, s45")
        e("v_lshlrev_b32 v3, 4, v2")
        e("v_cmp_gt_u32 vcc, 32, v2")
        e("v_mov_b32 v4, 2560")
        e("v_mov_b32 v5, 1024")
        e("v_cndmask_b32 v4, v4, v5, vcc")
        e("v_add_u32 v4, v4, v3")
        e("v_mov_b32 v236, v3"); e("v_mov_b32 v237, v4")
    e("v_lshrrev_b32 v4, 3, v2")
    e("v_and_b32 v5, 7, v2")
    e(f"s_lshl_b32 s{s_t}, s{s_wave}, 3")
    e(f"v_add_u32 v6, s{s_t}, v4")
    e("v_lshlrev_b32 v3, 10, v6")
    e("v_lshl_add_u32 v3, v5, 4, v3")
    e(f"s_lshl_b32 s{s_t}, s{s_rt}, 16")
    for i in range(8):
        e(f"buffer_load_dwordx4 {vr(XR+4*i,4)}, v3, {sr(sX,4)}, s{s_t} offen offset:{i*128}")
    e(f"s_mul_i32 s{s_t2}, s{s_wn}, 192")
    for i in range(3):
        e(f"v_add_u32 v11, s{s_t2}, v2")
        if i: e(f"v_add_u32 v11, {i*64}, v11")
        e("v_mul_u32_u24 v12, 2731, v11")
        e("v_lshrrev_b32 v12, 16, v12")
        e("v_mul_u32_u24 v13, 24, v12")
        e("v_sub_u32 v13, v11, v13")
        e("v_bfe_u32 v14, v12, 1, 1")
        e("v_bfe_u32 v15, v12, 3, 1")
        e("v_lshl_or_b32 v14, v15, 1, v14")
        e("v_lshlrev_b32 v14, 1, v14")
        if not os.environ.get("NOSWZ"): e("v_xor_b32 v13, v13, v14")
        e(f"s_mov_b32 s{s_t}, {WROW}")
        e(f"v_mul_lo_u32 v12, v12, s{s_t}")
        e(f"v_lshl_add_u32 v{8+i}, v13, 4, v12")
    e(f"s_mul_i32 s{s_k}, s{s_cg}, 384")
    if qkv:
        e(f"s_mul_i32 s{s_t}, s{s_wm}, {32*3072}")
        e(f"s_add_u32 s{s_k}, s{s_k}, s{s_t}")
    e(f"s_mul_i32 s{s_m0}, s{s_wave}, 3072")
    e(f"s_add_u32 s{s_m0}, s{s_m0}, {WB}")
    def dma(st):
        slot = st % R
        for i in range(3):
            e(f"s_add_u32 m0, s{s_m0}, {slot*SLOT + i*1024}")
            e("s_nop 0")
            e(f"buffer_load_dwordx4 v{8+i}, {sr(sW,4)}, s{s_k} offen {DFL} lds")
        e(f"s_add_u32 s{s_k}, s{s_k}, {KADV}")
    dma(0)
    if TP:
        e(f"buffer_load_dwordx4 v[224:227], v236, {sr(sW,4)}, s44 offen")
        e(f"buffer_load_dwordx4 v[228:231], v237, {sr(sW,4)}, s44 offen")
        e(f"buffer_load_dwordx4 v[232:235], v236, {sr(sW,4)}, s44 offen offset:3584")
    e("v_mov_b32 v28, v4"); e("v_mov_b32 v29, v5"); e("v_mov_b32 v30, v6")
    e("v_and_b32 v4, 15, v2")
    e("v_lshrrev_b32 v5, 4, v2")
    e(f"s_lshl_b32 s{s_t}, s{s_wm}, 15")
    e("v_lshlrev_b32 v6, 10, v4")
    e(f"v_add_u32 v6, s{s_t}, v6")
    e("v_and_b32 v7, 3, v4")
    e("v_xor_b32 v7, v7, v5")
    e("v_lshrrev_b32 v11, 2, v4")
    for k in range(4):
        e(f"v_xor_b32 v12, {k}, v11")
        e("v_lshl_or_b32 v12, v12, 2, v7")
        e(f"v_lshl_add_u32 v{24+k}, v12, 4, v6")
    e("v_lshrrev_b32 v11, 2, v4")
    e("v_and_b32 v12, 3, v4")
    e("v_lshl_add_u32 v13, v5, 3, v11")
    e("v_mul_u32_u24 v13, 384, v13")
    e("v_lshl_add_u32 v13, v12, 3, v13")
    e(f"v_add_u32 v13, {WB}, v13")
    e("v_lshrrev_b32 v14, 1, v11")
    e("v_and_b32 v15, 1, v5")
    e("v_lshl_or_b32 v14, v15, 1, v14")
    e(f"s_mul_i32 s{s_t}, s{s_wn}, 3")
    for j in range(3):
        e(f"s_add_u32 s{s_t2}, s{s_t}, {j}")
        e(f"v_xor_b32 v15, s{s_t2}, v14")
        e(f"v_lshl_add_u32 v{16+j}, v15, 5, v13")
        e(f"v_add_u32 v{19+j}, {2*SLOT}, v{16+j}")
    ACC = 128
    NACC = 6 if qkv else 12
    for i in range(NACC * 4):
        e(f"v_mov_b32 v{ACC+i}, 0")
    e(f"s_waitcnt vmcnt({6 if TP else 3})")
    stamp(name)
    e(f"s_mov_b32 s31, 0x3f803f80")
    e(f"v_dot2_f32_bf16 v{RS+6}, v{XR}, s31, 0")
    e(f"v_dot2_f32_bf16 v{RS+7}, v{XR+1}, s31, 0")
    e(f"v_dot2_f32_bf16 v{RS+8}, v{XR}, v{XR}, 0")
    e(f"v_dot2_f32_bf16 v{RS+9}, v{XR+1}, v{XR+1}, 0")
    for i in range(2, 32, 2):
        e(f"v_dot2_f32_bf16 v{RS+6}, v{XR+i}, s31, v{RS+6}")
        e(f"v_dot2_f32_bf16 v{RS+7}, v{XR+i+1}, s31, v{RS+7}")
        e(f"v_dot2_f32_bf16 v{RS+8}, v{XR+i}, v{XR+i}, v{RS+8}")
        e(f"v_dot2_f32_bf16 v{RS+9}, v{XR+i+1}, v{XR+i+1}, v{RS+9}")
    e(f"s_nop 3")
    e(f"v_add_f32 v{RS+6}, v{RS+6}, v{RS+7}")
    e(f"v_add_f32 v{RS+8}, v{RS+8}, v{RS+9}")
    for ctl in ("quad_perm:[1,0,3,2]", "quad_perm:[2,3,0,1]", "row_half_mirror"):
        e(f"s_nop 1")
        e(f"v_add_f32_dpp v{RS+6}, v{RS+6}, v{RS+6} {ctl} row_mask:0xf bank_mask:0xf")
        e(f"v_add_f32_dpp v{RS+8}, v{RS+8}, v{RS+8} {ctl} row_mask:0xf bank_mask:0xf")
    dma(1)
    e(f"v_mul_f32 v{RS+6}, 0x3b000000, v{RS+6}")
    e(f"v_mul_f32 v{RS+8}, 0x3b000000, v{RS+8}")
    e(f"v_fma_f32 v{RS+8}, -v{RS+6}, v{RS+6}, v{RS+8}")
    e(f"v_max_f32 v{RS+8}, 0, v{RS+8}")
    e(f"v_add_f32 v{RS+8}, 0x3727c5ac, v{RS+8}")
    e(f"v_rsq_f32 v{RS}, v{RS+8}")
    e(f"s_nop 0")
    e(f"v_mul_f32 v{RS+1}, v{RS+6}, v{RS}")
    e(f"v_sub_f32 v{RS+1}, 0, v{RS+1}")
    e(f"v_xor_b32 v{RS+10}, v28, v29")
    e(f"s_and_b32 s{s_t}, s{s_wave}, 1")
    e(f"s_lshl_b32 s{s_t}, s{s_t}, 3")
    e(f"v_add_u32 v{RS+11}, s{s_t}, v{RS+10}")
    e(f"s_xor_b32 s{s_t}, s{s_t}, 8")
    e(f"v_add_u32 v{RS+12}, s{s_t}, v{RS+10}")
    e(f"v_lshlrev_b32 v{RS+2}, 10, v30")
    e(f"v_lshl_add_u32 v{RS+3}, v{RS+12}, 4, v{RS+2}")
    e(f"v_lshl_add_u32 v{RS+2}, v{RS+11}, 4, v{RS+2}")
    def norm(i):
        for r in range(4):
            x = XR + 4*i + r
            e(f"v_lshlrev_b32 v{RS+4}, 16, v{x}")
            e(f"v_and_b32 v{RS+5}, 0xffff0000, v{x}")
            e(f"v_fma_f32 v{RS+4}, v{RS+4}, v{RS}, v{RS+1}")
            e(f"v_fma_f32 v{RS+5}, v{RS+5}, v{RS}, v{RS+1}")
            e(f"v_cvt_pk_bf16_f32 v{x}, v{RS+4}, v{RS+5}")
        e(f"ds_write_b128 v{RS+2+(i&1)}, {vr(XR+4*i,4)} offset:{XB+(i>>1)*256}")
    norm(0); norm(1)
    stamp(name)
    FS = [32, 80]
    def reads(st):
        base = FS[st & 1]; slot = st % R
        wa = 16 if slot < 2 else 19; so = (slot & 1) * SLOT
        nk = 2 if qkv else 1
        for kk in range(nk):
            ks = st * nk + kk
            for mt in range(2):
                e(f"ds_read_b128 {vr(base+(kk*2+mt)*4,4)}, v{24+(ks&3)} offset:{XB+(ks>>2)*256+mt*16384}")
        for b in range(2):
            for j in range(3):
                for t2 in range(2):
                    e(f"ds_read_b64_tr_b16 {vr(base+16+(b*3+j)*4+t2*2,2)}, v{wa+j} offset:{so+b*12288+t2*1536}")
    def mfmas(st):
        base = FS[st & 1]
        for b in range(2):
            for j in range(3):
                for mt in range(2):
                    if qkv: a = ACC + (mt*3+j)*4; x = base + (b*2+mt)*4
                    else:   a = ACC + ((b*2+mt)*3+j)*4; x = base + mt*4
                    e(f"v_mfma_f32_16x16x32_bf16 {vr(a,4)}, {vr(base+16+(b*3+j)*4,4)}, {vr(x,4)}, {vr(a,4)}")
    issued = 2
    for st in range(S):
        e(f"s_waitcnt vmcnt({(issued-1-st)*3 + (3 if (TP and st == 0) else 0)}) lgkmcnt(0)")
        e("s_barrier")
        if st in (0, 1, 2, 4, 6, S-1): stamp(name)
        B = chunks_of(capture(reads, st)) if not (os.environ.get("NORD") and st > 1) else []
        while issued < S and issued <= st + PDL:
            if not os.environ.get("NODMA"): B += chunks_of(capture(dma, issued))
            issued += 1
        if qkv:
            if st + 2 < 8: B += chunks_of(capture(norm, st + 2))
        else:
            if st % 2 == 0 and st // 2 + 2 < 8: B += chunks_of(capture(norm, st // 2 + 2))
        if st >= 1: interleave(capture(mfmas, st - 1), B)
        else:
            for c in B: L.extend(c)
    e("s_waitcnt lgkmcnt(0)")
    mfmas(S - 1)
    e("s_barrier")
    stamp(name)
    e("v_lshlrev_b32 v6, 5, v4")
    e("v_lshl_add_u32 v6, v5, 3, v6")
    if qkv:
        e(f"s_lshl_b32 s{s_t}, s{s_wave}, 9")
        e(f"v_add_u32 v7, s{s_t}, v6")
        e("v_lshrrev_b32 v11, 2, v4")
        e("v_and_b32 v12, 3, v4")
        e("v_lshl_add_u32 v11, v5, 2, v11")
        e("v_lshlrev_b32 v11, 5, v11")
        e("v_lshl_add_u32 v11, v12, 3, v11")
        e(f"v_add_u32 v11, s{s_t}, v11")
        e(f"s_mul_i32 s29, s{s_cg}, 12")
        e(f"s_mul_i32 s{s_t}, s{s_wn}, 3")
        e(f"s_add_u32 s29, s29, s{s_t}")
        e(f"s_lshl_b32 s30, s{s_rt}, 2")
        e(f"s_lshl_b32 s{s_t}, s{s_wm}, 1")
        e(f"s_add_u32 s30, s30, s{s_t}")
        e("s_nop 4")
        for j in range(3):
            for mt in range(2):
                a = ACC + (mt*3+j)*4
                e(f"v_cvt_pk_bf16_f32 v32, v{a}, v{a+1}")
                e(f"v_cvt_pk_bf16_f32 v33, v{a+2}, v{a+3}")
                e(f"s_add_u32 s{s_t}, s29, {j}")
                e(f"s_add_u32 s{s_t2}, s30, {mt}")
                e(f"s_cmp_ge_u32 s{s_t}, 64")
                e(f"s_cbranch_scc1 {name}_v{j}{mt}")
                e(f"s_lshl_b32 s{s_t}, s{s_t}, 16")
                e(f"s_lshl_b32 s{s_t2}, s{s_t2}, 9")
                e(f"s_add_u32 s{s_t}, s{s_t}, s{s_t2}")
                e(f"buffer_store_dwordx2 v[32:33], v6, {sr(sO,4)}, s{s_t} offen")
                e(f"s_branch {name}_n{j}{mt}")
                lab(f"{name}_v{j}{mt}")
                e("ds_write_b64 v7, v[32:33]")
                e("s_waitcnt lgkmcnt(0)")
                e("ds_read_b64_tr_b16 v[34:35], v11")
                e(f"s_sub_u32 s{s_t}, s{s_t}, 64")
                e(f"s_lshl_b32 s{s_t}, s{s_t}, 16")
                e(f"s_lshl_b32 s{s_t2}, s{s_t2}, 9")
                e(f"s_add_u32 s{s_t}, s{s_t}, s{s_t2}")
                e(f"s_add_u32 s{s_t}, s{s_t}, {WS_VT}")
                e("s_waitcnt lgkmcnt(0)")
                e(f"buffer_store_dwordx2 v[34:35], v6, {sr(sO,4)}, s{s_t} offen")
                lab(f"{name}_n{j}{mt}")
                e("s_nop 1")
    else:
        e(f"s_lshl_b32 s{s_t}, s{s_rt}, 6")
        e(f"s_lshl_b32 s{s_t2}, s{s_wm}, 5")
        e(f"s_add_u32 s{s_t}, s{s_t}, s{s_t2}")
        e(f"v_add_u32 v7, s{s_t}, v4")
        e(f"s_mov_b32 s{s_t}, 2752")
        e(f"v_mul_lo_u32 v7, v7, s{s_t}")
        e("v_lshl_add_u32 v7, v5, 3, v7")
        e(f"s_mul_i32 s29, s{s_cg}, 12")
        e(f"s_mul_i32 s{s_t}, s{s_wn}, 3")
        e(f"s_add_u32 s29, s29, s{s_t}")
        e("s_mov_b32 s30, 0xbfb8aa3b")
        e("s_nop 4")
        for j in range(3):
            e(f"s_add_u32 s{s_t}, s29, {j}")
            e(f"s_cmp_ge_u32 s{s_t}, 86")
            e(f"s_cbranch_scc1 {name}_skip{j}")
            e(f"s_lshl_b32 s{s_t}, s{s_t}, 5")
            for mt in range(2):
                g = ACC + (mt*3+j)*4; u = ACC + ((2+mt)*3+j)*4
                for r in range(4): e(f"v_mul_f32 v{32+r}, s30, v{g+r}")
                for r in range(4): e(f"v_exp_f32 v{32+r}, v{32+r}")
                e("s_nop 0")
                for r in range(4): e(f"v_add_f32 v{32+r}, 1.0, v{32+r}")
                for r in range(4): e(f"v_rcp_f32 v{32+r}, v{32+r}")
                e("s_nop 0")
                for r in range(4): e(f"v_mul_f32 v{32+r}, v{32+r}, v{u+r}")
                e(f"v_cvt_pk_bf16_f32 v{36+2*mt}, v32, v33")
                e(f"v_cvt_pk_bf16_f32 v{37+2*mt}, v34, v35")
                e(f"buffer_store_dwordx2 {vr(36+2*mt,2)}, v7, {sr(sO,4)}, s{s_t} offen offset:0" if mt == 0 else
                  f"buffer_store_dwordx2 {vr(36+2*mt,2)}, v41, {sr(sO,4)}, s{s_t} offen")
                if mt == 0: e(f"v_add_u32 v41, {16*2752}, v7")
            e("s_nop 1")
            lab(f"{name}_skip{j}")
    stamp(name)
    stamp_out(name)
    lab(f"{name}_done")
    e("s_endpgm")
    return name, 256, 512, 163840, (240 if qkv else 224)

def gen_ln_gemm2(mode):
    qkv = mode == "qkv"
    name = "k_qkv_kernel" if qkv else "k_gu_kernel"
    MAPMODE = MAPS[mode]
    header(name)
    R = 4; S = 8 if qkv else 16
    WROW = 3072 if qkv else 2752
    KADV = (64 if qkv else 32) * WROW
    XB = 0; WB = 65536; SLOT = 24576
    XR = 176; RS = 208
    sX, sW, sO = 8, 12, 16
    s_wave, s_cg, s_rt, s_wm, s_wn, s_m0, s_k, s_t, s_t2 = 20, 21, 22, 23, 24, 25, 26, 27, 28
    e(f"s_cmp_ge_u32 s2, 256")
    e(f"s_cbranch_scc1 {name}_done")
    stamp(name)
    e("s_load_dwordx4 s[32:35], s[0:1], 0")
    e("s_load_dwordx4 s[36:39], s[0:1], 32")
    e("s_load_dwordx2 s[40:41], s[0:1], 72")
    e("v_lshrrev_b32 v1, 6, v0")
    e("v_and_b32 v2, 63, v0")
    e("s_nop 0")
    e(f"v_readfirstlane_b32 s{s_wave}, v1")
    wgmap(s_cg, s_rt, MAPMODE)
    e(f"s_lshr_b32 s{s_wm}, s{s_wave}, 2")
    e(f"s_and_b32 s{s_wn}, s{s_wave}, 3")
    e("s_waitcnt lgkmcnt(0)")
    if qkv:
        srd(sX, 32, 2048 * 1024)
        srd(sW, 34, 512 * 3072)
        srd(sO, 40, 6 << 20)
    else:
        srd(sX, 40, 2048 * 1024, WS_H)
        e(f"s_cmp_eq_u32 s{s_wm}, 0")
        e("s_cselect_b32 s42, s36, s38")
        e("s_cselect_b32 s43, s37, s39")
        srd(sW, 42, 512 * 2752)
        srd(sO, 40, 2048 * 2752, WS_HM)

    CS = 224; ONES = 236; WA1 = 240; XA = 246
    s_mx, s_kx = 44, 45
    seq = []
    for i in range(2):
        e(f"s_lshl_b32 s{s_t}, s{s_wave}, 7")
        e(f"v_add_u32 v12, s{s_t}, v2")
        if i: e("v_add_u32 v12, 64, v12")
        e("v_lshrrev_b32 v13, 4, v12")
        e("v_and_b32 v14, 15, v12")
        e("v_and_b32 v15, 15, v13")
        e("v_xor_b32 v14, v14, v15")
        e("v_lshlrev_b32 v13, 10, v13")
        e(f"v_lshl_add_u32 v{XA+i}, v14, 4, v13")
    e(f"s_lshl_b32 s{s_kx}, s{s_rt}, 16")
    e(f"s_lshl_b32 s{s_mx}, s{s_wave}, 11")
    def dmax(g):
        for i in range(2):
            e(f"s_add_u32 m0, s{s_mx}, {XB + g*16384 + i*1024}")
            e("s_nop 0")
            e(f"buffer_load_dwordx4 v{XA+i}, {sr(sX,4)}, s{s_kx} offen lds")
        e(f"s_add_u32 s{s_kx}, s{s_kx}, 256")
        seq.extend([("X", g)] * 2)
    dmax(0)
    e(f"s_mul_i32 s{s_t2}, s{s_wn}, 192")
    for i in range(3):
        e(f"v_add_u32 v11, s{s_t2}, v2")
        if i: e(f"v_add_u32 v11, {i*64}, v11")
        e("v_mul_u32_u24 v12, 2731, v11")
        e("v_lshrrev_b32 v12, 16, v12")
        e("v_mul_u32_u24 v13, 24, v12")
        e("v_sub_u32 v13, v11, v13")
        e("v_bfe_u32 v14, v12, 1, 1")
        e("v_bfe_u32 v15, v12, 3, 1")
        e("v_lshl_or_b32 v14, v15, 1, v14")
        e("v_lshlrev_b32 v14, 1, v14")
        e("v_xor_b32 v13, v13, v14")
        e(f"s_mov_b32 s{s_t}, {WROW}")
        e(f"v_mul_lo_u32 v12, v12, s{s_t}")
        e(f"v_lshl_add_u32 v{8+i}, v13, 4, v12")
    e(f"s_mul_i32 s{s_k}, s{s_cg}, 384")
    if qkv:
        e(f"s_mul_i32 s{s_t}, s{s_wm}, {32*3072}")
        e(f"s_add_u32 s{s_k}, s{s_k}, s{s_t}")
    e(f"s_mul_i32 s{s_m0}, s{s_wave}, 3072")
    e(f"s_add_u32 s{s_m0}, s{s_m0}, {WB}")
    def dma(st):
        slot = st % R
        for i in range(3):
            e(f"s_add_u32 m0, s{s_m0}, {slot*SLOT + i*1024}")
            e("s_nop 0")
            e(f"buffer_load_dwordx4 v{8+i}, {sr(sW,4)}, s{s_k} offen lds")
        e(f"s_add_u32 s{s_k}, s{s_k}, {KADV}")
        seq.extend([("W", st)] * 3)
    XS = os.environ.get("XS", "1") == "1"
    dma(0); dma(1)
    if not XS: dmax(1); dmax(2); dmax(3)
    e("v_lshrrev_b32 v4, 3, v2")
    e("v_and_b32 v5, 7, v2")
    e(f"s_lshl_b32 s{s_t}, s{s_wave}, 3")
    e(f"v_add_u32 v6, s{s_t}, v4")
    e(f"v_lshlrev_b32 v{RS+2}, 8, v6")
    e(f"v_lshl_add_u32 v{RS+2}, v5, 4, v{RS+2}")
    e(f"v_lshlrev_b32 v{RS+3}, 3, v6")
    e(f"v_add_u32 v{RS+3}, {WB}, v{RS+3}")
    e(f"s_mul_i32 s{s_t}, s{s_wave}, 3072")
    e(f"s_add_u32 s{s_t}, s{s_t}, {WB+1024}")
    e(f"v_lshl_add_u32 v{RS+4}, v2, 4, s{s_t}")
    e(f"s_xor_b32 s{s_t}, s{s_wave}, 4")
    e(f"s_mul_i32 s{s_t}, s{s_t}, 3072")
    e(f"s_add_u32 s{s_t}, s{s_t}, {WB+1024}")
    e(f"v_lshl_add_u32 v{RS+10}, v2, 4, s{s_t}")
    e("v_and_b32 v4, 15, v2")
    e("v_lshrrev_b32 v5, 4, v2")
    e(f"s_lshl_b32 s{s_t}, s{s_wm}, 8")
    e(f"s_add_u32 s{s_t}, s{s_t}, {WB}")
    e(f"v_lshl_add_u32 v{RS+5}, v4, 3, s{s_t}")
    e(f"s_lshl_b32 s{s_t}, s{s_wm}, 13")
    e("v_lshlrev_b32 v6, 8, v4")
    e(f"v_add_u32 v6, s{s_t}, v6")
    e("v_and_b32 v7, 3, v4")
    e("v_xor_b32 v7, v7, v5")
    e("v_lshrrev_b32 v11, 2, v4")
    for k in range(4):
        if qkv:
            e(f"s_xor_b32 s{s_t}, s{s_wm}, {k}")
            e(f"v_xor_b32 v12, s{s_t}, v11")
        else:
            e(f"v_xor_b32 v12, {k}, v11")
        e("v_lshl_or_b32 v12, v12, 2, v7")
        e(f"v_lshl_add_u32 v{24+k}, v12, 4, v6")
    e("v_lshrrev_b32 v11, 2, v4")
    e("v_and_b32 v12, 3, v4")
    e("v_lshl_add_u32 v13, v5, 3, v11")
    e("v_mul_u32_u24 v13, 384, v13")
    e("v_lshl_add_u32 v13, v12, 3, v13")
    e(f"v_add_u32 v13, {WB}, v13")
    e("v_lshrrev_b32 v14, 1, v11")
    e("v_and_b32 v15, 1, v5")
    e("v_lshl_or_b32 v14, v15, 1, v14")
    e(f"s_mul_i32 s{s_t}, s{s_wn}, 3")
    e(f"s_mul_i32 s29, s{s_wm}, 12288")
    e(f"s_sub_u32 s30, 12288, s29")
    for j in range(3):
        e(f"s_add_u32 s{s_t2}, s{s_t}, {j}")
        e(f"v_xor_b32 v15, s{s_t2}, v14")
        e(f"v_lshl_add_u32 v15, v15, 5, v13")
        e(f"v_add_u32 v{16+j}, s29, v15")
        e(f"v_add_u32 v{19+j}, {2*SLOT}, v{16+j}")
        e(f"v_add_u32 v{WA1+j}, s30, v15")
        e(f"v_add_u32 v{WA1+3+j}, {2*SLOT}, v{WA1+j}")
    ACC = 128
    NACC = 6 if qkv else 12
    for i in range(NACC * 4):
        e(f"v_mov_b32 v{ACC+i}, 0")
    for i in range(12): e(f"v_mov_b32 v{CS+i}, 0")
    for i in range(4): e(f"v_mov_b32 v{ONES+i}, 0x3f803f80")
    e(f"s_mov_b32 s31, 0x3f803f80")
    stamp(name)
    def stat_reads():
        for i in range(8):
            e(f"ds_read_b128 {vr(XR+4*i,4)}, v{RS+2} offset:{XB+(i>>1)*16384+(i&1)*128}")
    SC = []
    def c(*ls): SC.append(["    " + l for l in ls])
    c(f"v_dot2_f32_bf16 v{RS+6}, v{XR}, s31, 0")
    c(f"v_dot2_f32_bf16 v{RS+7}, v{XR+1}, s31, 0")
    c(f"v_dot2_f32_bf16 v{RS+8}, v{XR}, v{XR}, 0")
    c(f"v_dot2_f32_bf16 v{RS+9}, v{XR+1}, v{XR+1}, 0")
    for i in range(2, 32, 2):
        c(f"v_dot2_f32_bf16 v{RS+6}, v{XR+i}, s31, v{RS+6}")
        c(f"v_dot2_f32_bf16 v{RS+7}, v{XR+i+1}, s31, v{RS+7}")
        c(f"v_dot2_f32_bf16 v{RS+8}, v{XR+i}, v{XR+i}, v{RS+8}")
        c(f"v_dot2_f32_bf16 v{RS+9}, v{XR+i+1}, v{XR+i+1}, v{RS+9}")
    c("s_nop 3", f"v_add_f32 v{RS+6}, v{RS+6}, v{RS+7}", f"v_add_f32 v{RS+8}, v{RS+8}, v{RS+9}")
    for ctl in ("quad_perm:[1,0,3,2]", "quad_perm:[2,3,0,1]", "row_half_mirror"):
        c("s_nop 1",
          f"v_add_f32_dpp v{RS+6}, v{RS+6}, v{RS+6} {ctl} row_mask:0xf bank_mask:0xf",
          f"v_add_f32_dpp v{RS+8}, v{RS+8}, v{RS+8} {ctl} row_mask:0xf bank_mask:0xf")
    c(f"v_mul_f32 v{RS+6}, 0x3b000000, v{RS+6}",
      f"v_mul_f32 v{RS+8}, 0x3b000000, v{RS+8}",
      f"v_fma_f32 v{RS+8}, -v{RS+6}, v{RS+6}, v{RS+8}",
      f"v_max_f32 v{RS+8}, 0, v{RS+8}",
      f"v_add_f32 v{RS+8}, 0x3727c5ac, v{RS+8}",
      f"v_rsq_f32 v{RS}, v{RS+8}",
      "s_nop 0",
      f"v_mul_f32 v{RS+1}, v{RS+6}, v{RS}",
      f"v_sub_f32 v{RS+1}, 0, v{RS+1}")
    NSC = len(SC)
    FS = [32, 80]
    def reads(st):
        base = FS[st & 1]; slot = st % R
        hi = 0 if slot < 2 else 3; so = (slot & 1) * SLOT
        nk = 2 if qkv else 1
        for kk in range(nk):
            ks = st * nk + kk
            for mt in range(2):
                e(f"ds_read_b128 {vr(base+(kk*2+mt)*4,4)}, v{24+(ks&3)} offset:{XB+(ks>>2)*16384+mt*4096}")
        for b in range(2):
            for j in range(3):
                wa = (16 if b == 0 else WA1) + hi + j
                for t2 in range(2):
                    e(f"ds_read_b64_tr_b16 {vr(base+16+(b*3+j)*4+t2*2,2)}, v{wa} offset:{so+t2*1536}")
    def mfmas(st):
        base = FS[st & 1]
        for b in range(2):
            for j in range(3):
                for mt in range(2):
                    if qkv: a = ACC + (mt*3+j)*4; x = base + (b*2+mt)*4
                    else:   a = ACC + ((b*2+mt)*3+j)*4; x = base + mt*4
                    e(f"v_mfma_f32_16x16x32_bf16 {vr(a,4)}, {vr(base+16+(b*3+j)*4,4)}, {vr(x,4)}, {vr(a,4)}")
                if b == 0:
                    e(f"v_mfma_f32_16x16x32_bf16 {vr(CS+4*j,4)}, {vr(base+16+j*4,4)}, {vr(ONES,4)}, {vr(CS+4*j,4)}")
    grp = (lambda st: st >> 1) if qkv else (lambda st: st >> 2)
    issued = 2
    ST0 = int(os.environ.get("ST0", "4" if XS else "2"))
    NSS = 3
    for st in range(S):
        tags = {("W", st), ("X", grp(st))}
        if st == ST0: tags |= {("X", g) for g in range(4)}
        last = max(i for i, t in enumerate(seq) if t in tags)
        e(f"s_waitcnt vmcnt({len(seq)-1-last}) lgkmcnt(0)")
        e("s_barrier")
        if st in (0, 1, 2, 4, 6, S-1): stamp(name)
        B = chunks_of(capture(reads, st))
        while issued < S and issued <= st + PDL:
            B += chunks_of(capture(dma, issued))
            issued += 1
        if XS and st < 3: B += chunks_of(capture(dmax, st + 1))
        if st == ST0: B += chunks_of(capture(stat_reads))
        if ST0 < st <= ST0 + NSS:
            q = st - ST0 - 1
            B += SC[q*NSC//NSS:(q+1)*NSC//NSS]
        if st >= 1: interleave(capture(mfmas, st - 1), B)
        else:
            for ch in B: L.extend(ch)
    e("s_waitcnt lgkmcnt(0)")
    mfmas(S - 1)
    e("s_barrier")
    stamp(name)
    e("s_nop 7"); e("s_nop 3")
    e(f"ds_write_b64 v{RS+3}, v[{RS}:{RS+1}]")
    for j in range(3):
        e(f"ds_write_b128 v{RS+4}, {vr(CS+4*j,4)} offset:{j*1024}")
    e("s_waitcnt lgkmcnt(0)")
    e("s_barrier")
    e(f"ds_read_b64 v[32:33], v{RS+5}")
    e(f"ds_read_b64 v[34:35], v{RS+5} offset:128")
    for j in range(3):
        e(f"ds_read_b128 {vr(36+4*j,4)}, v{RS+10} offset:{j*1024}")
    e("s_waitcnt lgkmcnt(0)")
    if qkv:
        for p in range(6):
            e(f"v_pk_add_f32 {vr(CS+2*p,2)}, {vr(CS+2*p,2)}, {vr(36+2*p,2)}")
    tn = 0
    for b in range(1 if qkv else 2):
        for mt in range(2):
            for j in range(3):
                a = (ACC + (mt*3+j)*4) if qkv else (ACC + ((b*2+mt)*3+j)*4)
                cc = (CS if b == 0 else 36) + 4*j
                for p in range(2):
                    t = 48 + 2*(tn % 4); tn += 1
                    e(f"v_pk_mul_f32 {vr(t,2)}, {vr(cc+2*p,2)}, {vr(32+2*mt,2)} op_sel:[0,1] op_sel_hi:[1,1]")
                    e(f"v_pk_fma_f32 {vr(a+2*p,2)}, {vr(a+2*p,2)}, {vr(32+2*mt,2)}, {vr(t,2)} op_sel_hi:[1,0,1]")
    if not qkv:
        e(f"s_cmp_eq_u32 s{s_wm}, 0")
        e(f"s_cbranch_scc1 {name}_nosw")
        for i in range(24):
            e(f"v_swap_b32 v{ACC+i}, v{ACC+24+i}")
        lab(f"{name}_nosw")
    e("v_lshlrev_b32 v6, 5, v4")
    e("v_lshl_add_u32 v6, v5, 3, v6")
    if qkv:
        e(f"s_lshl_b32 s{s_t}, s{s_wave}, 9")
        e(f"v_add_u32 v7, s{s_t}, v6")
        e("v_lshrrev_b32 v11, 2, v4")
        e("v_and_b32 v12, 3, v4")
        e("v_lshl_add_u32 v11, v5, 2, v11")
        e("v_lshlrev_b32 v11, 5, v11")
        e("v_lshl_add_u32 v11, v12, 3, v11")
        e(f"v_add_u32 v11, s{s_t}, v11")
        e(f"s_mul_i32 s29, s{s_cg}, 12")
        e(f"s_mul_i32 s{s_t}, s{s_wn}, 3")
        e(f"s_add_u32 s29, s29, s{s_t}")
        e(f"s_lshl_b32 s30, s{s_rt}, 2")
        e(f"s_lshl_b32 s{s_t}, s{s_wm}, 1")
        e(f"s_add_u32 s30, s30, s{s_t}")
        e("s_nop 4")
        for j in range(3):
            for mt in range(2):
                a = ACC + (mt*3+j)*4
                e(f"v_cvt_pk_bf16_f32 v32, v{a}, v{a+1}")
                e(f"v_cvt_pk_bf16_f32 v33, v{a+2}, v{a+3}")
                e(f"s_add_u32 s{s_t}, s29, {j}")
                e(f"s_add_u32 s{s_t2}, s30, {mt}")
                e(f"s_cmp_ge_u32 s{s_t}, 64")
                e(f"s_cbranch_scc1 {name}_v{j}{mt}")
                e(f"s_lshl_b32 s{s_t}, s{s_t}, 16")
                e(f"s_lshl_b32 s{s_t2}, s{s_t2}, 9")
                e(f"s_add_u32 s{s_t}, s{s_t}, s{s_t2}")
                e(f"buffer_store_dwordx2 v[32:33], v6, {sr(sO,4)}, s{s_t} offen")
                e(f"s_branch {name}_n{j}{mt}")
                lab(f"{name}_v{j}{mt}")
                e("ds_write_b64 v7, v[32:33]")
                e("s_waitcnt lgkmcnt(0)")
                e("ds_read_b64_tr_b16 v[34:35], v11")
                e(f"s_sub_u32 s{s_t}, s{s_t}, 64")
                e(f"s_lshl_b32 s{s_t}, s{s_t}, 16")
                e(f"s_lshl_b32 s{s_t2}, s{s_t2}, 9")
                e(f"s_add_u32 s{s_t}, s{s_t}, s{s_t2}")
                e(f"s_add_u32 s{s_t}, s{s_t}, {WS_VT}")
                e("s_waitcnt lgkmcnt(0)")
                e(f"buffer_store_dwordx2 v[34:35], v6, {sr(sO,4)}, s{s_t} offen")
                lab(f"{name}_n{j}{mt}")
                e("s_nop 1")
    else:
        e(f"s_lshl_b32 s{s_t}, s{s_rt}, 6")
        e(f"s_lshl_b32 s{s_t2}, s{s_wm}, 5")
        e(f"s_add_u32 s{s_t}, s{s_t}, s{s_t2}")
        e(f"v_add_u32 v7, s{s_t}, v4")
        e(f"s_mov_b32 s{s_t}, 2752")
        e(f"v_mul_lo_u32 v7, v7, s{s_t}")
        e("v_lshl_add_u32 v7, v5, 3, v7")
        e(f"s_mul_i32 s29, s{s_cg}, 12")
        e(f"s_mul_i32 s{s_t}, s{s_wn}, 3")
        e(f"s_add_u32 s29, s29, s{s_t}")
        e("s_mov_b32 s30, 0xbfb8aa3b")
        e("s_nop 4")
        for j in range(3):
            e(f"s_add_u32 s{s_t}, s29, {j}")
            e(f"s_cmp_ge_u32 s{s_t}, 86")
            e(f"s_cbranch_scc1 {name}_skip{j}")
            e(f"s_lshl_b32 s{s_t}, s{s_t}, 5")
            for mt in range(2):
                g = ACC + (mt*3+j)*4; u = ACC + ((2+mt)*3+j)*4
                for r in range(4): e(f"v_mul_f32 v{32+r}, s30, v{g+r}")
                for r in range(4): e(f"v_exp_f32 v{32+r}, v{32+r}")
                e("s_nop 0")
                for r in range(4): e(f"v_add_f32 v{32+r}, 1.0, v{32+r}")
                for r in range(4): e(f"v_rcp_f32 v{32+r}, v{32+r}")
                e("s_nop 0")
                for r in range(4): e(f"v_mul_f32 v{32+r}, v{32+r}, v{u+r}")
                e(f"v_cvt_pk_bf16_f32 v{36+2*mt}, v32, v33")
                e(f"v_cvt_pk_bf16_f32 v{37+2*mt}, v34, v35")
                e(f"buffer_store_dwordx2 {vr(36+2*mt,2)}, v7, {sr(sO,4)}, s{s_t} offen offset:0" if mt == 0 else
                  f"buffer_store_dwordx2 {vr(36+2*mt,2)}, v41, {sr(sO,4)}, s{s_t} offen")
                if mt == 0: e(f"v_add_u32 v41, {16*2752}, v7")
            e("s_nop 1")
            lab(f"{name}_skip{j}")
    stamp(name)
    stamp_out(name)
    lab(f"{name}_done")
    e("s_endpgm")
    return name, 256, 512, 163840, 256

def gen_plain(mode):
    wo = mode == "wo"
    name = "k_wo_kernel" if wo else "k_down_kernel"
    MAPMODE = MAPS[mode]
    header(name)
    R = 4
    K = 512 if wo else 1376
    AS = 1024 if wo else 2752
    stages = [(k0, min(128, K - k0)) for k0 in range(0, K, 128)]
    S = len(stages)
    SLOT = 32768
    sA, sW, sR, sO = 8, 12, 16, 44
    s_wave, s_cg, s_rt, s_wm, s_wn, s_m0, s_ka, s_kw, s_t, s_t2 = 20, 21, 22, 23, 24, 25, 26, 27, 28, 29
    e(f"s_cmp_ge_u32 s2, 256")
    e(f"s_cbranch_scc1 {name}_done")
    stamp(name)
    e("s_load_dwordx2 s[32:33], s[0:1], 0")
    e("s_load_dwordx2 s[34:35], s[0:1], %d" % (16 if wo else 48))
    e("s_load_dwordx2 s[36:37], s[0:1], 56")
    e("s_load_dwordx2 s[40:41], s[0:1], 72")
    e("v_lshrrev_b32 v1, 6, v0")
    e("v_and_b32 v2, 63, v0")
    e("s_nop 0")
    e(f"v_readfirstlane_b32 s{s_wave}, v1")
    wgmap(s_cg, s_rt, MAPMODE)
    e(f"s_lshr_b32 s{s_wm}, s{s_wave}, 2")
    e(f"s_and_b32 s{s_wn}, s{s_wave}, 3")
    e("s_waitcnt lgkmcnt(0)")
    if wo:
        srd(sA, 40, 2048 * 1024, WS_O); srd(sW, 34, 512 * 1024)
        srd(sR, 32, 2048 * 1024); srd(sO, 40, 2048 * 1024, WS_H)
    else:
        srd(sA, 40, 2048 * 2752, WS_HM); srd(sW, 34, 1376 * 1024)
        srd(sR, 40, 2048 * 1024, WS_H); srd(sO, 36, 2048 * 1024)
    for i in range(2):
        e(f"s_lshl_b32 s{s_t}, s{s_wave}, 7")
        e(f"v_add_u32 v12, s{s_t}, v2")
        if i: e("v_add_u32 v12, 64, v12")
        e("v_lshrrev_b32 v13, 4, v12")
        e("v_and_b32 v14, 15, v12")
        e("v_and_b32 v15, 15, v13")
        e("v_xor_b32 v14, v14, v15")
        e(f"s_mov_b32 s{s_t}, {AS}")
        e(f"v_mul_lo_u32 v13, v13, s{s_t}")
        e(f"v_lshl_add_u32 v{8+i}, v14, 4, v13")
        e("v_lshrrev_b32 v13, 3, v12")
        e("v_and_b32 v14, 7, v12")
        e("v_bfe_u32 v15, v13, 1, 1")
        e("v_bfe_u32 v16, v13, 3, 1")
        e("v_lshl_or_b32 v15, v16, 1, v15")
        e("v_lshlrev_b32 v15, 1, v15")
        e("v_xor_b32 v14, v14, v15")
        e("v_lshlrev_b32 v13, 10, v13")
        e(f"v_lshl_add_u32 v{10+i}, v14, 4, v13")
    e(f"s_mul_i32 s{s_ka}, s{s_rt}, {64*AS}")
    e(f"s_lshl_b32 s{s_kw}, s{s_cg}, 7")
    e(f"s_lshl_b32 s{s_m0}, s{s_wave}, 11")
    VG = os.environ.get("VG", "") == "1" and wo
    def dma(st):
        slot = st % R
        if VG:
            for i in range(2):
                e(f"buffer_load_dwordx4 {vr(160+st*16+i*8,4)}, v{8+i}, {sr(sA,4)}, s{s_ka} offen")
                e(f"buffer_load_dwordx4 {vr(164+st*16+i*8,4)}, v{10+i}, {sr(sW,4)}, s{s_kw} offen")
            e(f"s_add_u32 s{s_ka}, s{s_ka}, 256")
            e(f"s_add_u32 s{s_kw}, s{s_kw}, {128*1024}")
            return
        for i in range(2):
            e(f"s_add_u32 m0, s{s_m0}, {slot*SLOT + i*1024}")
            e("s_nop 0")
            e(f"buffer_load_dwordx4 v{8+i}, {sr(sA,4)}, s{s_ka} offen {DFL} lds")
            e(f"s_add_u32 m0, s{s_m0}, {slot*SLOT + 16384 + i*1024}")
            e("s_nop 0")
            e(f"buffer_load_dwordx4 v{10+i}, {sr(sW,4)}, s{s_kw} offen {DFL} lds")
        e(f"s_add_u32 s{s_ka}, s{s_ka}, 256")
        e(f"s_add_u32 s{s_kw}, s{s_kw}, {128*1024}")
    D = int(os.environ.get("PD", "2"))
    D0 = int(os.environ.get("PD0", "2"))
    issued = min(D0, S)
    for st in range(issued): dma(st)
    e("v_and_b32 v4, 15, v2")
    e("v_lshrrev_b32 v5, 4, v2")
    e(f"v_lshl_add_u32 v140, v2, 4, s{s_m0}")
    e(f"v_add_u32 v141, {2*SLOT}, v140")
    e(f"s_lshl_b32 s{s_t}, s{s_rt}, 6")
    e(f"s_lshl_b32 s{s_t2}, s{s_wm}, 5")
    e(f"s_add_u32 s{s_t}, s{s_t}, s{s_t2}")
    e(f"v_add_u32 v6, s{s_t}, v4")
    e("v_lshlrev_b32 v6, 10, v6")
    e("v_lshl_add_u32 v6, v5, 3, v6")
    e(f"s_lshl_b32 s{s_t}, s{s_cg}, 7")
    e(f"s_lshl_b32 s{s_t2}, s{s_wn}, 5")
    e(f"s_add_u32 s30, s{s_t}, s{s_t2}")
    e("v_add_u32 v7, 16384, v6")
    e(f"buffer_load_dwordx2 v[136:137], v6, {sr(sR,4)}, s30 offen")
    e(f"buffer_load_dwordx2 v[138:139], v7, {sr(sR,4)}, s30 offen")
    e(f"s_lshl_b32 s{s_t}, s{s_wm}, 13")
    e("v_lshlrev_b32 v12, 8, v4")
    e(f"v_add_u32 v12, s{s_t}, v12")
    e("v_and_b32 v13, 3, v4")
    e("v_xor_b32 v13, v13, v5")
    e("v_lshrrev_b32 v14, 2, v4")
    for k in range(4):
        e(f"v_xor_b32 v15, {k}, v14")
        e("v_lshl_or_b32 v15, v15, 2, v13")
        e(f"v_lshl_add_u32 v{16+k}, v15, 4, v12")
        e(f"v_add_u32 v{20+k}, {2*SLOT}, v{16+k}")
    e("v_lshrrev_b32 v12, 2, v4")
    e("v_and_b32 v13, 3, v4")
    e("v_lshl_add_u32 v14, v5, 3, v12")
    e("v_lshlrev_b32 v14, 7, v14")
    e("v_lshl_add_u32 v14, v13, 3, v14")
    e("v_lshrrev_b32 v15, 1, v12")
    e("v_and_b32 v13, 1, v5")
    e("v_lshl_or_b32 v15, v13, 1, v15")
    e(f"v_xor_b32 v15, s{s_wn}, v15")
    e("v_lshl_add_u32 v24, v15, 5, v14")
    e("v_add_u32 v24, 16384, v24")
    e(f"v_add_u32 v25, {2*SLOT}, v24")
    ACC = 128
    for i in range(8): e(f"v_mov_b32 v{ACC+i}, 0")
    FS = [28, 76]
    def reads(st):
        base = FS[st & 1]; slot = st % R; hi = slot >= 2; so = (slot & 1) * SLOT
        for ks in range(stages[st][1] // 32):
            for mt in range(2):
                e(f"ds_read_b128 {vr(base+(ks*2+mt)*4,4)}, v{(20 if hi else 16)+ks} offset:{so+mt*4096}")
            for t2 in range(2):
                e(f"ds_read_b64_tr_b16 {vr(base+32+ks*4+t2*2,2)}, v{25 if hi else 24} offset:{so+ks*4096+t2*512}")
    def mfmas(st):
        base = FS[st & 1]
        for ks in range(stages[st][1] // 32):
            for mt in range(2):
                a = ACC + mt * 4
                e(f"v_mfma_f32_16x16x32_bf16 {vr(a,4)}, {vr(base+32+ks*4,4)}, {vr(base+(ks*2+mt)*4,4)}, {vr(a,4)}")
    for st in range(S):
        after = (issued - 1 - st) * 4 + (2 if st < min(D0, S) else 0)
        if VG:
            e(f"s_waitcnt vmcnt({after})")
            for i in range(2):
                e(f"ds_write_b128 v{140+(st>>1)}, {vr(160+st*16+i*8,4)} offset:{(st&1)*SLOT+i*1024}")
                e(f"ds_write_b128 v{140+(st>>1)}, {vr(164+st*16+i*8,4)} offset:{(st&1)*SLOT+16384+i*1024}")
        e(f"s_waitcnt vmcnt({after}) lgkmcnt(0)")
        e("s_barrier")
        if st in (0,1,2,3,5,8): stamp(name)
        B = chunks_of(capture(reads, st))
        while issued < S and issued <= st + D:
            B += chunks_of(capture(dma, issued)); issued += 1
        if st >= 1: interleave(capture(mfmas, st - 1), B)
        else:
            for c in B: L.extend(c)
    e("s_waitcnt vmcnt(0) lgkmcnt(0)")
    mfmas(S - 1)
    e("s_nop 7"); e("s_nop 1")
    for mt in range(2):
        a = ACC + mt*4; r = 136 + 2*mt
        e(f"v_lshlrev_b32 v12, 16, v{r}")
        e(f"v_and_b32 v13, 0xffff0000, v{r}")
        e(f"v_lshlrev_b32 v14, 16, v{r+1}")
        e(f"v_and_b32 v15, 0xffff0000, v{r+1}")
        for i in range(4): e(f"v_add_f32 v{12+i}, v{12+i}, v{a+i}")
        e(f"v_cvt_pk_bf16_f32 v{r}, v12, v13")
        e(f"v_cvt_pk_bf16_f32 v{r+1}, v14, v15")
        e(f"buffer_store_dwordx2 {vr(r,2)}, v{6+mt}, {sr(sO,4)}, s30 offen")
    stamp(name)
    stamp_out(name)
    lab(f"{name}_done")
    e("s_endpgm")
    return name, 256, 512, 131072, 224

def gen_attn():
    name = "k_attn_kernel"
    header(name)
    sWS, sO = 8, 12
    s_wave, s_head, s_qt, s_t, s_t2, s_kb, s_vb = 20, 21, 22, 23, 24, 25, 26
    e("s_cmp_ge_u32 s2, 512")
    e(f"s_cbranch_scc1 {name}_done")
    stamp(name)
    e("s_load_dwordx2 s[40:41], s[0:1], 72")
    PF = os.environ.get("PF", "1") == "1"
    if PF:
        e("s_load_dwordx2 s[42:43], s[0:1], 16")
        e("s_load_dwordx4 s[44:47], s[0:1], 32")
        e("s_load_dwordx2 s[48:49], s[0:1], 48")
    e("v_lshrrev_b32 v1, 6, v0")
    e("v_and_b32 v2, 63, v0")
    e("s_nop 0")
    e(f"v_readfirstlane_b32 s{s_wave}, v1")
    e(f"s_lshr_b32 s{s_head}, s2, 4")
    e(f"s_and_b32 s{s_qt}, s2, 15")
    e(f"s_lshl_b32 s{s_qt}, s{s_qt}, 3")
    e("v_and_b32 v4, 15, v2")
    e("v_lshrrev_b32 v5, 4, v2")
    e("v_lshlrev_b32 v6, 5, v4")
    e("v_lshl_add_u32 v6, v5, 3, v6")
    e("v_lshlrev_b32 v7, 4, v2")
    e("s_waitcnt lgkmcnt(0)")
    srd(sWS, 40, 6 << 20)
    srd(sO, 40, 2048 * 1024, WS_O)
    e(f"s_lshl_b32 s{s_t}, s{s_head}, 16")
    e(f"s_lshl_b32 s{s_t2}, s{s_qt}, 9")
    e(f"s_add_u32 s{s_t2}, s{s_t2}, s{s_t}")
    QF, KF, SS = 8, 12, 48
    VF = KF
    T = 116
    e(f"s_lshl_b32 s{s_t}, s{s_wave}, 9")
    e(f"s_add_u32 s{s_t}, s{s_t2}, s{s_t}")
    e(f"buffer_load_dwordx2 {vr(QF,2)}, v6, {sr(sWS,4)}, s{s_t} offen")
    e(f"s_cmp_lt_u32 s{s_wave}, 4")
    e(f"s_mov_b32 s{s_vb}, {WS_VT-8192-12288}")
    e(f"s_cselect_b32 s{s_kb}, {32*65536-8192}, s{s_vb}")
    e(f"s_add_u32 s{s_kb}, s{s_kb}, s{s_t2}")
    e(f"s_mul_i32 s{s_vb}, s{s_wave}, 3072")
    e(f"s_add_u32 s{s_kb}, s{s_kb}, s{s_vb}")
    for i in range(3):
        e(f"s_add_u32 m0, s{s_vb}, {i*1024}")
        e("s_nop 0")
        e(f"buffer_load_dwordx4 v7, {sr(sWS,4)}, s{s_kb} offen lds")
        if i < 2: e(f"s_add_u32 s{s_kb}, s{s_kb}, 1024")
    e(f"s_add_u32 s{s_qt}, s{s_qt}, s{s_wave}")
    e(f"s_lshl_b32 s{s_t}, s{s_wave}, 9")
    e(f"v_add_u32 v10, s{s_t}, v6")
    e("v_lshlrev_b32 v7, 2, v5")
    e("v_sub_u32 v7, v7, v4")
    e("v_mov_b32 v3, 0xf149f2ca")
    e(f"s_cmp_lt_u32 s{s_wave}, 4")
    e(f"s_cbranch_scc1 {name}_w0")
    e("s_waitcnt vmcnt(3)")
    e(f"s_branch {name}_w1")
    lab(f"{name}_w0")
    e("s_waitcnt vmcnt(0)")
    lab(f"{name}_w1")
    e("s_barrier")
    stamp(name)
    for t in range(17):
        e(f"ds_read_b64 {vr(KF+2*t,2)}, v10 offset:{t*512}")
    for t in range(17):
        e(f"s_waitcnt lgkmcnt({min(15,16-t)})")
        e(f"v_mfma_f32_16x16x16_bf16 {vr(SS+4*t,4)}, {vr(KF+2*t,2)}, {vr(QF,2)}, 0")
    e("s_waitcnt vmcnt(0)")
    e("s_barrier")
    e("s_nop 4")
    for t in range(17):
        e(f"ds_read_b64 {vr(VF+2*t,2)}, v10 offset:{12288+t*512}")
    if PF:
        srd(52, 42, 512 * 1024); srd(56, 44, 512 * 2752); srd(60, 46, 512 * 2752); srd(64, 48, 1376 * 1024)
        e("s_lshr_b32 s50, s2, 3")
        e("s_lshl_b32 s50, s50, 3")
        e(f"s_add_u32 s50, s50, s{s_wave}")
        e("s_bfe_u32 s51, s2, 0x10002")
        e(f"s_lshl_b32 m0, s{s_wave}, 10")
        e("v_lshrrev_b32 v1, 5, v2")
        e("v_lshlrev_b32 v1, 10, v1")
        e("v_and_b32 v3, 31, v2")
        e("v_lshl_add_u32 v1, v3, 4, v1")
        e("v_mov_b32 v3, 0xf149f2ca")
        e("s_lshl_b32 s68, s50, 11")
        e("s_lshl_b32 s69, s51, 9")
        e("s_add_u32 s68, s68, s69")
        e("buffer_load_dwordx4 v1, s[52:55], s68 offen lds")
        e("s_mul_i32 s69, s50, 2752")
        e("s_mul_i32 s51, s51, 1536")
        e("s_add_u32 s69, s69, s51")
        e("v_lshlrev_b32 v1, 4, v2")
        e("buffer_load_dwordx4 v1, s[56:59], s69 offen lds")
        e("buffer_load_dwordx4 v1, s[60:63], s69 offen lds")
        e("s_add_u32 s69, s69, 1024")
        e("buffer_load_dwordx4 v1, s[56:59], s69 offen lds")
        e("buffer_load_dwordx4 v1, s[60:63], s69 offen lds")
        e("v_lshrrev_b32 v1, 5, v2")
        e("v_lshlrev_b32 v1, 10, v1")
        e("v_and_b32 v3, 31, v2")
        e("v_lshl_add_u32 v1, v3, 4, v1")
        e("v_mov_b32 v3, 0xf149f2ca")
        e("buffer_load_dwordx4 v1, s[64:67], s68 offen lds")
        e("s_add_u32 s68, s68, 0x100000")
        e("buffer_load_dwordx4 v1, s[64:67], s68 offen lds")
        if os.environ.get("CP", "0") == "1":
            e("s_cmp_ge_u32 s50, 15")
            e(f"s_cbranch_scc1 {name}_nocp")
            e("s_getpc_b64 s[68:69]")
            lab(f"{name}_pc")
            e(f"s_add_u32 s68, s68, k_wo_kernel-{name}_pc")
            e("s_addc_u32 s69, s69, 0")
            e("s_lshl_b32 s51, s50, 10")
            e("v_lshlrev_b32 v1, 4, v2")
            e("v_add_u32 v1, s51, v1")
            e("v_min_u32 v1, k_end_label-k_wo_kernel-16, v1")
            e("global_load_lds_dwordx4 v1, s[68:69]")
            lab(f"{name}_nocp")
    stamp(name)
    for r in range(4):
        e(f"v_add_u32 v1, {r}, v7")
        e("v_cmp_lt_i32 vcc, 0, v1")
        e("s_nop 1")
        e(f"v_cndmask_b32 v{SS+r}, v3, v{SS+r}, vcc")
        e(f"v_cndmask_b32 v{SS+64+r}, v{SS+64+r}, v3, vcc")
    for t in range(16):
        e(f"s_cmp_ge_u32 s{s_qt}, {16-t}")
        e(f"s_cbranch_scc1 {name}_m{t}")
        for r in range(4): e(f"v_mov_b32 v{SS+4*t+r}, v3")
        lab(f"{name}_m{t}")
    e(f"v_max3_f32 v{T}, v{SS}, v{SS+1}, v{SS+2}")
    e(f"v_max3_f32 v{T+1}, v{SS+3}, v{SS+4}, v{SS+5}")
    i = 6
    while i + 3 < 68:
        e(f"v_max3_f32 v{T}, v{T}, v{SS+i}, v{SS+i+1}")
        e(f"v_max3_f32 v{T+1}, v{T+1}, v{SS+i+2}, v{SS+i+3}")
        i += 4
    assert i == 66
    e(f"v_max3_f32 v{T}, v{T}, v{SS+66}, v{SS+67}")
    e(f"v_max_f32 v{T}, v{T}, v{T+1}")
    e(f"v_xor_b32 v{T+2}, 16, v2"); e(f"v_lshlrev_b32 v{T+2}, 2, v{T+2}")
    e(f"v_xor_b32 v{T+3}, 32, v2"); e(f"v_lshlrev_b32 v{T+3}, 2, v{T+3}")
    for a in (T+2, T+3):
        e(f"ds_bpermute_b32 v{T+1}, v{a}, v{T}")
        e("s_waitcnt lgkmcnt(0)")
        e(f"v_max_f32 v{T}, v{T}, v{T+1}")
    e("s_mov_b32 s30, 0x3eb8aa3b")
    e(f"v_mul_f32 v{T}, s30, v{T}")
    e(f"v_sub_f32 v{T}, 0, v{T}")
    e(f"v_mov_b32 v{T+4}, s30")
    for i in range(68):
        e(f"v_fma_f32 v{SS+i}, v{SS+i}, v{T+4}, v{T}")
    for i in range(68):
        e(f"v_exp_f32 v{SS+i}, v{SS+i}")
    e("s_nop 0")
    e(f"v_pk_add_f32 {vr(T+6,2)}, {vr(SS,2)}, {vr(SS+2,2)}")
    e(f"v_pk_add_f32 {vr(T+8,2)}, {vr(SS+4,2)}, {vr(SS+6,2)}")
    for i in range(8, 68, 4):
        e(f"v_pk_add_f32 {vr(T+6,2)}, {vr(T+6,2)}, {vr(SS+i,2)}")
        e(f"v_pk_add_f32 {vr(T+8,2)}, {vr(T+8,2)}, {vr(SS+i+2,2)}")
    e(f"v_pk_add_f32 {vr(T+6,2)}, {vr(T+6,2)}, {vr(T+8,2)}")
    e(f"v_add_f32 v{T+6}, v{T+6}, v{T+7}")
    for p in range(9):
        for h in range(4 if p < 8 else 2):
            e(f"v_cvt_pk_bf16_f32 v{SS+8*p+h}, v{SS+8*p+2*h}, v{SS+8*p+2*h+1}")
    for a in (T+2, T+3):
        e(f"ds_bpermute_b32 v{T+7}, v{a}, v{T+6}")
        e("s_waitcnt lgkmcnt(0)")
        e(f"v_add_f32 v{T+6}, v{T+6}, v{T+7}")
    e(f"v_rcp_f32 v{T}, v{T+6}")
    stamp(name)
    O1, O2 = 120, 124
    e(f"v_mfma_f32_16x16x16_bf16 {vr(O1,4)}, {vr(VF+32,2)}, {vr(SS+64,2)}, 0")
    e(f"v_mfma_f32_16x16x32_bf16 {vr(O2,4)}, {vr(VF,4)}, {vr(SS,4)}, 0")
    for p in range(1, 8):
        a = O1 if p & 1 else O2
        if p == 1:
            e("s_nop 7")
        e(f"v_mfma_f32_16x16x32_bf16 {vr(a,4)}, {vr(VF+4*p,4)}, {vr(SS+8*p,4)}, {vr(a,4)}")
    e("s_nop 7"); e("s_nop 1")
    for r in range(4):
        e(f"v_add_f32 v{O1+r}, v{O1+r}, v{O2+r}")
    for r in range(4):
        e(f"v_mul_f32 v{O1+r}, v{O1+r}, v{T}")
    e(f"v_cvt_pk_bf16_f32 v160, v{O1}, v{O1+1}".replace("v160", f"v{O1}"))
    e(f"v_cvt_pk_bf16_f32 v{O1+1}, v{O1+2}, v{O1+3}")
    e("v_lshlrev_b32 v7, 10, v4")
    e("v_lshl_add_u32 v7, v5, 3, v7")
    e(f"s_lshl_b32 s{s_t}, s{s_qt}, 14")
    e(f"s_lshl_b32 s{s_t2}, s{s_head}, 5")
    e(f"s_add_u32 s{s_t}, s{s_t}, s{s_t2}")
    e(f"buffer_store_dwordx2 v[120:121], v7, {sr(sO,4)}, s{s_t} offen")
    e("s_waitcnt vmcnt(0)")
    stamp(name)
    stamp_out(name)
    lab(f"{name}_done")
    e("s_endpgm")
    return name, 512, 512, 24576, 128

def main():
    kernels = []
    RAW = os.environ.get("RAW", "00")
    kernels.append((gen_ln_gemm2 if RAW[0] == "1" else gen_ln_gemm)("qkv"))
    kernels.append(gen_attn())
    kernels.append(gen_plain("wo"))
    kernels.append((gen_ln_gemm2 if RAW[1] == "1" else gen_ln_gemm)("gu"))
    kernels.append(gen_plain("down"))
    out = []
    src = open("cdna_kernels/%s.s.ref" % NAME).read().split("\n")
    for ln in src:
        if ln.startswith("; Override"): break
        out.append(ln)
    for (n, g, b, lds, vg) in kernels:
        out.append(f"; @launch kernel={n} grid=({g},1,1) block=({b},1,1) lds={lds}")
    out.append('.amdgcn_target "amdgcn-amd-amdhsa--gfx950"')
    out += L
    out.append("k_end_label:")
    out.append('.section .rodata,"a"')
    for (n, g, b, lds, vg) in kernels:
        out.append(".p2align 6")
        out.append(f".amdhsa_kernel {n}")
        out.append(f"  .amdhsa_next_free_vgpr {vg}")
        out.append("  .amdhsa_next_free_sgpr 102")
        out.append(f"  .amdhsa_accum_offset {vg}")
        out.append("  .amdhsa_group_segment_fixed_size 0")
        out.append("  .amdhsa_kernarg_size 80")
        out.append("  .amdhsa_user_sgpr_count 2")
        out.append("  .amdhsa_user_sgpr_kernarg_segment_ptr 1")
        out.append("  .amdhsa_system_sgpr_workgroup_id_x 1")
        out.append(".end_amdhsa_kernel")
    open("cdna_kernels/%s.s" % NAME, "w").write("\n".join(out) + "\n")

if __name__ == "__main__":
    main()
```

```python
import sys
NAME = "sequential_preLN__sliding_block__glu_gated_glu__prompt"
WS_QK, WS_VT, WS_O, WS_H, WS_HM = 0, 4 << 20, 6 << 20, 8 << 20, 10 << 20
WS_SIZE = 268435456
L = []
MAPS = dict(qkv="4x2", wo="4x2", gu="4x2", down="4x2")
import os
for _k in MAPS:
    if os.environ.get("MAP_"+_k): MAPS[_k] = os.environ["MAP_"+_k]
def e(s): L.append("    " + s)
def lab(s): L.append(s + ":")
def cmt(s): L.append("    ; " + s)
def vr(a, n=1): return f"v{a}" if n == 1 else f"v[{a}:{a+n-1}]"
def sr(a, n=1): return f"s{a}" if n == 1 else f"s[{a}:{a+n-1}]"

def srd(d, ptr, nbytes, add=0):
    if add:
        e(f"s_add_u32 s{d}, s{ptr}, {add}")
        e(f"s_addc_u32 s{d+1}, s{ptr+1}, 0")
    else:
        e(f"s_mov_b32 s{d}, s{ptr}")
        e(f"s_mov_b32 s{d+1}, s{ptr+1}")
    e(f"s_mov_b32 s{d+2}, {nbytes}")
    e(f"s_mov_b32 s{d+3}, 0x00020000")

def wgmap(s_cg, s_rt, m):
    if m == "cols":
        e(f"s_and_b32 s{s_cg}, s2, 7")
        e(f"s_lshr_b32 s{s_rt}, s2, 3")
    elif m == "rows":
        e(f"s_and_b32 s{s_rt}, s2, 7")
        e(f"s_lshl_b32 s{s_rt}, s{s_rt}, 2")
        e(f"s_bfe_u32 s{s_cg}, s2, 0x20003")
        e(f"s_add_u32 s{s_rt}, s{s_rt}, s{s_cg}")
        e(f"s_lshr_b32 s{s_cg}, s2, 5")
    elif m == "4x2":
        e(f"s_and_b32 s{s_rt}, s2, 3")
        e(f"s_lshl_b32 s{s_rt}, s{s_rt}, 3")
        e(f"s_bfe_u32 s{s_cg}, s2, 0x30003")
        e(f"s_add_u32 s{s_rt}, s{s_rt}, s{s_cg}")
        e(f"s_bfe_u32 s{s_cg}, s2, 0x10002")
        e(f"s_lshl_b32 s{s_cg}, s{s_cg}, 2")
        e(f"s_lshr_b32 s100, s2, 6")
        e(f"s_add_u32 s{s_cg}, s{s_cg}, s100")
    elif m == "2d":
        e(f"s_and_b32 s{s_rt}, s2, 1")
        e(f"s_lshl_b32 s{s_rt}, s{s_rt}, 4")
        e(f"s_bfe_u32 s{s_cg}, s2, 0x40003")
        e(f"s_add_u32 s{s_rt}, s{s_rt}, s{s_cg}")
        e(f"s_bfe_u32 s{s_cg}, s2, 0x20001")
        e(f"s_lshl_b32 s{s_cg}, s{s_cg}, 1")
        e(f"s_lshr_b32 s100, s2, 7")
        e(f"s_add_u32 s{s_cg}, s{s_cg}, s100")

import os
STAMP = os.environ.get("STAMP", "")
DFL = os.environ.get("DFL", "")
PDL = int(os.environ.get("PDL", "3"))
NST = [0]
def stamp(kn):
    if STAMP != kn: return
    i = NST[0]; NST[0] += 1
    e(f"s_memtime s[{70+2*i}:{71+2*i}]")
def stamp_out(kn, wg=37):
    if STAMP != kn: return
    e("s_waitcnt lgkmcnt(0) vmcnt(0)")
    e(f"s_cmp_lg_u32 s2, {wg}")
    e(f"s_cbranch_scc1 {kn}_nost")
    e("s_load_dwordx2 s[96:97], s[0:1], 64")
    e("v_lshrrev_b32 v1, 6, v0")
    e("v_lshlrev_b32 v1, 5, v1")
    e("s_waitcnt lgkmcnt(0)")
    for i in range(min(8, NST[0])):
        e(f"s_sub_u32 s98, s{70+2*i}, s70")
        e(f"v_mov_b32 v2, s98")
        e(f"global_store_dword v1, v2, s[96:97] offset:{4*i}")
    lab(f"{kn}_nost")

def capture(fn, *a):
    global L
    old = L; L = []
    fn(*a)
    r = L; L = old
    return r
def chunks_of(lines):
    out = []; i = 0
    while i < len(lines):
        if "m0" in lines[i]:
            out.append(lines[i:i+3]); i += 3
        else:
            out.append([lines[i]]); i += 1
    return out
def interleave(A, B):
    global L
    n = len(A); m = len(B); j = 0
    for i, a in enumerate(A):
        L.append(a)
        tgt = (i + 1) * m // n
        while j < tgt:
            L += B[j]; j += 1
    while j < m:
        L += B[j]; j += 1

def header(name):
    L.append(".text")
    L.append(f".globl {name}")
    L.append(".p2align 8")
    L.append(f".type {name},@function")
    lab(name)

for p in range(768):
    assert (p * 2731) >> 16 == p // 24

def gen_ln_gemm(mode):
    qkv = mode == "qkv"
    name = "k_qkv_kernel" if qkv else "k_gu_kernel"
    MAPMODE = MAPS[mode]
    header(name)
    R = 4; S = 8 if qkv else 16
    WROW = 3072 if qkv else 2752
    KADV = (64 if qkv else 32) * WROW
    XB = 0; WB = 65536; SLOT = 24576
    XR = 176; RS = 208
    sX, sW, sO = 8, 12, 16
    s_wave, s_cg, s_rt, s_wm, s_wn, s_m0, s_k, s_t, s_t2 = 20, 21, 22, 23, 24, 25, 26, 27, 28
    e(f"s_cmp_ge_u32 s2, 256")
    e(f"s_cbranch_scc1 {name}_done")
    stamp(name)
    e("s_load_dwordx4 s[32:35], s[0:1], 0")
    e("s_load_dwordx4 s[36:39], s[0:1], 32")
    e("s_load_dwordx2 s[40:41], s[0:1], 72")
    e("v_lshrrev_b32 v1, 6, v0")
    e("v_and_b32 v2, 63, v0")
    e("s_nop 0")
    e(f"v_readfirstlane_b32 s{s_wave}, v1")
    wgmap(s_cg, s_rt, MAPMODE)
    e(f"s_lshr_b32 s{s_wm}, s{s_wave}, 2")
    e(f"s_and_b32 s{s_wn}, s{s_wave}, 3")
    e("s_waitcnt lgkmcnt(0)")
    if qkv:
        srd(sX, 32, 2048 * 1024)
        srd(sW, 34, 512 * 3072)
        srd(sO, 40, 6 << 20)
    else:
        srd(sX, 40, 2048 * 1024, WS_H)
        e(f"s_cmp_eq_u32 s{s_wm}, 0")
        e("s_cselect_b32 s42, s36, s38")
        e("s_cselect_b32 s43, s37, s39")
        srd(sW, 42, 512 * 2752)
        srd(sO, 40, 2048 * 2752, WS_HM)
    TP = os.environ.get("TP", "0") == "1" and qkv
    if TP:
        e("s_lshr_b32 s44, s2, 3")
        e("s_lshl_b32 s44, s44, 3")
        e(f"s_add_u32 s44, s44, s{s_wave}")
        e("s_mul_i32 s44, s44, 6144")
        e("s_bfe_u32 s45, s2, 0x10002")
        e("s_mul_i32 s45, s45, 1536")
        e("s_add_u32 s44, s44, s45")
        e("v_lshrrev_b32 v3, 5, v2")
        e("v_mul_u32_u24 v3, 3072, v3")
        e("v_and_b32 v4, 31, v2")
        e("v_mul_u32_u24 v4, 48, v4")
        e("v_add_u32 v236, v3, v4")
    e("v_lshrrev_b32 v4, 3, v2")
    e("v_and_b32 v5, 7, v2")
    e(f"s_lshl_b32 s{s_t}, s{s_wave}, 3")
    e(f"v_add_u32 v6, s{s_t}, v4")
    e("v_lshlrev_b32 v3, 10, v6")
    e("v_lshl_add_u32 v3, v5, 4, v3")
    e(f"s_lshl_b32 s{s_t}, s{s_rt}, 16")
    for i in range(8):
        e(f"buffer_load_dwordx4 {vr(XR+4*i,4)}, v3, {sr(sX,4)}, s{s_t} offen offset:{i*128}")
    e(f"s_mul_i32 s{s_t2}, s{s_wn}, 192")
    for i in range(3):
        e(f"v_add_u32 v11, s{s_t2}, v2")
        if i: e(f"v_add_u32 v11, {i*64}, v11")
        e("v_mul_u32_u24 v12, 2731, v11")
        e("v_lshrrev_b32 v12, 16, v12")
        e("v_mul_u32_u24 v13, 24, v12")
        e("v_sub_u32 v13, v11, v13")
        e("v_bfe_u32 v14, v12, 1, 1")
        e("v_bfe_u32 v15, v12, 3, 1")
        e("v_lshl_or_b32 v14, v15, 1, v14")
        e("v_lshlrev_b32 v14, 1, v14")
        if not os.environ.get("NOSWZ"): e("v_xor_b32 v13, v13, v14")
        e(f"s_mov_b32 s{s_t}, {WROW}")
        e(f"v_mul_lo_u32 v12, v12, s{s_t}")
        e(f"v_lshl_add_u32 v{8+i}, v13, 4, v12")
    e(f"s_mul_i32 s{s_k}, s{s_cg}, 384")
    if qkv:
        e(f"s_mul_i32 s{s_t}, s{s_wm}, {32*3072}")
        e(f"s_add_u32 s{s_k}, s{s_k}, s{s_t}")
    e(f"s_mul_i32 s{s_m0}, s{s_wave}, 3072")
    e(f"s_add_u32 s{s_m0}, s{s_m0}, {WB}")
    def dma(st):
        slot = st % R
        for i in range(3):
            e(f"s_add_u32 m0, s{s_m0}, {slot*SLOT + i*1024}")
            e("s_nop 0")
            e(f"buffer_load_dwordx4 v{8+i}, {sr(sW,4)}, s{s_k} offen {DFL} lds")
        e(f"s_add_u32 s{s_k}, s{s_k}, {KADV}")
    dma(0)
    if TP:
        e(f"buffer_load_dword v224, v236, {sr(sW,4)}, s44 offen")
    e("v_mov_b32 v28, v4"); e("v_mov_b32 v29, v5"); e("v_mov_b32 v30, v6")
    e("v_and_b32 v4, 15, v2")
    e("v_lshrrev_b32 v5, 4, v2")
    e(f"s_lshl_b32 s{s_t}, s{s_wm}, 15")
    e("v_lshlrev_b32 v6, 10, v4")
    e(f"v_add_u32 v6, s{s_t}, v6")
    e("v_and_b32 v7, 3, v4")
    e("v_xor_b32 v7, v7, v5")
    e("v_lshrrev_b32 v11, 2, v4")
    for k in range(4):
        e(f"v_xor_b32 v12, {k}, v11")
        e("v_lshl_or_b32 v12, v12, 2, v7")
        e(f"v_lshl_add_u32 v{24+k}, v12, 4, v6")
    e("v_lshrrev_b32 v11, 2, v4")
    e("v_and_b32 v12, 3, v4")
    e("v_lshl_add_u32 v13, v5, 3, v11")
    e("v_mul_u32_u24 v13, 384, v13")
    e("v_lshl_add_u32 v13, v12, 3, v13")
    e(f"v_add_u32 v13, {WB}, v13")
    e("v_lshrrev_b32 v14, 1, v11")
    e("v_and_b32 v15, 1, v5")
    e("v_lshl_or_b32 v14, v15, 1, v14")
    e(f"s_mul_i32 s{s_t}, s{s_wn}, 3")
    for j in range(3):
        e(f"s_add_u32 s{s_t2}, s{s_t}, {j}")
        e(f"v_xor_b32 v15, s{s_t2}, v14")
        e(f"v_lshl_add_u32 v{16+j}, v15, 5, v13")
        e(f"v_add_u32 v{19+j}, {2*SLOT}, v{16+j}")
    ACC = 128
    NACC = 6 if qkv else 12
    for i in range(NACC * 4):
        e(f"v_mov_b32 v{ACC+i}, 0")
    e(f"s_waitcnt vmcnt({4 if TP else 3})")
    stamp(name)
    e(f"s_mov_b32 s31, 0x3f803f80")
    e(f"v_dot2_f32_bf16 v{RS+6}, v{XR}, s31, 0")
    e(f"v_dot2_f32_bf16 v{RS+7}, v{XR+1}, s31, 0")
    e(f"v_dot2_f32_bf16 v{RS+8}, v{XR}, v{XR}, 0")
    e(f"v_dot2_f32_bf16 v{RS+9}, v{XR+1}, v{XR+1}, 0")
    for i in range(2, 32, 2):
        e(f"v_dot2_f32_bf16 v{RS+6}, v{XR+i}, s31, v{RS+6}")
        e(f"v_dot2_f32_bf16 v{RS+7}, v{XR+i+1}, s31, v{RS+7}")
        e(f"v_dot2_f32_bf16 v{RS+8}, v{XR+i}, v{XR+i}, v{RS+8}")
        e(f"v_dot2_f32_bf16 v{RS+9}, v{XR+i+1}, v{XR+i+1}, v{RS+9}")
    e(f"s_nop 3")
    e(f"v_add_f32 v{RS+6}, v{RS+6}, v{RS+7}")
    e(f"v_add_f32 v{RS+8}, v{RS+8}, v{RS+9}")
    for ctl in ("quad_perm:[1,0,3,2]", "quad_perm:[2,3,0,1]", "row_half_mirror"):
        e(f"s_nop 1")
        e(f"v_add_f32_dpp v{RS+6}, v{RS+6}, v{RS+6} {ctl} row_mask:0xf bank_mask:0xf")
        e(f"v_add_f32_dpp v{RS+8}, v{RS+8}, v{RS+8} {ctl} row_mask:0xf bank_mask:0xf")
    dma(1)
    e(f"v_mul_f32 v{RS+6}, 0x3b000000, v{RS+6}")
    e(f"v_mul_f32 v{RS+8}, 0x3b000000, v{RS+8}")
    e(f"v_fma_f32 v{RS+8}, -v{RS+6}, v{RS+6}, v{RS+8}")
    e(f"v_max_f32 v{RS+8}, 0, v{RS+8}")
    e(f"v_add_f32 v{RS+8}, 0x3727c5ac, v{RS+8}")
    e(f"v_rsq_f32 v{RS}, v{RS+8}")
    e(f"s_nop 0")
    e(f"v_mul_f32 v{RS+1}, v{RS+6}, v{RS}")
    e(f"v_sub_f32 v{RS+1}, 0, v{RS+1}")
    e(f"v_xor_b32 v{RS+10}, v28, v29")
    e(f"s_and_b32 s{s_t}, s{s_wave}, 1")
    e(f"s_lshl_b32 s{s_t}, s{s_t}, 3")
    e(f"v_add_u32 v{RS+11}, s{s_t}, v{RS+10}")
    e(f"s_xor_b32 s{s_t}, s{s_t}, 8")
    e(f"v_add_u32 v{RS+12}, s{s_t}, v{RS+10}")
    e(f"v_lshlrev_b32 v{RS+2}, 10, v30")
    e(f"v_lshl_add_u32 v{RS+3}, v{RS+12}, 4, v{RS+2}")
    e(f"v_lshl_add_u32 v{RS+2}, v{RS+11}, 4, v{RS+2}")
    def norm(i):
        for r in range(4):
            x = XR + 4*i + r
            e(f"v_lshlrev_b32 v{RS+4}, 16, v{x}")
            e(f"v_and_b32 v{RS+5}, 0xffff0000, v{x}")
            e(f"v_fma_f32 v{RS+4}, v{RS+4}, v{RS}, v{RS+1}")
            e(f"v_fma_f32 v{RS+5}, v{RS+5}, v{RS}, v{RS+1}")
            e(f"v_cvt_pk_bf16_f32 v{x}, v{RS+4}, v{RS+5}")
        e(f"ds_write_b128 v{RS+2+(i&1)}, {vr(XR+4*i,4)} offset:{XB+(i>>1)*256}")
    norm(0); norm(1)
    stamp(name)
    FS = [32, 80]
    def reads(st):
        base = FS[st & 1]; slot = st % R
        wa = 16 if slot < 2 else 19; so = (slot & 1) * SLOT
        nk = 2 if qkv else 1
        for kk in range(nk):
            ks = st * nk + kk
            for mt in range(2):
                e(f"ds_read_b128 {vr(base+(kk*2+mt)*4,4)}, v{24+(ks&3)} offset:{XB+(ks>>2)*256+mt*16384}")
        for b in range(2):
            for j in range(3):
                for t2 in range(2):
                    e(f"ds_read_b64_tr_b16 {vr(base+16+(b*3+j)*4+t2*2,2)}, v{wa+j} offset:{so+b*12288+t2*1536}")
    def mfmas(st):
        base = FS[st & 1]
        for b in range(2):
            for j in range(3):
                for mt in range(2):
                    if qkv: a = ACC + (mt*3+j)*4; x = base + (b*2+mt)*4
                    else:   a = ACC + ((b*2+mt)*3+j)*4; x = base + mt*4
                    e(f"v_mfma_f32_16x16x32_bf16 {vr(a,4)}, {vr(base+16+(b*3+j)*4,4)}, {vr(x,4)}, {vr(a,4)}")
    issued = 2
    for st in range(S):
        e(f"s_waitcnt vmcnt({(issued-1-st)*3 + (1 if (TP and st == 0) else 0)}) lgkmcnt(0)")
        e("s_barrier")
        if st in (0, 1, 2, 4, 6, S-1): stamp(name)
        B = chunks_of(capture(reads, st)) if not (os.environ.get("NORD") and st > 1) else []
        while issued < S and issued <= st + PDL:
            if not os.environ.get("NODMA"): B += chunks_of(capture(dma, issued))
            issued += 1
        if qkv:
            if st + 2 < 8: B += chunks_of(capture(norm, st + 2))
        else:
            if st % 2 == 0 and st // 2 + 2 < 8: B += chunks_of(capture(norm, st // 2 + 2))
        if st >= 1: interleave(capture(mfmas, st - 1), B)
        else:
            for c in B: L.extend(c)
    e("s_waitcnt lgkmcnt(0)")
    mfmas(S - 1)
    e("s_barrier")
    stamp(name)
    e("v_lshlrev_b32 v6, 5, v4")
    e("v_lshl_add_u32 v6, v5, 3, v6")
    if qkv:
        e(f"s_lshl_b32 s{s_t}, s{s_wave}, 9")
        e(f"v_add_u32 v7, s{s_t}, v6")
        e("v_lshrrev_b32 v11, 2, v4")
        e("v_and_b32 v12, 3, v4")
        e("v_lshl_add_u32 v11, v5, 2, v11")
        e("v_lshlrev_b32 v11, 5, v11")
        e("v_lshl_add_u32 v11, v12, 3, v11")
        e(f"v_add_u32 v11, s{s_t}, v11")
        e(f"s_mul_i32 s29, s{s_cg}, 12")
        e(f"s_mul_i32 s{s_t}, s{s_wn}, 3")
        e(f"s_add_u32 s29, s29, s{s_t}")
        e(f"s_lshl_b32 s30, s{s_rt}, 2")
        e(f"s_lshl_b32 s{s_t}, s{s_wm}, 1")
        e(f"s_add_u32 s30, s30, s{s_t}")
        e("s_nop 4")
        for j in range(3):
            for mt in range(2):
                a = ACC + (mt*3+j)*4
                e(f"v_cvt_pk_bf16_f32 v32, v{a}, v{a+1}")
                e(f"v_cvt_pk_bf16_f32 v33, v{a+2}, v{a+3}")
                e(f"s_add_u32 s{s_t}, s29, {j}")
                e(f"s_add_u32 s{s_t2}, s30, {mt}")
                e(f"s_cmp_ge_u32 s{s_t}, 64")
                e(f"s_cbranch_scc1 {name}_v{j}{mt}")
                e(f"s_lshl_b32 s{s_t}, s{s_t}, 16")
                e(f"s_lshl_b32 s{s_t2}, s{s_t2}, 9")
                e(f"s_add_u32 s{s_t}, s{s_t}, s{s_t2}")
                e(f"buffer_store_dwordx2 v[32:33], v6, {sr(sO,4)}, s{s_t} offen")
                e(f"s_branch {name}_n{j}{mt}")
                lab(f"{name}_v{j}{mt}")
                e("ds_write_b64 v7, v[32:33]")
                e("s_waitcnt lgkmcnt(0)")
                e("ds_read_b64_tr_b16 v[34:35], v11")
                e(f"s_sub_u32 s{s_t}, s{s_t}, 64")
                e(f"s_lshl_b32 s{s_t}, s{s_t}, 16")
                e(f"s_lshl_b32 s{s_t2}, s{s_t2}, 9")
                e(f"s_add_u32 s{s_t}, s{s_t}, s{s_t2}")
                e(f"s_add_u32 s{s_t}, s{s_t}, {WS_VT}")
                e("s_waitcnt lgkmcnt(0)")
                e(f"buffer_store_dwordx2 v[34:35], v6, {sr(sO,4)}, s{s_t} offen")
                lab(f"{name}_n{j}{mt}")
                e("s_nop 1")
    else:
        e(f"s_lshl_b32 s{s_t}, s{s_rt}, 6")
        e(f"s_lshl_b32 s{s_t2}, s{s_wm}, 5")
        e(f"s_add_u32 s{s_t}, s{s_t}, s{s_t2}")
        e(f"v_add_u32 v7, s{s_t}, v4")
        e(f"s_mov_b32 s{s_t}, 2752")
        e(f"v_mul_lo_u32 v7, v7, s{s_t}")
        e("v_lshl_add_u32 v7, v5, 3, v7")
        e(f"s_mul_i32 s29, s{s_cg}, 12")
        e(f"s_mul_i32 s{s_t}, s{s_wn}, 3")
        e(f"s_add_u32 s29, s29, s{s_t}")
        e("s_mov_b32 s30, 0xbfb8aa3b")
        e("s_nop 4")
        for j in range(3):
            e(f"s_add_u32 s{s_t}, s29, {j}")
            e(f"s_cmp_ge_u32 s{s_t}, 86")
            e(f"s_cbranch_scc1 {name}_skip{j}")
            e(f"s_lshl_b32 s{s_t}, s{s_t}, 5")
            for mt in range(2):
                g = ACC + (mt*3+j)*4; u = ACC + ((2+mt)*3+j)*4
                for r in range(4): e(f"v_mul_f32 v{32+r}, s30, v{g+r}")
                for r in range(4): e(f"v_exp_f32 v{32+r}, v{32+r}")
                e("s_nop 0")
                for r in range(4): e(f"v_add_f32 v{32+r}, 1.0, v{32+r}")
                for r in range(4): e(f"v_rcp_f32 v{32+r}, v{32+r}")
                e("s_nop 0")
                for r in range(4): e(f"v_mul_f32 v{32+r}, v{32+r}, v{u+r}")
                e(f"v_cvt_pk_bf16_f32 v{36+2*mt}, v32, v33")
                e(f"v_cvt_pk_bf16_f32 v{37+2*mt}, v34, v35")
                e(f"buffer_store_dwordx2 {vr(36+2*mt,2)}, v7, {sr(sO,4)}, s{s_t} offen offset:0" if mt == 0 else
                  f"buffer_store_dwordx2 {vr(36+2*mt,2)}, v41, {sr(sO,4)}, s{s_t} offen")
                if mt == 0: e(f"v_add_u32 v41, {16*2752}, v7")
            e("s_nop 1")
            lab(f"{name}_skip{j}")
    stamp(name)
    stamp_out(name)
    lab(f"{name}_done")
    e("s_endpgm")
    return name, 256, 512, 163840, (240 if qkv else 224)

def gen_ln_gemm2(mode):
    qkv = mode == "qkv"
    name = "k_qkv_kernel" if qkv else "k_gu_kernel"
    MAPMODE = MAPS[mode]
    header(name)
    R = 4; S = 8 if qkv else 16
    WROW = 3072 if qkv else 2752
    KADV = (64 if qkv else 32) * WROW
    XB = 0; WB = 65536; SLOT = 24576
    XR = 176; RS = 208
    sX, sW, sO = 8, 12, 16
    s_wave, s_cg, s_rt, s_wm, s_wn, s_m0, s_k, s_t, s_t2 = 20, 21, 22, 23, 24, 25, 26, 27, 28
    e(f"s_cmp_ge_u32 s2, 256")
    e(f"s_cbranch_scc1 {name}_done")
    stamp(name)
    e("s_load_dwordx4 s[32:35], s[0:1], 0")
    e("s_load_dwordx4 s[36:39], s[0:1], 32")
    e("s_load_dwordx2 s[40:41], s[0:1], 72")
    e("v_lshrrev_b32 v1, 6, v0")
    e("v_and_b32 v2, 63, v0")
    e("s_nop 0")
    e(f"v_readfirstlane_b32 s{s_wave}, v1")
    wgmap(s_cg, s_rt, MAPMODE)
    e(f"s_lshr_b32 s{s_wm}, s{s_wave}, 2")
    e(f"s_and_b32 s{s_wn}, s{s_wave}, 3")
    e("s_waitcnt lgkmcnt(0)")
    if qkv:
        srd(sX, 32, 2048 * 1024)
        srd(sW, 34, 512 * 3072)
        srd(sO, 40, 6 << 20)
    else:
        srd(sX, 40, 2048 * 1024, WS_H)
        e(f"s_cmp_eq_u32 s{s_wm}, 0")
        e("s_cselect_b32 s42, s36, s38")
        e("s_cselect_b32 s43, s37, s39")
        srd(sW, 42, 512 * 2752)
        srd(sO, 40, 2048 * 2752, WS_HM)

    CS = 224; ONES = 236; WA1 = 240; XA = 246
    s_mx, s_kx = 44, 45
    seq = []
    for i in range(2):
        e(f"s_lshl_b32 s{s_t}, s{s_wave}, 7")
        e(f"v_add_u32 v12, s{s_t}, v2")
        if i: e("v_add_u32 v12, 64, v12")
        e("v_lshrrev_b32 v13, 4, v12")
        e("v_and_b32 v14, 15, v12")
        e("v_and_b32 v15, 15, v13")
        e("v_xor_b32 v14, v14, v15")
        e("v_lshlrev_b32 v13, 10, v13")
        e(f"v_lshl_add_u32 v{XA+i}, v14, 4, v13")
    e(f"s_lshl_b32 s{s_kx}, s{s_rt}, 16")
    e(f"s_lshl_b32 s{s_mx}, s{s_wave}, 11")
    def dmax(g):
        for i in range(2):
            e(f"s_add_u32 m0, s{s_mx}, {XB + g*16384 + i*1024}")
            e("s_nop 0")
            e(f"buffer_load_dwordx4 v{XA+i}, {sr(sX,4)}, s{s_kx} offen lds")
        e(f"s_add_u32 s{s_kx}, s{s_kx}, 256")
        seq.extend([("X", g)] * 2)
    dmax(0)
    e(f"s_mul_i32 s{s_t2}, s{s_wn}, 192")
    for i in range(3):
        e(f"v_add_u32 v11, s{s_t2}, v2")
        if i: e(f"v_add_u32 v11, {i*64}, v11")
        e("v_mul_u32_u24 v12, 2731, v11")
        e("v_lshrrev_b32 v12, 16, v12")
        e("v_mul_u32_u24 v13, 24, v12")
        e("v_sub_u32 v13, v11, v13")
        e("v_bfe_u32 v14, v12, 1, 1")
        e("v_bfe_u32 v15, v12, 3, 1")
        e("v_lshl_or_b32 v14, v15, 1, v14")
        e("v_lshlrev_b32 v14, 1, v14")
        e("v_xor_b32 v13, v13, v14")
        e(f"s_mov_b32 s{s_t}, {WROW}")
        e(f"v_mul_lo_u32 v12, v12, s{s_t}")
        e(f"v_lshl_add_u32 v{8+i}, v13, 4, v12")
    e(f"s_mul_i32 s{s_k}, s{s_cg}, 384")
    if qkv:
        e(f"s_mul_i32 s{s_t}, s{s_wm}, {32*3072}")
        e(f"s_add_u32 s{s_k}, s{s_k}, s{s_t}")
    e(f"s_mul_i32 s{s_m0}, s{s_wave}, 3072")
    e(f"s_add_u32 s{s_m0}, s{s_m0}, {WB}")
    def dma(st):
        slot = st % R
        for i in range(3):
            e(f"s_add_u32 m0, s{s_m0}, {slot*SLOT + i*1024}")
            e("s_nop 0")
            e(f"buffer_load_dwordx4 v{8+i}, {sr(sW,4)}, s{s_k} offen lds")
        e(f"s_add_u32 s{s_k}, s{s_k}, {KADV}")
        seq.extend([("W", st)] * 3)
    XS = os.environ.get("XS", "1") == "1"
    dma(0); dma(1)
    if not XS: dmax(1); dmax(2); dmax(3)
    e("v_lshrrev_b32 v4, 3, v2")
    e("v_and_b32 v5, 7, v2")
    e(f"s_lshl_b32 s{s_t}, s{s_wave}, 3")
    e(f"v_add_u32 v6, s{s_t}, v4")
    e(f"v_lshlrev_b32 v{RS+2}, 8, v6")
    e(f"v_lshl_add_u32 v{RS+2}, v5, 4, v{RS+2}")
    e(f"v_lshlrev_b32 v{RS+3}, 3, v6")
    e(f"v_add_u32 v{RS+3}, {WB}, v{RS+3}")
    e(f"s_mul_i32 s{s_t}, s{s_wave}, 3072")
    e(f"s_add_u32 s{s_t}, s{s_t}, {WB+1024}")
    e(f"v_lshl_add_u32 v{RS+4}, v2, 4, s{s_t}")
    e(f"s_xor_b32 s{s_t}, s{s_wave}, 4")
    e(f"s_mul_i32 s{s_t}, s{s_t}, 3072")
    e(f"s_add_u32 s{s_t}, s{s_t}, {WB+1024}")
    e(f"v_lshl_add_u32 v{RS+10}, v2, 4, s{s_t}")
    e("v_and_b32 v4, 15, v2")
    e("v_lshrrev_b32 v5, 4, v2")
    e(f"s_lshl_b32 s{s_t}, s{s_wm}, 8")
    e(f"s_add_u32 s{s_t}, s{s_t}, {WB}")
    e(f"v_lshl_add_u32 v{RS+5}, v4, 3, s{s_t}")
    e(f"s_lshl_b32 s{s_t}, s{s_wm}, 13")
    e("v_lshlrev_b32 v6, 8, v4")
    e(f"v_add_u32 v6, s{s_t}, v6")
    e("v_and_b32 v7, 3, v4")
    e("v_xor_b32 v7, v7, v5")
    e("v_lshrrev_b32 v11, 2, v4")
    for k in range(4):
        if qkv:
            e(f"s_xor_b32 s{s_t}, s{s_wm}, {k}")
            e(f"v_xor_b32 v12, s{s_t}, v11")
        else:
            e(f"v_xor_b32 v12, {k}, v11")
        e("v_lshl_or_b32 v12, v12, 2, v7")
        e(f"v_lshl_add_u32 v{24+k}, v12, 4, v6")
    e("v_lshrrev_b32 v11, 2, v4")
    e("v_and_b32 v12, 3, v4")
    e("v_lshl_add_u32 v13, v5, 3, v11")
    e("v_mul_u32_u24 v13, 384, v13")
    e("v_lshl_add_u32 v13, v12, 3, v13")
    e(f"v_add_u32 v13, {WB}, v13")
    e("v_lshrrev_b32 v14, 1, v11")
    e("v_and_b32 v15, 1, v5")
    e("v_lshl_or_b32 v14, v15, 1, v14")
    e(f"s_mul_i32 s{s_t}, s{s_wn}, 3")
    e(f"s_mul_i32 s29, s{s_wm}, 12288")
    e(f"s_sub_u32 s30, 12288, s29")
    for j in range(3):
        e(f"s_add_u32 s{s_t2}, s{s_t}, {j}")
        e(f"v_xor_b32 v15, s{s_t2}, v14")
        e(f"v_lshl_add_u32 v15, v15, 5, v13")
        e(f"v_add_u32 v{16+j}, s29, v15")
        e(f"v_add_u32 v{19+j}, {2*SLOT}, v{16+j}")
        e(f"v_add_u32 v{WA1+j}, s30, v15")
        e(f"v_add_u32 v{WA1+3+j}, {2*SLOT}, v{WA1+j}")
    ACC = 128
    NACC = 6 if qkv else 12
    for i in range(NACC * 4):
        e(f"v_mov_b32 v{ACC+i}, 0")
    for i in range(12): e(f"v_mov_b32 v{CS+i}, 0")
    for i in range(4): e(f"v_mov_b32 v{ONES+i}, 0x3f803f80")
    e(f"s_mov_b32 s31, 0x3f803f80")
    stamp(name)
    def stat_reads():
        for i in range(8):
            e(f"ds_read_b128 {vr(XR+4*i,4)}, v{RS+2} offset:{XB+(i>>1)*16384+(i&1)*128}")
    SC = []
    def c(*ls): SC.append(["    " + l for l in ls])
    c(f"v_dot2_f32_bf16 v{RS+6}, v{XR}, s31, 0")
    c(f"v_dot2_f32_bf16 v{RS+7}, v{XR+1}, s31, 0")
    c(f"v_dot2_f32_bf16 v{RS+8}, v{XR}, v{XR}, 0")
    c(f"v_dot2_f32_bf16 v{RS+9}, v{XR+1}, v{XR+1}, 0")
    for i in range(2, 32, 2):
        c(f"v_dot2_f32_bf16 v{RS+6}, v{XR+i}, s31, v{RS+6}")
        c(f"v_dot2_f32_bf16 v{RS+7}, v{XR+i+1}, s31, v{RS+7}")
        c(f"v_dot2_f32_bf16 v{RS+8}, v{XR+i}, v{XR+i}, v{RS+8}")
        c(f"v_dot2_f32_bf16 v{RS+9}, v{XR+i+1}, v{XR+i+1}, v{RS+9}")
    c("s_nop 3", f"v_add_f32 v{RS+6}, v{RS+6}, v{RS+7}", f"v_add_f32 v{RS+8}, v{RS+8}, v{RS+9}")
    for ctl in ("quad_perm:[1,0,3,2]", "quad_perm:[2,3,0,1]", "row_half_mirror"):
        c("s_nop 1",
          f"v_add_f32_dpp v{RS+6}, v{RS+6}, v{RS+6} {ctl} row_mask:0xf bank_mask:0xf",
          f"v_add_f32_dpp v{RS+8}, v{RS+8}, v{RS+8} {ctl} row_mask:0xf bank_mask:0xf")
    c(f"v_mul_f32 v{RS+6}, 0x3b000000, v{RS+6}",
      f"v_mul_f32 v{RS+8}, 0x3b000000, v{RS+8}",
      f"v_fma_f32 v{RS+8}, -v{RS+6}, v{RS+6}, v{RS+8}",
      f"v_max_f32 v{RS+8}, 0, v{RS+8}",
      f"v_add_f32 v{RS+8}, 0x3727c5ac, v{RS+8}",
      f"v_rsq_f32 v{RS}, v{RS+8}",
      "s_nop 0",
      f"v_mul_f32 v{RS+1}, v{RS+6}, v{RS}",
      f"v_sub_f32 v{RS+1}, 0, v{RS+1}")
    NSC = len(SC)
    FS = [32, 80]
    def reads(st):
        base = FS[st & 1]; slot = st % R
        hi = 0 if slot < 2 else 3; so = (slot & 1) * SLOT
        nk = 2 if qkv else 1
        for kk in range(nk):
            ks = st * nk + kk
            for mt in range(2):
                e(f"ds_read_b128 {vr(base+(kk*2+mt)*4,4)}, v{24+(ks&3)} offset:{XB+(ks>>2)*16384+mt*4096}")
        for b in range(2):
            for j in range(3):
                wa = (16 if b == 0 else WA1) + hi + j
                for t2 in range(2):
                    e(f"ds_read_b64_tr_b16 {vr(base+16+(b*3+j)*4+t2*2,2)}, v{wa} offset:{so+t2*1536}")
    def mfmas(st):
        base = FS[st & 1]
        for b in range(2):
            for j in range(3):
                for mt in range(2):
                    if qkv: a = ACC + (mt*3+j)*4; x = base + (b*2+mt)*4
                    else:   a = ACC + ((b*2+mt)*3+j)*4; x = base + mt*4
                    e(f"v_mfma_f32_16x16x32_bf16 {vr(a,4)}, {vr(base+16+(b*3+j)*4,4)}, {vr(x,4)}, {vr(a,4)}")
                if b == 0:
                    e(f"v_mfma_f32_16x16x32_bf16 {vr(CS+4*j,4)}, {vr(base+16+j*4,4)}, {vr(ONES,4)}, {vr(CS+4*j,4)}")
    grp = (lambda st: st >> 1) if qkv else (lambda st: st >> 2)
    issued = 2
    ST0 = int(os.environ.get("ST0", "4" if XS else "2"))
    NSS = 3
    for st in range(S):
        tags = {("W", st), ("X", grp(st))}
        if st == ST0: tags |= {("X", g) for g in range(4)}
        last = max(i for i, t in enumerate(seq) if t in tags)
        e(f"s_waitcnt vmcnt({len(seq)-1-last}) lgkmcnt(0)")
        e("s_barrier")
        if st in (0, 1, 2, 4, 6, S-1): stamp(name)
        B = chunks_of(capture(reads, st))
        while issued < S and issued <= st + PDL:
            B += chunks_of(capture(dma, issued))
            issued += 1
        if XS and st < 3: B += chunks_of(capture(dmax, st + 1))
        if st == ST0: B += chunks_of(capture(stat_reads))
        if ST0 < st <= ST0 + NSS:
            q = st - ST0 - 1
            B += SC[q*NSC//NSS:(q+1)*NSC//NSS]
        if st >= 1: interleave(capture(mfmas, st - 1), B)
        else:
            for ch in B: L.extend(ch)
    e("s_waitcnt lgkmcnt(0)")
    mfmas(S - 1)
    e("s_barrier")
    stamp(name)
    e("s_nop 7"); e("s_nop 3")
    e(f"ds_write_b64 v{RS+3}, v[{RS}:{RS+1}]")
    for j in range(3):
        e(f"ds_write_b128 v{RS+4}, {vr(CS+4*j,4)} offset:{j*1024}")
    e("s_waitcnt lgkmcnt(0)")
    e("s_barrier")
    e(f"ds_read_b64 v[32:33], v{RS+5}")
    e(f"ds_read_b64 v[34:35], v{RS+5} offset:128")
    for j in range(3):
        e(f"ds_read_b128 {vr(36+4*j,4)}, v{RS+10} offset:{j*1024}")
    e("s_waitcnt lgkmcnt(0)")
    if qkv:
        for p in range(6):
            e(f"v_pk_add_f32 {vr(CS+2*p,2)}, {vr(CS+2*p,2)}, {vr(36+2*p,2)}")
    tn = 0
    for b in range(1 if qkv else 2):
        for mt in range(2):
            for j in range(3):
                a = (ACC + (mt*3+j)*4) if qkv else (ACC + ((b*2+mt)*3+j)*4)
                cc = (CS if b == 0 else 36) + 4*j
                for p in range(2):
                    t = 48 + 2*(tn % 4); tn += 1
                    e(f"v_pk_mul_f32 {vr(t,2)}, {vr(cc+2*p,2)}, {vr(32+2*mt,2)} op_sel:[0,1] op_sel_hi:[1,1]")
                    e(f"v_pk_fma_f32 {vr(a+2*p,2)}, {vr(a+2*p,2)}, {vr(32+2*mt,2)}, {vr(t,2)} op_sel_hi:[1,0,1]")
    if not qkv:
        e(f"s_cmp_eq_u32 s{s_wm}, 0")
        e(f"s_cbranch_scc1 {name}_nosw")
        for i in range(24):
            e(f"v_swap_b32 v{ACC+i}, v{ACC+24+i}")
        lab(f"{name}_nosw")
    e("v_lshlrev_b32 v6, 5, v4")
    e("v_lshl_add_u32 v6, v5, 3, v6")
    if qkv:
        e(f"s_lshl_b32 s{s_t}, s{s_wave}, 9")
        e(f"v_add_u32 v7, s{s_t}, v6")
        e("v_lshrrev_b32 v11, 2, v4")
        e("v_and_b32 v12, 3, v4")
        e("v_lshl_add_u32 v11, v5, 2, v11")
        e("v_lshlrev_b32 v11, 5, v11")
        e("v_lshl_add_u32 v11, v12, 3, v11")
        e(f"v_add_u32 v11, s{s_t}, v11")
        e(f"s_mul_i32 s29, s{s_cg}, 12")
        e(f"s_mul_i32 s{s_t}, s{s_wn}, 3")
        e(f"s_add_u32 s29, s29, s{s_t}")
        e(f"s_lshl_b32 s30, s{s_rt}, 2")
        e(f"s_lshl_b32 s{s_t}, s{s_wm}, 1")
        e(f"s_add_u32 s30, s30, s{s_t}")
        e("s_nop 4")
        for j in range(3):
            for mt in range(2):
                a = ACC + (mt*3+j)*4
                e(f"v_cvt_pk_bf16_f32 v32, v{a}, v{a+1}")
                e(f"v_cvt_pk_bf16_f32 v33, v{a+2}, v{a+3}")
                e(f"s_add_u32 s{s_t}, s29, {j}")
                e(f"s_add_u32 s{s_t2}, s30, {mt}")
                e(f"s_cmp_ge_u32 s{s_t}, 64")
                e(f"s_cbranch_scc1 {name}_v{j}{mt}")
                e(f"s_lshl_b32 s{s_t}, s{s_t}, 16")
                e(f"s_lshl_b32 s{s_t2}, s{s_t2}, 9")
                e(f"s_add_u32 s{s_t}, s{s_t}, s{s_t2}")
                e(f"buffer_store_dwordx2 v[32:33], v6, {sr(sO,4)}, s{s_t} offen")
                e(f"s_branch {name}_n{j}{mt}")
                lab(f"{name}_v{j}{mt}")
                e("ds_write_b64 v7, v[32:33]")
                e("s_waitcnt lgkmcnt(0)")
                e("ds_read_b64_tr_b16 v[34:35], v11")
                e(f"s_sub_u32 s{s_t}, s{s_t}, 64")
                e(f"s_lshl_b32 s{s_t}, s{s_t}, 16")
                e(f"s_lshl_b32 s{s_t2}, s{s_t2}, 9")
                e(f"s_add_u32 s{s_t}, s{s_t}, s{s_t2}")
                e(f"s_add_u32 s{s_t}, s{s_t}, {WS_VT}")
                e("s_waitcnt lgkmcnt(0)")
                e(f"buffer_store_dwordx2 v[34:35], v6, {sr(sO,4)}, s{s_t} offen")
                lab(f"{name}_n{j}{mt}")
                e("s_nop 1")
    else:
        e(f"s_lshl_b32 s{s_t}, s{s_rt}, 6")
        e(f"s_lshl_b32 s{s_t2}, s{s_wm}, 5")
        e(f"s_add_u32 s{s_t}, s{s_t}, s{s_t2}")
        e(f"v_add_u32 v7, s{s_t}, v4")
        e(f"s_mov_b32 s{s_t}, 2752")
        e(f"v_mul_lo_u32 v7, v7, s{s_t}")
        e("v_lshl_add_u32 v7, v5, 3, v7")
        e(f"s_mul_i32 s29, s{s_cg}, 12")
        e(f"s_mul_i32 s{s_t}, s{s_wn}, 3")
        e(f"s_add_u32 s29, s29, s{s_t}")
        e("s_mov_b32 s30, 0xbfb8aa3b")
        e("s_nop 4")
        for j in range(3):
            e(f"s_add_u32 s{s_t}, s29, {j}")
            e(f"s_cmp_ge_u32 s{s_t}, 86")
            e(f"s_cbranch_scc1 {name}_skip{j}")
            e(f"s_lshl_b32 s{s_t}, s{s_t}, 5")
            for mt in range(2):
                g = ACC + (mt*3+j)*4; u = ACC + ((2+mt)*3+j)*4
                for r in range(4): e(f"v_mul_f32 v{32+r}, s30, v{g+r}")
                for r in range(4): e(f"v_exp_f32 v{32+r}, v{32+r}")
                e("s_nop 0")
                for r in range(4): e(f"v_add_f32 v{32+r}, 1.0, v{32+r}")
                for r in range(4): e(f"v_rcp_f32 v{32+r}, v{32+r}")
                e("s_nop 0")
                for r in range(4): e(f"v_mul_f32 v{32+r}, v{32+r}, v{u+r}")
                e(f"v_cvt_pk_bf16_f32 v{36+2*mt}, v32, v33")
                e(f"v_cvt_pk_bf16_f32 v{37+2*mt}, v34, v35")
                e(f"buffer_store_dwordx2 {vr(36+2*mt,2)}, v7, {sr(sO,4)}, s{s_t} offen offset:0" if mt == 0 else
                  f"buffer_store_dwordx2 {vr(36+2*mt,2)}, v41, {sr(sO,4)}, s{s_t} offen")
                if mt == 0: e(f"v_add_u32 v41, {16*2752}, v7")
            e("s_nop 1")
            lab(f"{name}_skip{j}")
    stamp(name)
    stamp_out(name)
    lab(f"{name}_done")
    e("s_endpgm")
    return name, 256, 512, 163840, 256


def gen_gu3():
    name = "k_gu_kernel"
    header(name)
    R = 4; S = 8; WROW = 2752
    SLOT = 40960; WO = 16384
    RS = 208; XR = 200; CS = 224; ONES = 236; WA = 176; XAD = 24; XA = 28; SA = 30
    sX, sW, sO = 8, 12, 16
    s_wave, s_cg, s_rt, s_wm, s_wn, s_m0, s_k, s_t, s_t2 = 20, 21, 22, 23, 24, 25, 26, 27, 28
    s_mx, s_kx, s_wm0, s_wm1 = 44, 45, 46, 47
    e(f"s_cmp_ge_u32 s2, 256")
    e(f"s_cbranch_scc1 {name}_done")
    e(f"s_and_b32 s{s_rt}, s2, 3")
    e(f"s_lshl_b32 s{s_rt}, s{s_rt}, 2")
    e(f"s_bfe_u32 s{s_cg}, s2, 0x20003")
    e(f"s_add_u32 s{s_rt}, s{s_rt}, s{s_cg}")
    e(f"s_bfe_u32 s{s_cg}, s2, 0x10002")
    e(f"s_lshl_b32 s{s_cg}, s{s_cg}, 3")
    e(f"s_lshr_b32 s100, s2, 5")
    e(f"s_add_u32 s{s_cg}, s{s_cg}, s100")
    e(f"s_cmp_ge_u32 s{s_cg}, 15")
    e(f"s_cbranch_scc1 {name}_done")
    stamp(name)
    e("s_load_dwordx4 s[36:39], s[0:1], 32")
    e("s_load_dwordx2 s[40:41], s[0:1], 72")
    e("v_lshrrev_b32 v1, 6, v0")
    e("v_and_b32 v2, 63, v0")
    e("s_nop 0")
    e(f"v_readfirstlane_b32 s{s_wave}, v1")
    e(f"s_lshr_b32 s{s_wm}, s{s_wave}, 1")
    e(f"s_and_b32 s{s_wn}, s{s_wave}, 1")
    e(f"s_and_b32 s{s_wm0}, s{s_wm}, 1")
    e(f"s_lshr_b32 s{s_wm1}, s{s_wave}, 2")
    e("s_waitcnt lgkmcnt(0)")
    srd(sX, 40, 2048 * 1024, WS_H)
    e(f"s_cmp_eq_u32 s{s_wm1}, 0")
    e("s_cselect_b32 s42, s36, s38")
    e("s_cselect_b32 s43, s37, s39")
    srd(sW, 42, 512 * 2752)
    srd(sO, 40, 2048 * 2752, WS_HM)
    seq = []
    for i in range(2):
        e(f"s_lshl_b32 s{s_t}, s{s_wave}, 7")
        e(f"v_add_u32 v12, s{s_t}, v2")
        if i: e("v_add_u32 v12, 64, v12")
        e("v_lshrrev_b32 v13, 3, v12")
        e("v_and_b32 v14, 7, v12")
        e("v_bfe_u32 v15, v12, 4, 3")
        e("v_xor_b32 v14, v14, v15")
        e("v_lshlrev_b32 v13, 10, v13")
        e(f"v_lshl_add_u32 v{XA+i}, v14, 4, v13")
    e(f"s_lshl_b32 s{s_kx}, s{s_rt}, 17")
    e(f"s_lshl_b32 s{s_mx}, s{s_wave}, 11")
    e(f"s_and_b32 s{s_t2}, s{s_wave}, 3")
    e(f"s_mul_i32 s{s_t2}, s{s_t2}, 192")
    for i in range(3):
        e(f"v_add_u32 v11, s{s_t2}, v2")
        if i: e(f"v_add_u32 v11, {i*64}, v11")
        e("v_mul_u32_u24 v12, 2731, v11")
        e("v_lshrrev_b32 v12, 16, v12")
        e("v_mul_u32_u24 v13, 24, v12")
        e("v_sub_u32 v13, v11, v13")
        e("v_bfe_u32 v14, v12, 1, 1")
        e("v_bfe_u32 v15, v12, 3, 1")
        e("v_lshl_or_b32 v14, v15, 1, v14")
        e("v_lshlrev_b32 v14, 1, v14")
        e("v_xor_b32 v13, v13, v14")
        e("v_cmp_lt_u32 vcc, 11, v13")
        e("v_add_u32 v14, 32, v12")
        e("v_cndmask_b32 v12, v12, v14, vcc")
        e("v_subrev_u32 v14, 12, v13")
        e("v_cndmask_b32 v13, v13, v14, vcc")
        e(f"s_mov_b32 s{s_t}, {WROW}")
        e(f"v_mul_lo_u32 v12, v12, s{s_t}")
        e(f"v_lshl_add_u32 v{8+i}, v13, 4, v12")
    e(f"s_mul_i32 s{s_k}, s{s_cg}, 192")
    e(f"s_mul_i32 s{s_m0}, s{s_wave}, 3072")
    e(f"s_add_u32 s{s_m0}, s{s_m0}, {WO}")
    def dma(st):
        slot = st % R
        for i in range(2):
            e(f"s_add_u32 m0, s{s_mx}, {slot*SLOT + i*1024}")
            e("s_nop 0")
            e(f"buffer_load_dwordx4 v{XA+i}, {sr(sX,4)}, s{s_kx} offen lds")
        e(f"s_add_u32 s{s_kx}, s{s_kx}, 128")
        for i in range(3):
            e(f"s_add_u32 m0, s{s_m0}, {slot*SLOT + i*1024}")
            e("s_nop 0")
            e(f"buffer_load_dwordx4 v{8+i}, {sr(sW,4)}, s{s_k} offen lds")
        e(f"s_add_u32 s{s_k}, s{s_k}, {64*WROW}")
        seq.extend([st] * 5)
    PD = int(os.environ.get("PD3", "3")); PD0 = int(os.environ.get("PD30", "2"))
    for st in range(PD0): dma(st)
    issued = PD0
    e("v_lshrrev_b32 v4, 2, v2")
    e("v_and_b32 v5, 3, v2")
    e(f"s_lshl_b32 s{s_t}, s{s_wave}, 4")
    e(f"v_add_u32 v6, s{s_t}, v4")
    e(f"v_lshlrev_b32 v{SA}, 7, v6")
    e(f"v_lshl_add_u32 v{SA}, v5, 4, v{SA}")
    e(f"v_add_u32 v{SA+1}, {2*SLOT}, v{SA}")
    e(f"v_lshlrev_b32 v{RS+3}, 3, v6")
    e(f"s_mul_i32 s{s_t}, s{s_wave}, 3072")
    e(f"v_lshlrev_b32 v7, 4, v2")
    e(f"v_add_u32 v7, 2048, v7")
    e(f"v_add_u32 v{RS+4}, s{s_t}, v7")
    for q, xo in enumerate((2, 4, 6)):
        e(f"s_xor_b32 s{s_t}, s{s_wave}, {xo}")
        e(f"s_mul_i32 s{s_t}, s{s_t}, 3072")
        e(f"v_add_u32 v{RS+10+q}, s{s_t}, v7")
    e("v_and_b32 v4, 15, v2")
    e("v_lshrrev_b32 v5, 4, v2")
    e(f"s_lshl_b32 s{s_t}, s{s_wm}, 8")
    e(f"v_lshl_add_u32 v{RS+5}, v4, 3, s{s_t}")
    e(f"s_lshl_b32 s{s_t}, s{s_wm}, 12")
    e("v_lshlrev_b32 v6, 7, v4")
    e(f"v_add_u32 v6, s{s_t}, v6")
    e("v_bfe_u32 v7, v4, 1, 3")
    for kk in range(2):
        e(f"s_xor_b32 s{s_t}, s{s_wm0}, {kk}")
        e(f"s_lshl_b32 s{s_t}, s{s_t}, 2")
        e(f"v_add_u32 v12, s{s_t}, v5")
        e("v_xor_b32 v12, v12, v7")
        e(f"v_lshl_add_u32 v{XAD+kk}, v12, 4, v6")
        e(f"v_add_u32 v{XAD+2+kk}, {2*SLOT}, v{XAD+kk}")
    e("v_lshrrev_b32 v11, 2, v4")
    e("v_and_b32 v12, 3, v4")
    e("v_lshl_add_u32 v13, v5, 3, v11")
    e("v_mul_u32_u24 v13, 384, v13")
    e("v_lshl_add_u32 v13, v12, 3, v13")
    e("v_lshrrev_b32 v14, 1, v11")
    e("v_and_b32 v15, 1, v5")
    e("v_lshl_or_b32 v14, v15, 1, v14")
    def wreg(hi, kk, b, j): return WA + hi*12 + kk*6 + b*3 + j
    for kk in range(2):
        for j in range(3):
            e(f"s_xor_b32 s{s_t}, s{s_wm0}, {kk}")
            e(f"s_mul_i32 s{s_t}, s{s_t}, 6")
            e(f"s_mul_i32 s{s_t2}, s{s_wn}, 3")
            e(f"s_add_u32 s{s_t}, s{s_t}, s{s_t2}")
            e(f"s_add_u32 s{s_t}, s{s_t}, {j}")
            e(f"v_xor_b32 v15, s{s_t}, v14")
            e(f"v_lshl_add_u32 v15, v15, 5, v13")
            for b in range(2):
                e(f"s_xor_b32 s{s_t}, s{s_wm1}, {b}")
                e(f"s_mul_i32 s{s_t}, s{s_t}, 12288")
                e(f"v_add_u32 v{wreg(0,kk,b,j)}, s{s_t}, v15")
                e(f"v_add_u32 v{wreg(1,kk,b,j)}, {2*SLOT}, v{wreg(0,kk,b,j)}")
    ACC = 128
    for i in range(48): e(f"v_mov_b32 v{ACC+i}, 0")
    for i in range(12): e(f"v_mov_b32 v{CS+i}, 0")
    for i in range(4): e(f"v_mov_b32 v{ONES+i}, 0x3f803f80"); e(f"v_mov_b32 v{RS+6+i}, 0")
    e(f"s_mov_b32 s31, 0x3f803f80")
    stamp(name)
    FS = [32, 80]
    def reads(st, kk):
        base = FS[kk]; slot = st % R
        hi = slot >> 1; so = (slot & 1) * SLOT
        for mt in range(2):
            e(f"ds_read_b128 {vr(base+mt*4,4)}, v{XAD+2*hi+kk} offset:{so+mt*2048}")
        for b in range(2):
            for j in range(3):
                for t2 in range(2):
                    e(f"ds_read_b64_tr_b16 {vr(base+16+(b*3+j)*4+t2*2,2)}, v{wreg(hi,kk,b,j)} offset:{so+WO+t2*1536}")
    def stat_reads(st):
        slot = st % R
        for i in range(2):
            e(f"ds_read_b128 {vr(XR+4*i,4)}, v{SA+(slot>>1)} offset:{(slot&1)*SLOT+i*64}")
    def stat_dots():
        for i in range(0, 8, 2):
            e(f"v_dot2_f32_bf16 v{RS+6}, v{XR+i}, s31, v{RS+6}")
            e(f"v_dot2_f32_bf16 v{RS+7}, v{XR+i+1}, s31, v{RS+7}")
            e(f"v_dot2_f32_bf16 v{RS+8}, v{XR+i}, v{XR+i}, v{RS+8}")
            e(f"v_dot2_f32_bf16 v{RS+9}, v{XR+i+1}, v{XR+i+1}, v{RS+9}")
    def mfmas(kk):
        base = FS[kk]
        for b in range(2):
            for j in range(3):
                for mt in range(2):
                    a = ACC + ((b*2+mt)*3+j)*4
                    e(f"v_mfma_f32_16x16x32_bf16 {vr(a,4)}, {vr(base+16+(b*3+j)*4,4)}, {vr(base+mt*4,4)}, {vr(a,4)}")
                if b == 0 and kk == 0:
                    e(f"v_mfma_f32_16x16x32_bf16 {vr(CS+4*j,4)}, {vr(base+16+j*4,4)}, {vr(ONES,4)}, {vr(CS+4*j,4)}")
    for st in range(S):
        last = max(i for i, t in enumerate(seq) if t == st)
        e(f"s_waitcnt vmcnt({len(seq)-1-last}) lgkmcnt(0)")
        e("s_barrier")
        if st in (0, 1, 2, 4, 6): stamp(name)
        B = chunks_of(capture(reads, st, 0)) + chunks_of(capture(stat_reads, st))
        while issued < S and issued <= st + PD:
            B += chunks_of(capture(dma, issued)); issued += 1
        if st >= 1: interleave(capture(mfmas, 1), B)
        else:
            for ch in B: L.extend(ch)
        e("s_waitcnt lgkmcnt(0)")
        B = chunks_of(capture(reads, st, 1)) + chunks_of(capture(stat_dots))
        interleave(capture(mfmas, 0), B)
    e("s_waitcnt lgkmcnt(0)")
    mfmas(1)
    e(f"v_add_f32 v{RS+6}, v{RS+6}, v{RS+7}")
    e(f"v_add_f32 v{RS+8}, v{RS+8}, v{RS+9}")
    for ctl in ("quad_perm:[1,0,3,2]", "quad_perm:[2,3,0,1]"):
        e(f"s_nop 1")
        e(f"v_add_f32_dpp v{RS+6}, v{RS+6}, v{RS+6} {ctl} row_mask:0xf bank_mask:0xf")
        e(f"v_add_f32_dpp v{RS+8}, v{RS+8}, v{RS+8} {ctl} row_mask:0xf bank_mask:0xf")
    e(f"v_mul_f32 v{RS+6}, 0x3b000000, v{RS+6}")
    e(f"v_mul_f32 v{RS+8}, 0x3b000000, v{RS+8}")
    e(f"v_fma_f32 v{RS+8}, -v{RS+6}, v{RS+6}, v{RS+8}")
    e(f"v_max_f32 v{RS+8}, 0, v{RS+8}")
    e(f"v_add_f32 v{RS+8}, 0x3727c5ac, v{RS+8}")
    e(f"v_rsq_f32 v{RS}, v{RS+8}")
    e(f"s_nop 0")
    e(f"v_mul_f32 v{RS+1}, v{RS+6}, v{RS}")
    e(f"v_sub_f32 v{RS+1}, 0, v{RS+1}")
    e("s_barrier")
    stamp(name)
    e("s_nop 7")
    e(f"ds_write_b64 v{RS+3}, v[{RS}:{RS+1}]")
    for j in range(3):
        e(f"ds_write_b128 v{RS+4}, {vr(CS+4*j,4)} offset:{j*1024}")
    e("s_waitcnt lgkmcnt(0)")
    e("s_barrier")
    e(f"ds_read_b64 v[32:33], v{RS+5}")
    e(f"ds_read_b64 v[34:35], v{RS+5} offset:128")
    for q in range(3):
        for j in range(3):
            e(f"ds_read_b128 {vr(36+12*q+4*j,4)}, v{RS+10+q} offset:{j*1024}")
    e("s_waitcnt lgkmcnt(0)")
    for p in range(6):
        e(f"v_pk_add_f32 {vr(CS+2*p,2)}, {vr(CS+2*p,2)}, {vr(36+2*p,2)}")
        e(f"v_pk_add_f32 {vr(48+2*p,2)}, {vr(48+2*p,2)}, {vr(60+2*p,2)}")
    tn = 0
    for b in range(2):
        for mt in range(2):
            for j in range(3):
                a = ACC + ((b*2+mt)*3+j)*4
                cc = (CS if b == 0 else 48) + 4*j
                for p in range(2):
                    t = 72 + 2*(tn % 4); tn += 1
                    e(f"v_pk_mul_f32 {vr(t,2)}, {vr(cc+2*p,2)}, {vr(32+2*mt,2)} op_sel:[0,1] op_sel_hi:[1,1]")
                    e(f"v_pk_fma_f32 {vr(a+2*p,2)}, {vr(a+2*p,2)}, {vr(32+2*mt,2)}, {vr(t,2)} op_sel_hi:[1,0,1]")
    e(f"s_cmp_eq_u32 s{s_wm1}, 0")
    e(f"s_cbranch_scc1 {name}_nosw")
    for i in range(24):
        e(f"v_swap_b32 v{ACC+i}, v{ACC+24+i}")
    lab(f"{name}_nosw")
    e(f"s_lshl_b32 s{s_t}, s{s_rt}, 7")
    e(f"s_lshl_b32 s{s_t2}, s{s_wm}, 5")
    e(f"s_add_u32 s{s_t}, s{s_t}, s{s_t2}")
    e(f"v_add_u32 v7, s{s_t}, v4")
    e(f"s_mov_b32 s{s_t}, 2752")
    e(f"v_mul_lo_u32 v7, v7, s{s_t}")
    e("v_lshl_add_u32 v7, v5, 3, v7")
    e(f"v_add_u32 v81, {16*2752}, v7")
    e(f"s_mul_i32 s29, s{s_cg}, 6")
    e(f"s_mul_i32 s{s_t}, s{s_wn}, 3")
    e(f"s_add_u32 s29, s29, s{s_t}")
    e("s_mov_b32 s30, 0xbfb8aa3b")
    for j in range(3):
        e(f"s_add_u32 s{s_t}, s29, {j}")
        e(f"s_cmp_ge_u32 s{s_t}, 86")
        e(f"s_cbranch_scc1 {name}_skip{j}")
        e(f"s_lshl_b32 s{s_t}, s{s_t}, 5")
        for mt in range(2):
            g = ACC + (mt*3+j)*4; u = ACC + ((2+mt)*3+j)*4
            for r in range(4): e(f"v_mul_f32 v{32+r}, s30, v{g+r}")
            for r in range(4): e(f"v_exp_f32 v{32+r}, v{32+r}")
            e("s_nop 0")
            for r in range(4): e(f"v_add_f32 v{32+r}, 1.0, v{32+r}")
            for r in range(4): e(f"v_rcp_f32 v{32+r}, v{32+r}")
            e("s_nop 0")
            for r in range(4): e(f"v_mul_f32 v{32+r}, v{32+r}, v{u+r}")
            e(f"v_cvt_pk_bf16_f32 v{36+2*mt}, v32, v33")
            e(f"v_cvt_pk_bf16_f32 v{37+2*mt}, v34, v35")
            e(f"buffer_store_dwordx2 {vr(36+2*mt,2)}, v{7 if mt == 0 else 81}, {sr(sO,4)}, s{s_t} offen")
        e("s_nop 1")
        lab(f"{name}_skip{j}")
    stamp(name)
    stamp_out(name)
    lab(f"{name}_done")
    e("s_endpgm")
    return name, 256, 512, 163840, 240

def gen_plain(mode):
    wo = mode == "wo"
    name = "k_wo_kernel" if wo else "k_down_kernel"
    MAPMODE = MAPS[mode]
    header(name)
    R = 4
    K = 512 if wo else 1376
    AS = 1024 if wo else 2752
    stages = [(k0, min(128, K - k0)) for k0 in range(0, K, 128)]
    S = len(stages)
    SLOT = 32768
    sA, sW, sR, sO = 8, 12, 16, 44
    s_wave, s_cg, s_rt, s_wm, s_wn, s_m0, s_ka, s_kw, s_t, s_t2 = 20, 21, 22, 23, 24, 25, 26, 27, 28, 29
    e(f"s_cmp_ge_u32 s2, 256")
    e(f"s_cbranch_scc1 {name}_done")
    stamp(name)
    e("s_load_dwordx2 s[32:33], s[0:1], 0")
    e("s_load_dwordx2 s[34:35], s[0:1], %d" % (16 if wo else 48))
    e("s_load_dwordx2 s[36:37], s[0:1], 56")
    e("s_load_dwordx2 s[40:41], s[0:1], 72")
    e("v_lshrrev_b32 v1, 6, v0")
    e("v_and_b32 v2, 63, v0")
    e("s_nop 0")
    e(f"v_readfirstlane_b32 s{s_wave}, v1")
    wgmap(s_cg, s_rt, MAPMODE)
    e(f"s_lshr_b32 s{s_wm}, s{s_wave}, 2")
    e(f"s_and_b32 s{s_wn}, s{s_wave}, 3")
    e("s_waitcnt lgkmcnt(0)")
    if wo:
        srd(sA, 40, 2048 * 1024, WS_O); srd(sW, 34, 512 * 1024)
        srd(sR, 32, 2048 * 1024); srd(sO, 40, 2048 * 1024, WS_H)
    else:
        srd(sA, 40, 2048 * 2752, WS_HM); srd(sW, 34, 1376 * 1024)
        srd(sR, 40, 2048 * 1024, WS_H); srd(sO, 36, 2048 * 1024)
    for i in range(2):
        e(f"s_lshl_b32 s{s_t}, s{s_wave}, 7")
        e(f"v_add_u32 v12, s{s_t}, v2")
        if i: e("v_add_u32 v12, 64, v12")
        e("v_lshrrev_b32 v13, 4, v12")
        e("v_and_b32 v14, 15, v12")
        e("v_and_b32 v15, 15, v13")
        e("v_xor_b32 v14, v14, v15")
        e(f"s_mov_b32 s{s_t}, {AS}")
        e(f"v_mul_lo_u32 v13, v13, s{s_t}")
        e(f"v_lshl_add_u32 v{8+i}, v14, 4, v13")
        e("v_lshrrev_b32 v13, 3, v12")
        e("v_and_b32 v14, 7, v12")
        e("v_bfe_u32 v15, v13, 1, 1")
        e("v_bfe_u32 v16, v13, 3, 1")
        e("v_lshl_or_b32 v15, v16, 1, v15")
        e("v_lshlrev_b32 v15, 1, v15")
        e("v_xor_b32 v14, v14, v15")
        e("v_lshlrev_b32 v13, 10, v13")
        e(f"v_lshl_add_u32 v{10+i}, v14, 4, v13")
    e(f"s_mul_i32 s{s_ka}, s{s_rt}, {64*AS}")
    e(f"s_lshl_b32 s{s_kw}, s{s_cg}, 7")
    e(f"s_lshl_b32 s{s_m0}, s{s_wave}, 11")
    VG = os.environ.get("VG", "") == "1" and wo
    def dma(st):
        slot = st % R
        if VG:
            for i in range(2):
                e(f"buffer_load_dwordx4 {vr(160+st*16+i*8,4)}, v{8+i}, {sr(sA,4)}, s{s_ka} offen")
                e(f"buffer_load_dwordx4 {vr(164+st*16+i*8,4)}, v{10+i}, {sr(sW,4)}, s{s_kw} offen")
            e(f"s_add_u32 s{s_ka}, s{s_ka}, 256")
            e(f"s_add_u32 s{s_kw}, s{s_kw}, {128*1024}")
            return
        for i in range(2):
            e(f"s_add_u32 m0, s{s_m0}, {slot*SLOT + i*1024}")
            e("s_nop 0")
            e(f"buffer_load_dwordx4 v{8+i}, {sr(sA,4)}, s{s_ka} offen {DFL} lds")
            e(f"s_add_u32 m0, s{s_m0}, {slot*SLOT + 16384 + i*1024}")
            e("s_nop 0")
            e(f"buffer_load_dwordx4 v{10+i}, {sr(sW,4)}, s{s_kw} offen {DFL} lds")
        e(f"s_add_u32 s{s_ka}, s{s_ka}, 256")
        e(f"s_add_u32 s{s_kw}, s{s_kw}, {128*1024}")
    D = int(os.environ.get("PD", "2"))
    D0 = int(os.environ.get("PD0", "2"))
    issued = min(D0, S)
    for st in range(issued): dma(st)
    e("v_and_b32 v4, 15, v2")
    e("v_lshrrev_b32 v5, 4, v2")
    e(f"v_lshl_add_u32 v140, v2, 4, s{s_m0}")
    e(f"v_add_u32 v141, {2*SLOT}, v140")
    e(f"s_lshl_b32 s{s_t}, s{s_rt}, 6")
    e(f"s_lshl_b32 s{s_t2}, s{s_wm}, 5")
    e(f"s_add_u32 s{s_t}, s{s_t}, s{s_t2}")
    e(f"v_add_u32 v6, s{s_t}, v4")
    e("v_lshlrev_b32 v6, 10, v6")
    e("v_lshl_add_u32 v6, v5, 3, v6")
    e(f"s_lshl_b32 s{s_t}, s{s_cg}, 7")
    e(f"s_lshl_b32 s{s_t2}, s{s_wn}, 5")
    e(f"s_add_u32 s30, s{s_t}, s{s_t2}")
    e("v_add_u32 v7, 16384, v6")
    e(f"buffer_load_dwordx2 v[136:137], v6, {sr(sR,4)}, s30 offen")
    e(f"buffer_load_dwordx2 v[138:139], v7, {sr(sR,4)}, s30 offen")
    e(f"s_lshl_b32 s{s_t}, s{s_wm}, 13")
    e("v_lshlrev_b32 v12, 8, v4")
    e(f"v_add_u32 v12, s{s_t}, v12")
    e("v_and_b32 v13, 3, v4")
    e("v_xor_b32 v13, v13, v5")
    e("v_lshrrev_b32 v14, 2, v4")
    for k in range(4):
        e(f"v_xor_b32 v15, {k}, v14")
        e("v_lshl_or_b32 v15, v15, 2, v13")
        e(f"v_lshl_add_u32 v{16+k}, v15, 4, v12")
        e(f"v_add_u32 v{20+k}, {2*SLOT}, v{16+k}")
    e("v_lshrrev_b32 v12, 2, v4")
    e("v_and_b32 v13, 3, v4")
    e("v_lshl_add_u32 v14, v5, 3, v12")
    e("v_lshlrev_b32 v14, 7, v14")
    e("v_lshl_add_u32 v14, v13, 3, v14")
    e("v_lshrrev_b32 v15, 1, v12")
    e("v_and_b32 v13, 1, v5")
    e("v_lshl_or_b32 v15, v13, 1, v15")
    e(f"v_xor_b32 v15, s{s_wn}, v15")
    e("v_lshl_add_u32 v24, v15, 5, v14")
    e("v_add_u32 v24, 16384, v24")
    e(f"v_add_u32 v25, {2*SLOT}, v24")
    ACC = 128
    for i in range(8): e(f"v_mov_b32 v{ACC+i}, 0")
    FS = [28, 76]
    def reads(st):
        base = FS[st & 1]; slot = st % R; hi = slot >= 2; so = (slot & 1) * SLOT
        for ks in range(stages[st][1] // 32):
            for mt in range(2):
                e(f"ds_read_b128 {vr(base+(ks*2+mt)*4,4)}, v{(20 if hi else 16)+ks} offset:{so+mt*4096}")
            for t2 in range(2):
                e(f"ds_read_b64_tr_b16 {vr(base+32+ks*4+t2*2,2)}, v{25 if hi else 24} offset:{so+ks*4096+t2*512}")
    def mfmas(st):
        base = FS[st & 1]
        for ks in range(stages[st][1] // 32):
            for mt in range(2):
                a = ACC + mt * 4
                e(f"v_mfma_f32_16x16x32_bf16 {vr(a,4)}, {vr(base+32+ks*4,4)}, {vr(base+(ks*2+mt)*4,4)}, {vr(a,4)}")
    for st in range(S):
        after = (issued - 1 - st) * 4 + (2 if st < min(D0, S) else 0)
        if VG:
            e(f"s_waitcnt vmcnt({after})")
            for i in range(2):
                e(f"ds_write_b128 v{140+(st>>1)}, {vr(160+st*16+i*8,4)} offset:{(st&1)*SLOT+i*1024}")
                e(f"ds_write_b128 v{140+(st>>1)}, {vr(164+st*16+i*8,4)} offset:{(st&1)*SLOT+16384+i*1024}")
        e(f"s_waitcnt vmcnt({after}) lgkmcnt(0)")
        e("s_barrier")
        if st in (0,1,2,3,5,8): stamp(name)
        B = chunks_of(capture(reads, st))
        while issued < S and issued <= st + D:
            B += chunks_of(capture(dma, issued)); issued += 1
        if st >= 1: interleave(capture(mfmas, st - 1), B)
        else:
            for c in B: L.extend(c)
    e("s_waitcnt vmcnt(0) lgkmcnt(0)")
    mfmas(S - 1)
    e("s_nop 7"); e("s_nop 1")
    for mt in range(2):
        a = ACC + mt*4; r = 136 + 2*mt
        e(f"v_lshlrev_b32 v12, 16, v{r}")
        e(f"v_and_b32 v13, 0xffff0000, v{r}")
        e(f"v_lshlrev_b32 v14, 16, v{r+1}")
        e(f"v_and_b32 v15, 0xffff0000, v{r+1}")
        for i in range(4): e(f"v_add_f32 v{12+i}, v{12+i}, v{a+i}")
        e(f"v_cvt_pk_bf16_f32 v{r}, v12, v13")
        e(f"v_cvt_pk_bf16_f32 v{r+1}, v14, v15")
        e(f"buffer_store_dwordx2 {vr(r,2)}, v{6+mt}, {sr(sO,4)}, s30 offen")
    stamp(name)
    stamp_out(name)
    lab(f"{name}_done")
    e("s_endpgm")
    return name, 256, 512, 131072, 224

def gen_attn():
    name = "k_attn_kernel"
    header(name)
    sWS, sO = 8, 12
    s_wave, s_head, s_qt, s_t, s_t2, s_kb, s_vb = 20, 21, 22, 23, 24, 25, 26
    e("s_cmp_ge_u32 s2, 512")
    e(f"s_cbranch_scc1 {name}_done")
    stamp(name)
    e("s_load_dwordx2 s[40:41], s[0:1], 72")
    PF = os.environ.get("PF", "1") == "1"
    if PF:
        e("s_load_dwordx2 s[42:43], s[0:1], 16")
        e("s_load_dwordx4 s[44:47], s[0:1], 32")
        e("s_load_dwordx2 s[48:49], s[0:1], 48")
    e("v_lshrrev_b32 v1, 6, v0")
    e("v_and_b32 v2, 63, v0")
    e("s_nop 0")
    e(f"v_readfirstlane_b32 s{s_wave}, v1")
    e(f"s_lshr_b32 s{s_head}, s2, 4")
    e(f"s_and_b32 s{s_qt}, s2, 15")
    e(f"s_lshl_b32 s{s_qt}, s{s_qt}, 3")
    e("v_and_b32 v4, 15, v2")
    e("v_lshrrev_b32 v5, 4, v2")
    e("v_lshlrev_b32 v6, 5, v4")
    e("v_lshl_add_u32 v6, v5, 3, v6")
    e("v_lshlrev_b32 v7, 4, v2")
    e("s_waitcnt lgkmcnt(0)")
    srd(sWS, 40, 6 << 20)
    srd(sO, 40, 2048 * 1024, WS_O)
    e(f"s_lshl_b32 s{s_t}, s{s_head}, 16")
    e(f"s_lshl_b32 s{s_t2}, s{s_qt}, 9")
    e(f"s_add_u32 s{s_t2}, s{s_t2}, s{s_t}")
    QF, KF, SS = 8, 12, 48
    VF = KF
    T = 116
    e(f"s_lshl_b32 s{s_t}, s{s_wave}, 9")
    e(f"s_add_u32 s{s_t}, s{s_t2}, s{s_t}")
    e(f"buffer_load_dwordx2 {vr(QF,2)}, v6, {sr(sWS,4)}, s{s_t} offen")
    e(f"s_cmp_lt_u32 s{s_wave}, 4")
    e(f"s_mov_b32 s{s_vb}, {WS_VT-8192-12288}")
    e(f"s_cselect_b32 s{s_kb}, {32*65536-8192}, s{s_vb}")
    e(f"s_add_u32 s{s_kb}, s{s_kb}, s{s_t2}")
    e(f"s_mul_i32 s{s_vb}, s{s_wave}, 3072")
    e(f"s_add_u32 s{s_kb}, s{s_kb}, s{s_vb}")
    for i in range(3):
        e(f"s_add_u32 m0, s{s_vb}, {i*1024}")
        e("s_nop 0")
        e(f"buffer_load_dwordx4 v7, {sr(sWS,4)}, s{s_kb} offen lds")
        if i < 2: e(f"s_add_u32 s{s_kb}, s{s_kb}, 1024")
    e(f"s_add_u32 s{s_qt}, s{s_qt}, s{s_wave}")
    e(f"s_lshl_b32 s{s_t}, s{s_wave}, 9")
    e(f"v_add_u32 v10, s{s_t}, v6")
    e("v_lshlrev_b32 v7, 2, v5")
    e("v_sub_u32 v7, v7, v4")
    e("v_mov_b32 v3, 0xf149f2ca")
    e(f"s_cmp_lt_u32 s{s_wave}, 4")
    e(f"s_cbranch_scc1 {name}_w0")
    e("s_waitcnt vmcnt(3)")
    e(f"s_branch {name}_w1")
    lab(f"{name}_w0")
    e("s_waitcnt vmcnt(0)")
    lab(f"{name}_w1")
    e("s_barrier")
    stamp(name)
    for t in range(17):
        e(f"ds_read_b64 {vr(KF+2*t,2)}, v10 offset:{t*512}")
    for t in range(17):
        e(f"s_waitcnt lgkmcnt({min(15,16-t)})")
        e(f"v_mfma_f32_16x16x16_bf16 {vr(SS+4*t,4)}, {vr(KF+2*t,2)}, {vr(QF,2)}, 0")
    e("s_waitcnt vmcnt(0)")
    e("s_barrier")
    e("s_nop 4")
    for t in range(17):
        e(f"ds_read_b64 {vr(VF+2*t,2)}, v10 offset:{12288+t*512}")
    if PF:
        PFM = os.environ.get("PFM", "1")
        if PFM == "0":
            srd(52, 42, 512 * 1024); srd(56, 44, 512 * 2752); srd(60, 46, 512 * 2752); srd(64, 48, 1376 * 1024)
            e("s_lshr_b32 s50, s2, 3")
            e("s_lshl_b32 s50, s50, 3")
            e(f"s_add_u32 s50, s50, s{s_wave}")
            e("s_bfe_u32 s51, s2, 0x10002")
            e(f"s_lshl_b32 m0, s{s_wave}, 10")
            e("v_lshrrev_b32 v1, 5, v2")
            e("v_lshlrev_b32 v1, 10, v1")
            e("v_and_b32 v3, 31, v2")
            e("v_lshl_add_u32 v1, v3, 4, v1")
            e("v_mov_b32 v3, 0xf149f2ca")
            e("s_lshl_b32 s68, s50, 11")
            e("s_lshl_b32 s69, s51, 9")
            e("s_add_u32 s68, s68, s69")
            e("buffer_load_dwordx4 v1, s[52:55], s68 offen lds")
            e("s_mul_i32 s69, s50, 2752")
            e("s_mul_i32 s51, s51, 1536")
            e("s_add_u32 s69, s69, s51")
            e("v_lshlrev_b32 v1, 4, v2")
            e("buffer_load_dwordx4 v1, s[56:59], s69 offen lds")
            e("buffer_load_dwordx4 v1, s[60:63], s69 offen lds")
            e("s_add_u32 s69, s69, 1024")
            e("buffer_load_dwordx4 v1, s[56:59], s69 offen lds")
            e("buffer_load_dwordx4 v1, s[60:63], s69 offen lds")
            e("v_lshrrev_b32 v1, 5, v2")
            e("v_lshlrev_b32 v1, 10, v1")
            e("v_and_b32 v3, 31, v2")
            e("v_lshl_add_u32 v1, v3, 4, v1")
            e("v_mov_b32 v3, 0xf149f2ca")
            e("buffer_load_dwordx4 v1, s[64:67], s68 offen lds")
            e("s_add_u32 s68, s68, 0x100000")
            e("buffer_load_dwordx4 v1, s[64:67], s68 offen lds")
        elif PFM == "2":
            e("s_lshr_b32 s50, s2, 3")
            e("s_lshl_b32 s50, s50, 3")
            e(f"s_add_u32 s50, s50, s{s_wave}")
            e("s_bfe_u32 s51, s2, 0x10002")
            e(f"s_lshl_b32 m0, s{s_wave}, 10")
            e("s_cmp_ge_u32 s50, 256")
            e(f"s_cbranch_scc1 {name}_pf2")
            e("s_cmp_lt_u32 s50, 128")
            e("s_cselect_b32 s56, s44, s46")
            e("s_cselect_b32 s57, s45, s47")
            e(f"s_mov_b32 s58, {512*2752}")
            e("s_mov_b32 s59, 0x00020000")
            e("s_and_b32 s68, s50, 127")
            e("s_mul_i32 s68, s68, 11008")
            e("s_mul_i32 s69, s51, 1536")
            e("s_add_u32 s68, s68, s69")
            e("v_lshrrev_b32 v1, 4, v2")
            e("v_mul_u32_u24 v1, 2752, v1")
            e("v_and_b32 v3, 15, v2")
            e("v_mul_u32_u24 v3, 96, v3")
            e("v_add_u32 v1, v1, v3")
            e(f"s_branch {name}_pf3")
            lab(f"{name}_pf2")
            e("s_sub_u32 s50, s50, 256")
            e("s_cmp_lt_u32 s50, 86")
            e("s_cselect_b32 s56, s48, s42")
            e("s_cselect_b32 s57, s49, s43")
            e(f"s_mov_b32 s59, {512*1024}")
            e(f"s_cselect_b32 s58, {1376*1024}, s59")
            e("s_mov_b32 s59, 0x00020000")
            e("s_cselect_b32 s69, 0, 86")
            e("s_sub_u32 s68, s50, s69")
            e("s_lshl_b32 s68, s68, 14")
            e("s_lshl_b32 s69, s51, 9")
            e("s_add_u32 s68, s68, s69")
            e("v_lshrrev_b32 v1, 2, v2")
            e("v_lshlrev_b32 v1, 10, v1")
            e("v_and_b32 v3, 3, v2")
            e("v_lshl_add_u32 v1, v3, 7, v1")
            lab(f"{name}_pf3")
            e("v_mov_b32 v3, 0xf149f2ca")
            e("buffer_load_dword v1, s[56:59], s68 offen lds")
        else:
            e("s_lshr_b32 s50, s2, 3")
            e("s_lshl_b32 s50, s50, 3")
            e(f"s_add_u32 s50, s50, s{s_wave}")
            e("s_bfe_u32 s51, s2, 0x10002")
            e(f"s_lshl_b32 m0, s{s_wave}, 10")
            e("s_cmp_lt_u32 s50, 256")
            e("s_cselect_b32 s56, s44, s46")
            e("s_cselect_b32 s57, s45, s47")
            e(f"s_mov_b32 s58, {512*2752}")
            e("s_mov_b32 s59, 0x00020000")
            e("s_and_b32 s68, s50, 255")
            e("s_mul_i32 s68, s68, 5504")
            e("s_mul_i32 s69, s51, 1536")
            e("s_add_u32 s68, s68, s69")
            e("v_lshrrev_b32 v1, 5, v2")
            e("v_mul_u32_u24 v1, 2752, v1")
            e("v_and_b32 v3, 31, v2")
            e("v_mul_u32_u24 v3, 48, v3")
            e("v_add_u32 v1, v1, v3")
            e("buffer_load_dword v1, s[56:59], s68 offen lds")
            e("s_cmp_lt_u32 s50, 172")
            e("s_cselect_b32 s60, s48, s42")
            e("s_cselect_b32 s61, s49, s43")
            e(f"s_mov_b32 s63, {512*1024}")
            e(f"s_cselect_b32 s62, {1376*1024}, s63")
            e("s_mov_b32 s63, 0x00020000")
            e("s_cselect_b32 s69, 0, 172")
            e("s_sub_u32 s68, s50, s69")
            e("s_lshl_b32 s68, s68, 13")
            e("s_lshl_b32 s69, s51, 9")
            e("s_add_u32 s68, s68, s69")
            e("v_lshrrev_b32 v1, 3, v2")
            e("v_lshlrev_b32 v1, 10, v1")
            e("v_and_b32 v3, 7, v2")
            e("v_lshl_add_u32 v1, v3, 6, v1")
            e("v_mov_b32 v3, 0xf149f2ca")
            e("s_cmp_ge_u32 s50, 236")
            e(f"s_cbranch_scc1 {name}_nopf")
            e("buffer_load_dword v1, s[60:63], s68 offen lds")
            lab(f"{name}_nopf")
        if os.environ.get("CP", "0") == "1":
            e("s_cmp_ge_u32 s50, 15")
            e(f"s_cbranch_scc1 {name}_nocp")
            e("s_getpc_b64 s[68:69]")
            lab(f"{name}_pc")
            e(f"s_add_u32 s68, s68, k_wo_kernel-{name}_pc")
            e("s_addc_u32 s69, s69, 0")
            e("s_lshl_b32 s51, s50, 10")
            e("v_lshlrev_b32 v1, 4, v2")
            e("v_add_u32 v1, s51, v1")
            e("v_min_u32 v1, k_end_label-k_wo_kernel-16, v1")
            e("global_load_lds_dwordx4 v1, s[68:69]")
            lab(f"{name}_nocp")
    stamp(name)
    for r in range(4):
        e(f"v_add_u32 v1, {r}, v7")
        e("v_cmp_lt_i32 vcc, 0, v1")
        e("s_nop 1")
        e(f"v_cndmask_b32 v{SS+r}, v3, v{SS+r}, vcc")
        e(f"v_cndmask_b32 v{SS+64+r}, v{SS+64+r}, v3, vcc")
    for t in range(16):
        e(f"s_cmp_ge_u32 s{s_qt}, {16-t}")
        e(f"s_cbranch_scc1 {name}_m{t}")
        for r in range(4): e(f"v_mov_b32 v{SS+4*t+r}, v3")
        lab(f"{name}_m{t}")
    e(f"v_max3_f32 v{T}, v{SS}, v{SS+1}, v{SS+2}")
    e(f"v_max3_f32 v{T+1}, v{SS+3}, v{SS+4}, v{SS+5}")
    i = 6
    while i + 3 < 68:
        e(f"v_max3_f32 v{T}, v{T}, v{SS+i}, v{SS+i+1}")
        e(f"v_max3_f32 v{T+1}, v{T+1}, v{SS+i+2}, v{SS+i+3}")
        i += 4
    assert i == 66
    e(f"v_max3_f32 v{T}, v{T}, v{SS+66}, v{SS+67}")
    e(f"v_max_f32 v{T}, v{T}, v{T+1}")
    e(f"v_xor_b32 v{T+2}, 16, v2"); e(f"v_lshlrev_b32 v{T+2}, 2, v{T+2}")
    e(f"v_xor_b32 v{T+3}, 32, v2"); e(f"v_lshlrev_b32 v{T+3}, 2, v{T+3}")
    for a in (T+2, T+3):
        e(f"ds_bpermute_b32 v{T+1}, v{a}, v{T}")
        e("s_waitcnt lgkmcnt(0)")
        e(f"v_max_f32 v{T}, v{T}, v{T+1}")
    e("s_mov_b32 s30, 0x3eb8aa3b")
    e(f"v_mul_f32 v{T}, s30, v{T}")
    e(f"v_sub_f32 v{T}, 0, v{T}")
    e(f"v_mov_b32 v{T+4}, s30")
    for i in range(68):
        e(f"v_fma_f32 v{SS+i}, v{SS+i}, v{T+4}, v{T}")
    for i in range(68):
        e(f"v_exp_f32 v{SS+i}, v{SS+i}")
    e("s_nop 0")
    e(f"v_pk_add_f32 {vr(T+6,2)}, {vr(SS,2)}, {vr(SS+2,2)}")
    e(f"v_pk_add_f32 {vr(T+8,2)}, {vr(SS+4,2)}, {vr(SS+6,2)}")
    for i in range(8, 68, 4):
        e(f"v_pk_add_f32 {vr(T+6,2)}, {vr(T+6,2)}, {vr(SS+i,2)}")
        e(f"v_pk_add_f32 {vr(T+8,2)}, {vr(T+8,2)}, {vr(SS+i+2,2)}")
    e(f"v_pk_add_f32 {vr(T+6,2)}, {vr(T+6,2)}, {vr(T+8,2)}")
    e(f"v_add_f32 v{T+6}, v{T+6}, v{T+7}")
    for p in range(9):
        for h in range(4 if p < 8 else 2):
            e(f"v_cvt_pk_bf16_f32 v{SS+8*p+h}, v{SS+8*p+2*h}, v{SS+8*p+2*h+1}")
    for a in (T+2, T+3):
        e(f"ds_bpermute_b32 v{T+7}, v{a}, v{T+6}")
        e("s_waitcnt lgkmcnt(0)")
        e(f"v_add_f32 v{T+6}, v{T+6}, v{T+7}")
    e(f"v_rcp_f32 v{T}, v{T+6}")
    stamp(name)
    O1, O2 = 120, 124
    e(f"v_mfma_f32_16x16x16_bf16 {vr(O1,4)}, {vr(VF+32,2)}, {vr(SS+64,2)}, 0")
    e(f"v_mfma_f32_16x16x32_bf16 {vr(O2,4)}, {vr(VF,4)}, {vr(SS,4)}, 0")
    for p in range(1, 8):
        a = O1 if p & 1 else O2
        if p == 1:
            e("s_nop 7")
        e(f"v_mfma_f32_16x16x32_bf16 {vr(a,4)}, {vr(VF+4*p,4)}, {vr(SS+8*p,4)}, {vr(a,4)}")
    e("s_nop 7"); e("s_nop 1")
    for r in range(4):
        e(f"v_add_f32 v{O1+r}, v{O1+r}, v{O2+r}")
    for r in range(4):
        e(f"v_mul_f32 v{O1+r}, v{O1+r}, v{T}")
    e(f"v_cvt_pk_bf16_f32 v160, v{O1}, v{O1+1}".replace("v160", f"v{O1}"))
    e(f"v_cvt_pk_bf16_f32 v{O1+1}, v{O1+2}, v{O1+3}")
    e("v_lshlrev_b32 v7, 10, v4")
    e("v_lshl_add_u32 v7, v5, 3, v7")
    e(f"s_lshl_b32 s{s_t}, s{s_qt}, 14")
    e(f"s_lshl_b32 s{s_t2}, s{s_head}, 5")
    e(f"s_add_u32 s{s_t}, s{s_t}, s{s_t2}")
    e(f"buffer_store_dwordx2 v[120:121], v7, {sr(sO,4)}, s{s_t} offen")
    e("s_waitcnt vmcnt(0)")
    stamp(name)
    stamp_out(name)
    lab(f"{name}_done")
    e("s_endpgm")
    return name, 512, 512, 24576, 128

def main():
    kernels = []
    RAW = os.environ.get("RAW", "00")
    kernels.append((gen_ln_gemm2 if RAW[0] == "1" else gen_ln_gemm)("qkv"))
    kernels.append(gen_attn())
    kernels.append(gen_plain("wo"))
    if RAW[1] == "3": kernels.append(gen_gu3())
    else: kernels.append((gen_ln_gemm2 if RAW[1] == "1" else gen_ln_gemm)("gu"))
    kernels.append(gen_plain("down"))
    out = []
    src = open("cdna_kernels/%s.s.ref" % NAME).read().split("\n")
    for ln in src:
        if ln.startswith("; Override"): break
        out.append(ln)
    for (n, g, b, lds, vg) in kernels:
        out.append(f"; @launch kernel={n} grid=({g},1,1) block=({b},1,1) lds={lds}")
    out.append('.amdgcn_target "amdgcn-amd-amdhsa--gfx950"')
    out += L
    out.append("k_end_label:")
    out.append('.section .rodata,"a"')
    for (n, g, b, lds, vg) in kernels:
        out.append(".p2align 6")
        out.append(f".amdhsa_kernel {n}")
        out.append(f"  .amdhsa_next_free_vgpr {vg}")
        out.append("  .amdhsa_next_free_sgpr 102")
        out.append(f"  .amdhsa_accum_offset {vg}")
        out.append("  .amdhsa_group_segment_fixed_size 0")
        out.append("  .amdhsa_kernarg_size 80")
        out.append("  .amdhsa_user_sgpr_count 2")
        out.append("  .amdhsa_user_sgpr_kernarg_segment_ptr 1")
        out.append("  .amdhsa_system_sgpr_workgroup_id_x 1")
        out.append(".end_amdhsa_kernel")
    open("cdna_kernels/%s.s" % NAME, "w").write("\n".join(out) + "\n")

if __name__ == "__main__":
    main()
```

```python
import sys
NAME = "sequential_preLN__sliding_block__glu_gated_glu__prompt"
WS_QK, WS_VT, WS_O, WS_H, WS_HM = 0, 4 << 20, 6 << 20, 8 << 20, 10 << 20
WS_SIZE = 268435456
L = []
MAPS = dict(qkv="4x2", wo="4x2", gu="4x2", down="4x2")
import os
for _k in MAPS:
    if os.environ.get("MAP_"+_k): MAPS[_k] = os.environ["MAP_"+_k]
def e(s): L.append("    " + s)
def lab(s): L.append(s + ":")
def cmt(s): L.append("    ; " + s)
def vr(a, n=1): return f"v{a}" if n == 1 else f"v[{a}:{a+n-1}]"
def sr(a, n=1): return f"s{a}" if n == 1 else f"s[{a}:{a+n-1}]"

def srd(d, ptr, nbytes, add=0):
    if add:
        e(f"s_add_u32 s{d}, s{ptr}, {add}")
        e(f"s_addc_u32 s{d+1}, s{ptr+1}, 0")
    else:
        e(f"s_mov_b32 s{d}, s{ptr}")
        e(f"s_mov_b32 s{d+1}, s{ptr+1}")
    e(f"s_mov_b32 s{d+2}, {nbytes}")
    e(f"s_mov_b32 s{d+3}, 0x00020000")

def wgmap(s_cg, s_rt, m):
    if m == "cols":
        e(f"s_and_b32 s{s_cg}, s2, 7")
        e(f"s_lshr_b32 s{s_rt}, s2, 3")
    elif m == "rows":
        e(f"s_and_b32 s{s_rt}, s2, 7")
        e(f"s_lshl_b32 s{s_rt}, s{s_rt}, 2")
        e(f"s_bfe_u32 s{s_cg}, s2, 0x20003")
        e(f"s_add_u32 s{s_rt}, s{s_rt}, s{s_cg}")
        e(f"s_lshr_b32 s{s_cg}, s2, 5")
    elif m == "4x2":
        e(f"s_and_b32 s{s_rt}, s2, 3")
        e(f"s_lshl_b32 s{s_rt}, s{s_rt}, 3")
        e(f"s_bfe_u32 s{s_cg}, s2, 0x30003")
        e(f"s_add_u32 s{s_rt}, s{s_rt}, s{s_cg}")
        e(f"s_bfe_u32 s{s_cg}, s2, 0x10002")
        e(f"s_lshl_b32 s{s_cg}, s{s_cg}, 2")
        e(f"s_lshr_b32 s100, s2, 6")
        e(f"s_add_u32 s{s_cg}, s{s_cg}, s100")
    elif m == "2d":
        e(f"s_and_b32 s{s_rt}, s2, 1")
        e(f"s_lshl_b32 s{s_rt}, s{s_rt}, 4")
        e(f"s_bfe_u32 s{s_cg}, s2, 0x40003")
        e(f"s_add_u32 s{s_rt}, s{s_rt}, s{s_cg}")
        e(f"s_bfe_u32 s{s_cg}, s2, 0x20001")
        e(f"s_lshl_b32 s{s_cg}, s{s_cg}, 1")
        e(f"s_lshr_b32 s100, s2, 7")
        e(f"s_add_u32 s{s_cg}, s{s_cg}, s100")

import os
STAMP = os.environ.get("STAMP", "")
DFL = os.environ.get("DFL", "")
PDL = int(os.environ.get("PDL", "3"))
NST = [0]
def stamp(kn):
    if STAMP != kn: return
    i = NST[0]; NST[0] += 1
    e(f"s_memtime s[{70+2*i}:{71+2*i}]")
def stamp_out(kn, wg=37):
    if STAMP != kn: return
    e("s_waitcnt lgkmcnt(0) vmcnt(0)")
    e(f"s_cmp_lg_u32 s2, {wg}")
    e(f"s_cbranch_scc1 {kn}_nost")
    e("s_load_dwordx2 s[96:97], s[0:1], 64")
    e("v_lshrrev_b32 v1, 6, v0")
    e("v_lshlrev_b32 v1, 5, v1")
    e("s_waitcnt lgkmcnt(0)")
    for i in range(min(8, NST[0])):
        e(f"s_sub_u32 s98, s{70+2*i}, s70")
        e(f"v_mov_b32 v2, s98")
        e(f"global_store_dword v1, v2, s[96:97] offset:{4*i}")
    lab(f"{kn}_nost")

def capture(fn, *a):
    global L
    old = L; L = []
    fn(*a)
    r = L; L = old
    return r
def chunks_of(lines):
    out = []; i = 0
    while i < len(lines):
        if "m0" in lines[i]:
            out.append(lines[i:i+3]); i += 3
        else:
            out.append([lines[i]]); i += 1
    return out
def interleave(A, B):
    global L
    n = len(A); m = len(B); j = 0
    for i, a in enumerate(A):
        L.append(a)
        tgt = (i + 1) * m // n
        while j < tgt:
            L += B[j]; j += 1
    while j < m:
        L += B[j]; j += 1

def header(name):
    L.append(".text")
    L.append(f".globl {name}")
    L.append(".p2align 8")
    L.append(f".type {name},@function")
    lab(name)

for p in range(768):
    assert (p * 2731) >> 16 == p // 24

def gen_ln_gemm(mode):
    qkv = mode == "qkv"
    name = "k_qkv_kernel" if qkv else "k_gu_kernel"
    MAPMODE = MAPS[mode]
    header(name)
    R = 4; S = 8 if qkv else 16
    WROW = 3072 if qkv else 2752
    KADV = (64 if qkv else 32) * WROW
    XB = 0; WB = 65536; SLOT = 24576
    XR = 176; RS = 208
    sX, sW, sO = 8, 12, 16
    s_wave, s_cg, s_rt, s_wm, s_wn, s_m0, s_k, s_t, s_t2 = 20, 21, 22, 23, 24, 25, 26, 27, 28
    e(f"s_cmp_ge_u32 s2, 256")
    e(f"s_cbranch_scc1 {name}_done")
    stamp(name)
    e("s_load_dwordx4 s[32:35], s[0:1], 0")
    e("s_load_dwordx4 s[36:39], s[0:1], 32")
    e("s_load_dwordx2 s[40:41], s[0:1], 72")
    e("v_lshrrev_b32 v1, 6, v0")
    e("v_and_b32 v2, 63, v0")
    e("s_nop 0")
    e(f"v_readfirstlane_b32 s{s_wave}, v1")
    wgmap(s_cg, s_rt, MAPMODE)
    e(f"s_lshr_b32 s{s_wm}, s{s_wave}, 2")
    e(f"s_and_b32 s{s_wn}, s{s_wave}, 3")
    e("s_waitcnt lgkmcnt(0)")
    if qkv:
        srd(sX, 32, 2048 * 1024)
        srd(sW, 34, 512 * 3072)
        srd(sO, 40, 6 << 20)
    else:
        srd(sX, 40, 2048 * 1024, WS_H)
        e(f"s_cmp_eq_u32 s{s_wm}, 0")
        e("s_cselect_b32 s42, s36, s38")
        e("s_cselect_b32 s43, s37, s39")
        srd(sW, 42, 512 * 2752)
        srd(sO, 40, 2048 * 2752, WS_HM)
    TP = os.environ.get("TP", "0") == "1" and qkv
    if TP:
        e("s_lshr_b32 s44, s2, 3")
        e("s_lshl_b32 s44, s44, 3")
        e(f"s_add_u32 s44, s44, s{s_wave}")
        e("s_mul_i32 s44, s44, 6144")
        e("s_bfe_u32 s45, s2, 0x10002")
        e("s_mul_i32 s45, s45, 1536")
        e("s_add_u32 s44, s44, s45")
        e("v_lshrrev_b32 v3, 5, v2")
        e("v_mul_u32_u24 v3, 3072, v3")
        e("v_and_b32 v4, 31, v2")
        e("v_mul_u32_u24 v4, 48, v4")
        e("v_add_u32 v236, v3, v4")
    e("v_lshrrev_b32 v4, 3, v2")
    e("v_and_b32 v5, 7, v2")
    e(f"s_lshl_b32 s{s_t}, s{s_wave}, 3")
    e(f"v_add_u32 v6, s{s_t}, v4")
    e("v_lshlrev_b32 v3, 10, v6")
    e("v_lshl_add_u32 v3, v5, 4, v3")
    e(f"s_lshl_b32 s{s_t}, s{s_rt}, 16")
    for i in range(8):
        e(f"buffer_load_dwordx4 {vr(XR+4*i,4)}, v3, {sr(sX,4)}, s{s_t} offen offset:{i*128}")
    e(f"s_mul_i32 s{s_t2}, s{s_wn}, 192")
    for i in range(3):
        e(f"v_add_u32 v11, s{s_t2}, v2")
        if i: e(f"v_add_u32 v11, {i*64}, v11")
        e("v_mul_u32_u24 v12, 2731, v11")
        e("v_lshrrev_b32 v12, 16, v12")
        e("v_mul_u32_u24 v13, 24, v12")
        e("v_sub_u32 v13, v11, v13")
        e("v_bfe_u32 v14, v12, 1, 1")
        e("v_bfe_u32 v15, v12, 3, 1")
        e("v_lshl_or_b32 v14, v15, 1, v14")
        e("v_lshlrev_b32 v14, 1, v14")
        if not os.environ.get("NOSWZ"): e("v_xor_b32 v13, v13, v14")
        e(f"s_mov_b32 s{s_t}, {WROW}")
        e(f"v_mul_lo_u32 v12, v12, s{s_t}")
        e(f"v_lshl_add_u32 v{8+i}, v13, 4, v12")
    e(f"s_mul_i32 s{s_k}, s{s_cg}, 384")
    if qkv:
        e(f"s_mul_i32 s{s_t}, s{s_wm}, {32*3072}")
        e(f"s_add_u32 s{s_k}, s{s_k}, s{s_t}")
    e(f"s_mul_i32 s{s_m0}, s{s_wave}, 3072")
    e(f"s_add_u32 s{s_m0}, s{s_m0}, {WB}")
    def dma(st):
        slot = st % R
        for i in range(3):
            e(f"s_add_u32 m0, s{s_m0}, {slot*SLOT + i*1024}")
            e("s_nop 0")
            e(f"buffer_load_dwordx4 v{8+i}, {sr(sW,4)}, s{s_k} offen {DFL} lds")
        e(f"s_add_u32 s{s_k}, s{s_k}, {KADV}")
    dma(0)
    if TP:
        e(f"buffer_load_dword v224, v236, {sr(sW,4)}, s44 offen")
    e("v_mov_b32 v28, v4"); e("v_mov_b32 v29, v5"); e("v_mov_b32 v30, v6")
    e("v_and_b32 v4, 15, v2")
    e("v_lshrrev_b32 v5, 4, v2")
    e(f"s_lshl_b32 s{s_t}, s{s_wm}, 15")
    e("v_lshlrev_b32 v6, 10, v4")
    e(f"v_add_u32 v6, s{s_t}, v6")
    e("v_and_b32 v7, 3, v4")
    e("v_xor_b32 v7, v7, v5")
    e("v_lshrrev_b32 v11, 2, v4")
    for k in range(4):
        e(f"v_xor_b32 v12, {k}, v11")
        e("v_lshl_or_b32 v12, v12, 2, v7")
        e(f"v_lshl_add_u32 v{24+k}, v12, 4, v6")
    e("v_lshrrev_b32 v11, 2, v4")
    e("v_and_b32 v12, 3, v4")
    e("v_lshl_add_u32 v13, v5, 3, v11")
    e("v_mul_u32_u24 v13, 384, v13")
    e("v_lshl_add_u32 v13, v12, 3, v13")
    e(f"v_add_u32 v13, {WB}, v13")
    e("v_lshrrev_b32 v14, 1, v11")
    e("v_and_b32 v15, 1, v5")
    e("v_lshl_or_b32 v14, v15, 1, v14")
    e(f"s_mul_i32 s{s_t}, s{s_wn}, 3")
    for j in range(3):
        e(f"s_add_u32 s{s_t2}, s{s_t}, {j}")
        e(f"v_xor_b32 v15, s{s_t2}, v14")
        e(f"v_lshl_add_u32 v{16+j}, v15, 5, v13")
        e(f"v_add_u32 v{19+j}, {2*SLOT}, v{16+j}")
    ACC = 128
    NACC = 6 if qkv else 12
    for i in range(NACC * 4):
        e(f"v_mov_b32 v{ACC+i}, 0")
    e(f"s_waitcnt vmcnt({4 if TP else 3})")
    stamp(name)
    e(f"s_mov_b32 s31, 0x3f803f80")
    e(f"v_dot2_f32_bf16 v{RS+6}, v{XR}, s31, 0")
    e(f"v_dot2_f32_bf16 v{RS+7}, v{XR+1}, s31, 0")
    e(f"v_dot2_f32_bf16 v{RS+8}, v{XR}, v{XR}, 0")
    e(f"v_dot2_f32_bf16 v{RS+9}, v{XR+1}, v{XR+1}, 0")
    for i in range(2, 32, 2):
        e(f"v_dot2_f32_bf16 v{RS+6}, v{XR+i}, s31, v{RS+6}")
        e(f"v_dot2_f32_bf16 v{RS+7}, v{XR+i+1}, s31, v{RS+7}")
        e(f"v_dot2_f32_bf16 v{RS+8}, v{XR+i}, v{XR+i}, v{RS+8}")
        e(f"v_dot2_f32_bf16 v{RS+9}, v{XR+i+1}, v{XR+i+1}, v{RS+9}")
    e(f"s_nop 3")
    e(f"v_add_f32 v{RS+6}, v{RS+6}, v{RS+7}")
    e(f"v_add_f32 v{RS+8}, v{RS+8}, v{RS+9}")
    for ctl in ("quad_perm:[1,0,3,2]", "quad_perm:[2,3,0,1]", "row_half_mirror"):
        e(f"s_nop 1")
        e(f"v_add_f32_dpp v{RS+6}, v{RS+6}, v{RS+6} {ctl} row_mask:0xf bank_mask:0xf")
        e(f"v_add_f32_dpp v{RS+8}, v{RS+8}, v{RS+8} {ctl} row_mask:0xf bank_mask:0xf")
    dma(1)
    e(f"v_mul_f32 v{RS+6}, 0x3b000000, v{RS+6}")
    e(f"v_mul_f32 v{RS+8}, 0x3b000000, v{RS+8}")
    e(f"v_fma_f32 v{RS+8}, -v{RS+6}, v{RS+6}, v{RS+8}")
    e(f"v_max_f32 v{RS+8}, 0, v{RS+8}")
    e(f"v_add_f32 v{RS+8}, 0x3727c5ac, v{RS+8}")
    e(f"v_rsq_f32 v{RS}, v{RS+8}")
    e(f"s_nop 0")
    e(f"v_mul_f32 v{RS+1}, v{RS+6}, v{RS}")
    e(f"v_sub_f32 v{RS+1}, 0, v{RS+1}")
    e(f"v_xor_b32 v{RS+10}, v28, v29")
    e(f"s_and_b32 s{s_t}, s{s_wave}, 1")
    e(f"s_lshl_b32 s{s_t}, s{s_t}, 3")
    e(f"v_add_u32 v{RS+11}, s{s_t}, v{RS+10}")
    e(f"s_xor_b32 s{s_t}, s{s_t}, 8")
    e(f"v_add_u32 v{RS+12}, s{s_t}, v{RS+10}")
    e(f"v_lshlrev_b32 v{RS+2}, 10, v30")
    e(f"v_lshl_add_u32 v{RS+3}, v{RS+12}, 4, v{RS+2}")
    e(f"v_lshl_add_u32 v{RS+2}, v{RS+11}, 4, v{RS+2}")
    def norm(i):
        for r in range(4):
            x = XR + 4*i + r
            e(f"v_lshlrev_b32 v{RS+4}, 16, v{x}")
            e(f"v_and_b32 v{RS+5}, 0xffff0000, v{x}")
            e(f"v_fma_f32 v{RS+4}, v{RS+4}, v{RS}, v{RS+1}")
            e(f"v_fma_f32 v{RS+5}, v{RS+5}, v{RS}, v{RS+1}")
            e(f"v_cvt_pk_bf16_f32 v{x}, v{RS+4}, v{RS+5}")
        e(f"ds_write_b128 v{RS+2+(i&1)}, {vr(XR+4*i,4)} offset:{XB+(i>>1)*256}")
    norm(0); norm(1)
    stamp(name)
    FS = [32, 80]
    def reads(st):
        base = FS[st & 1]; slot = st % R
        wa = 16 if slot < 2 else 19; so = (slot & 1) * SLOT
        nk = 2 if qkv else 1
        for kk in range(nk):
            ks = st * nk + kk
            for mt in range(2):
                e(f"ds_read_b128 {vr(base+(kk*2+mt)*4,4)}, v{24+(ks&3)} offset:{XB+(ks>>2)*256+mt*16384}")
        for b in range(2):
            for j in range(3):
                for t2 in range(2):
                    e(f"ds_read_b64_tr_b16 {vr(base+16+(b*3+j)*4+t2*2,2)}, v{wa+j} offset:{so+b*12288+t2*1536}")
    def mfmas(st):
        base = FS[st & 1]
        for b in range(2):
            for j in range(3):
                for mt in range(2):
                    if qkv: a = ACC + (mt*3+j)*4; x = base + (b*2+mt)*4
                    else:   a = ACC + ((b*2+mt)*3+j)*4; x = base + mt*4
                    e(f"v_mfma_f32_16x16x32_bf16 {vr(a,4)}, {vr(base+16+(b*3+j)*4,4)}, {vr(x,4)}, {vr(a,4)}")
    issued = 2
    for st in range(S):
        e(f"s_waitcnt vmcnt({(issued-1-st)*3 + (1 if (TP and st == 0) else 0)}) lgkmcnt(0)")
        e("s_barrier")
        if st in (0, 1, 2, 4, 6, S-1): stamp(name)
        B = chunks_of(capture(reads, st)) if not (os.environ.get("NORD") and st > 1) else []
        while issued < S and issued <= st + PDL:
            if not os.environ.get("NODMA"): B += chunks_of(capture(dma, issued))
            issued += 1
        if qkv:
            if st + 2 < 8: B += chunks_of(capture(norm, st + 2))
        else:
            if st % 2 == 0 and st // 2 + 2 < 8: B += chunks_of(capture(norm, st // 2 + 2))
        if st >= 1: interleave(capture(mfmas, st - 1), B)
        else:
            for c in B: L.extend(c)
    e("s_waitcnt lgkmcnt(0)")
    mfmas(S - 1)
    e("s_barrier")
    stamp(name)
    e("v_lshlrev_b32 v6, 5, v4")
    e("v_lshl_add_u32 v6, v5, 3, v6")
    if qkv:
        e(f"s_lshl_b32 s{s_t}, s{s_wave}, 9")
        e(f"v_add_u32 v7, s{s_t}, v6")
        e("v_lshrrev_b32 v11, 2, v4")
        e("v_and_b32 v12, 3, v4")
        e("v_lshl_add_u32 v11, v5, 2, v11")
        e("v_lshlrev_b32 v11, 5, v11")
        e("v_lshl_add_u32 v11, v12, 3, v11")
        e(f"v_add_u32 v11, s{s_t}, v11")
        e(f"s_mul_i32 s29, s{s_cg}, 12")
        e(f"s_mul_i32 s{s_t}, s{s_wn}, 3")
        e(f"s_add_u32 s29, s29, s{s_t}")
        e(f"s_lshl_b32 s30, s{s_rt}, 2")
        e(f"s_lshl_b32 s{s_t}, s{s_wm}, 1")
        e(f"s_add_u32 s30, s30, s{s_t}")
        e("s_nop 4")
        for j in range(3):
            for mt in range(2):
                a = ACC + (mt*3+j)*4
                e(f"v_cvt_pk_bf16_f32 v32, v{a}, v{a+1}")
                e(f"v_cvt_pk_bf16_f32 v33, v{a+2}, v{a+3}")
                e(f"s_add_u32 s{s_t}, s29, {j}")
                e(f"s_add_u32 s{s_t2}, s30, {mt}")
                e(f"s_cmp_ge_u32 s{s_t}, 64")
                e(f"s_cbranch_scc1 {name}_v{j}{mt}")
                e(f"s_lshl_b32 s{s_t}, s{s_t}, 16")
                e(f"s_lshl_b32 s{s_t2}, s{s_t2}, 9")
                e(f"s_add_u32 s{s_t}, s{s_t}, s{s_t2}")
                e(f"buffer_store_dwordx2 v[32:33], v6, {sr(sO,4)}, s{s_t} offen")
                e(f"s_branch {name}_n{j}{mt}")
                lab(f"{name}_v{j}{mt}")
                e("ds_write_b64 v7, v[32:33]")
                e("s_waitcnt lgkmcnt(0)")
                e("ds_read_b64_tr_b16 v[34:35], v11")
                e(f"s_sub_u32 s{s_t}, s{s_t}, 64")
                e(f"s_lshl_b32 s{s_t}, s{s_t}, 16")
                e(f"s_lshl_b32 s{s_t2}, s{s_t2}, 9")
                e(f"s_add_u32 s{s_t}, s{s_t}, s{s_t2}")
                e(f"s_add_u32 s{s_t}, s{s_t}, {WS_VT}")
                e("s_waitcnt lgkmcnt(0)")
                e(f"buffer_store_dwordx2 v[34:35], v6, {sr(sO,4)}, s{s_t} offen")
                lab(f"{name}_n{j}{mt}")
                e("s_nop 1")
    else:
        e(f"s_lshl_b32 s{s_t}, s{s_rt}, 6")
        e(f"s_lshl_b32 s{s_t2}, s{s_wm}, 5")
        e(f"s_add_u32 s{s_t}, s{s_t}, s{s_t2}")
        e(f"v_add_u32 v7, s{s_t}, v4")
        e(f"s_mov_b32 s{s_t}, 2752")
        e(f"v_mul_lo_u32 v7, v7, s{s_t}")
        e("v_lshl_add_u32 v7, v5, 3, v7")
        e(f"s_mul_i32 s29, s{s_cg}, 12")
        e(f"s_mul_i32 s{s_t}, s{s_wn}, 3")
        e(f"s_add_u32 s29, s29, s{s_t}")
        e("s_mov_b32 s30, 0xbfb8aa3b")
        e("s_nop 4")
        for j in range(3):
            e(f"s_add_u32 s{s_t}, s29, {j}")
            e(f"s_cmp_ge_u32 s{s_t}, 86")
            e(f"s_cbranch_scc1 {name}_skip{j}")
            e(f"s_lshl_b32 s{s_t}, s{s_t}, 5")
            for mt in range(2):
                g = ACC + (mt*3+j)*4; u = ACC + ((2+mt)*3+j)*4
                for r in range(4): e(f"v_mul_f32 v{32+r}, s30, v{g+r}")
                for r in range(4): e(f"v_exp_f32 v{32+r}, v{32+r}")
                e("s_nop 0")
                for r in range(4): e(f"v_add_f32 v{32+r}, 1.0, v{32+r}")
                for r in range(4): e(f"v_rcp_f32 v{32+r}, v{32+r}")
                e("s_nop 0")
                for r in range(4): e(f"v_mul_f32 v{32+r}, v{32+r}, v{u+r}")
                e(f"v_cvt_pk_bf16_f32 v{36+2*mt}, v32, v33")
                e(f"v_cvt_pk_bf16_f32 v{37+2*mt}, v34, v35")
                e(f"buffer_store_dwordx2 {vr(36+2*mt,2)}, v7, {sr(sO,4)}, s{s_t} offen offset:0" if mt == 0 else
                  f"buffer_store_dwordx2 {vr(36+2*mt,2)}, v41, {sr(sO,4)}, s{s_t} offen")
                if mt == 0: e(f"v_add_u32 v41, {16*2752}, v7")
            e("s_nop 1")
            lab(f"{name}_skip{j}")
    stamp(name)
    stamp_out(name)
    lab(f"{name}_done")
    e("s_endpgm")
    return name, 256, 512, 163840, (240 if qkv else 224)

def gen_ln_gemm2(mode):
    qkv = mode == "qkv"
    name = "k_qkv_kernel" if qkv else "k_gu_kernel"
    MAPMODE = MAPS[mode]
    header(name)
    R = 4; S = 8 if qkv else 16
    WROW = 3072 if qkv else 2752
    KADV = (64 if qkv else 32) * WROW
    XB = 0; WB = 65536; SLOT = 24576
    XR = 176; RS = 208
    sX, sW, sO = 8, 12, 16
    s_wave, s_cg, s_rt, s_wm, s_wn, s_m0, s_k, s_t, s_t2 = 20, 21, 22, 23, 24, 25, 26, 27, 28
    e(f"s_cmp_ge_u32 s2, 256")
    e(f"s_cbranch_scc1 {name}_done")
    stamp(name)
    e("s_load_dwordx4 s[32:35], s[0:1], 0")
    e("s_load_dwordx4 s[36:39], s[0:1], 32")
    e("s_load_dwordx2 s[40:41], s[0:1], 72")
    e("v_lshrrev_b32 v1, 6, v0")
    e("v_and_b32 v2, 63, v0")
    e("s_nop 0")
    e(f"v_readfirstlane_b32 s{s_wave}, v1")
    wgmap(s_cg, s_rt, MAPMODE)
    e(f"s_lshr_b32 s{s_wm}, s{s_wave}, 2")
    e(f"s_and_b32 s{s_wn}, s{s_wave}, 3")
    e("s_waitcnt lgkmcnt(0)")
    if qkv:
        srd(sX, 32, 2048 * 1024)
        srd(sW, 34, 512 * 3072)
        srd(sO, 40, 6 << 20)
    else:
        srd(sX, 40, 2048 * 1024, WS_H)
        e(f"s_cmp_eq_u32 s{s_wm}, 0")
        e("s_cselect_b32 s42, s36, s38")
        e("s_cselect_b32 s43, s37, s39")
        srd(sW, 42, 512 * 2752)
        srd(sO, 40, 2048 * 2752, WS_HM)

    CS = 224; ONES = 236; WA1 = 240; XA = 246
    s_mx, s_kx = 44, 45
    seq = []
    for i in range(2):
        e(f"s_lshl_b32 s{s_t}, s{s_wave}, 7")
        e(f"v_add_u32 v12, s{s_t}, v2")
        if i: e("v_add_u32 v12, 64, v12")
        e("v_lshrrev_b32 v13, 4, v12")
        e("v_and_b32 v14, 15, v12")
        e("v_and_b32 v15, 15, v13")
        e("v_xor_b32 v14, v14, v15")
        e("v_lshlrev_b32 v13, 10, v13")
        e(f"v_lshl_add_u32 v{XA+i}, v14, 4, v13")
    e(f"s_lshl_b32 s{s_kx}, s{s_rt}, 16")
    e(f"s_lshl_b32 s{s_mx}, s{s_wave}, 11")
    def dmax(g):
        for i in range(2):
            e(f"s_add_u32 m0, s{s_mx}, {XB + g*16384 + i*1024}")
            e("s_nop 0")
            e(f"buffer_load_dwordx4 v{XA+i}, {sr(sX,4)}, s{s_kx} offen lds")
        e(f"s_add_u32 s{s_kx}, s{s_kx}, 256")
        seq.extend([("X", g)] * 2)
    dmax(0)
    e(f"s_mul_i32 s{s_t2}, s{s_wn}, 192")
    for i in range(3):
        e(f"v_add_u32 v11, s{s_t2}, v2")
        if i: e(f"v_add_u32 v11, {i*64}, v11")
        e("v_mul_u32_u24 v12, 2731, v11")
        e("v_lshrrev_b32 v12, 16, v12")
        e("v_mul_u32_u24 v13, 24, v12")
        e("v_sub_u32 v13, v11, v13")
        e("v_bfe_u32 v14, v12, 1, 1")
        e("v_bfe_u32 v15, v12, 3, 1")
        e("v_lshl_or_b32 v14, v15, 1, v14")
        e("v_lshlrev_b32 v14, 1, v14")
        e("v_xor_b32 v13, v13, v14")
        e(f"s_mov_b32 s{s_t}, {WROW}")
        e(f"v_mul_lo_u32 v12, v12, s{s_t}")
        e(f"v_lshl_add_u32 v{8+i}, v13, 4, v12")
    e(f"s_mul_i32 s{s_k}, s{s_cg}, 384")
    if qkv:
        e(f"s_mul_i32 s{s_t}, s{s_wm}, {32*3072}")
        e(f"s_add_u32 s{s_k}, s{s_k}, s{s_t}")
    e(f"s_mul_i32 s{s_m0}, s{s_wave}, 3072")
    e(f"s_add_u32 s{s_m0}, s{s_m0}, {WB}")
    def dma(st):
        slot = st % R
        for i in range(3):
            e(f"s_add_u32 m0, s{s_m0}, {slot*SLOT + i*1024}")
            e("s_nop 0")
            e(f"buffer_load_dwordx4 v{8+i}, {sr(sW,4)}, s{s_k} offen lds")
        e(f"s_add_u32 s{s_k}, s{s_k}, {KADV}")
        seq.extend([("W", st)] * 3)
    XS = os.environ.get("XS", "1") == "1"
    dma(0); dma(1)
    if not XS: dmax(1); dmax(2); dmax(3)
    e("v_lshrrev_b32 v4, 3, v2")
    e("v_and_b32 v5, 7, v2")
    e(f"s_lshl_b32 s{s_t}, s{s_wave}, 3")
    e(f"v_add_u32 v6, s{s_t}, v4")
    e(f"v_lshlrev_b32 v{RS+2}, 8, v6")
    e(f"v_lshl_add_u32 v{RS+2}, v5, 4, v{RS+2}")
    e(f"v_lshlrev_b32 v{RS+3}, 3, v6")
    e(f"v_add_u32 v{RS+3}, {WB}, v{RS+3}")
    e(f"s_mul_i32 s{s_t}, s{s_wave}, 3072")
    e(f"s_add_u32 s{s_t}, s{s_t}, {WB+1024}")
    e(f"v_lshl_add_u32 v{RS+4}, v2, 4, s{s_t}")
    e(f"s_xor_b32 s{s_t}, s{s_wave}, 4")
    e(f"s_mul_i32 s{s_t}, s{s_t}, 3072")
    e(f"s_add_u32 s{s_t}, s{s_t}, {WB+1024}")
    e(f"v_lshl_add_u32 v{RS+10}, v2, 4, s{s_t}")
    e("v_and_b32 v4, 15, v2")
    e("v_lshrrev_b32 v5, 4, v2")
    e(f"s_lshl_b32 s{s_t}, s{s_wm}, 8")
    e(f"s_add_u32 s{s_t}, s{s_t}, {WB}")
    e(f"v_lshl_add_u32 v{RS+5}, v4, 3, s{s_t}")
    e(f"s_lshl_b32 s{s_t}, s{s_wm}, 13")
    e("v_lshlrev_b32 v6, 8, v4")
    e(f"v_add_u32 v6, s{s_t}, v6")
    e("v_and_b32 v7, 3, v4")
    e("v_xor_b32 v7, v7, v5")
    e("v_lshrrev_b32 v11, 2, v4")
    for k in range(4):
        if qkv:
            e(f"s_xor_b32 s{s_t}, s{s_wm}, {k}")
            e(f"v_xor_b32 v12, s{s_t}, v11")
        else:
            e(f"v_xor_b32 v12, {k}, v11")
        e("v_lshl_or_b32 v12, v12, 2, v7")
        e(f"v_lshl_add_u32 v{24+k}, v12, 4, v6")
    e("v_lshrrev_b32 v11, 2, v4")
    e("v_and_b32 v12, 3, v4")
    e("v_lshl_add_u32 v13, v5, 3, v11")
    e("v_mul_u32_u24 v13, 384, v13")
    e("v_lshl_add_u32 v13, v12, 3, v13")
    e(f"v_add_u32 v13, {WB}, v13")
    e("v_lshrrev_b32 v14, 1, v11")
    e("v_and_b32 v15, 1, v5")
    e("v_lshl_or_b32 v14, v15, 1, v14")
    e(f"s_mul_i32 s{s_t}, s{s_wn}, 3")
    e(f"s_mul_i32 s29, s{s_wm}, 12288")
    e(f"s_sub_u32 s30, 12288, s29")
    for j in range(3):
        e(f"s_add_u32 s{s_t2}, s{s_t}, {j}")
        e(f"v_xor_b32 v15, s{s_t2}, v14")
        e(f"v_lshl_add_u32 v15, v15, 5, v13")
        e(f"v_add_u32 v{16+j}, s29, v15")
        e(f"v_add_u32 v{19+j}, {2*SLOT}, v{16+j}")
        e(f"v_add_u32 v{WA1+j}, s30, v15")
        e(f"v_add_u32 v{WA1+3+j}, {2*SLOT}, v{WA1+j}")
    ACC = 128
    NACC = 6 if qkv else 12
    for i in range(NACC * 4):
        e(f"v_mov_b32 v{ACC+i}, 0")
    for i in range(12): e(f"v_mov_b32 v{CS+i}, 0")
    for i in range(4): e(f"v_mov_b32 v{ONES+i}, 0x3f803f80")
    e(f"s_mov_b32 s31, 0x3f803f80")
    stamp(name)
    def stat_reads():
        for i in range(8):
            e(f"ds_read_b128 {vr(XR+4*i,4)}, v{RS+2} offset:{XB+(i>>1)*16384+(i&1)*128}")
    SC = []
    def c(*ls): SC.append(["    " + l for l in ls])
    c(f"v_dot2_f32_bf16 v{RS+6}, v{XR}, s31, 0")
    c(f"v_dot2_f32_bf16 v{RS+7}, v{XR+1}, s31, 0")
    c(f"v_dot2_f32_bf16 v{RS+8}, v{XR}, v{XR}, 0")
    c(f"v_dot2_f32_bf16 v{RS+9}, v{XR+1}, v{XR+1}, 0")
    for i in range(2, 32, 2):
        c(f"v_dot2_f32_bf16 v{RS+6}, v{XR+i}, s31, v{RS+6}")
        c(f"v_dot2_f32_bf16 v{RS+7}, v{XR+i+1}, s31, v{RS+7}")
        c(f"v_dot2_f32_bf16 v{RS+8}, v{XR+i}, v{XR+i}, v{RS+8}")
        c(f"v_dot2_f32_bf16 v{RS+9}, v{XR+i+1}, v{XR+i+1}, v{RS+9}")
    c("s_nop 3", f"v_add_f32 v{RS+6}, v{RS+6}, v{RS+7}", f"v_add_f32 v{RS+8}, v{RS+8}, v{RS+9}")
    for ctl in ("quad_perm:[1,0,3,2]", "quad_perm:[2,3,0,1]", "row_half_mirror"):
        c("s_nop 1",
          f"v_add_f32_dpp v{RS+6}, v{RS+6}, v{RS+6} {ctl} row_mask:0xf bank_mask:0xf",
          f"v_add_f32_dpp v{RS+8}, v{RS+8}, v{RS+8} {ctl} row_mask:0xf bank_mask:0xf")
    c(f"v_mul_f32 v{RS+6}, 0x3b000000, v{RS+6}",
      f"v_mul_f32 v{RS+8}, 0x3b000000, v{RS+8}",
      f"v_fma_f32 v{RS+8}, -v{RS+6}, v{RS+6}, v{RS+8}",
      f"v_max_f32 v{RS+8}, 0, v{RS+8}",
      f"v_add_f32 v{RS+8}, 0x3727c5ac, v{RS+8}",
      f"v_rsq_f32 v{RS}, v{RS+8}",
      "s_nop 0",
      f"v_mul_f32 v{RS+1}, v{RS+6}, v{RS}",
      f"v_sub_f32 v{RS+1}, 0, v{RS+1}")
    NSC = len(SC)
    FS = [32, 80]
    def reads(st):
        base = FS[st & 1]; slot = st % R
        hi = 0 if slot < 2 else 3; so = (slot & 1) * SLOT
        nk = 2 if qkv else 1
        for kk in range(nk):
            ks = st * nk + kk
            for mt in range(2):
                e(f"ds_read_b128 {vr(base+(kk*2+mt)*4,4)}, v{24+(ks&3)} offset:{XB+(ks>>2)*16384+mt*4096}")
        for b in range(2):
            for j in range(3):
                wa = (16 if b == 0 else WA1) + hi + j
                for t2 in range(2):
                    e(f"ds_read_b64_tr_b16 {vr(base+16+(b*3+j)*4+t2*2,2)}, v{wa} offset:{so+t2*1536}")
    def mfmas(st):
        base = FS[st & 1]
        for b in range(2):
            for j in range(3):
                for mt in range(2):
                    if qkv: a = ACC + (mt*3+j)*4; x = base + (b*2+mt)*4
                    else:   a = ACC + ((b*2+mt)*3+j)*4; x = base + mt*4
                    e(f"v_mfma_f32_16x16x32_bf16 {vr(a,4)}, {vr(base+16+(b*3+j)*4,4)}, {vr(x,4)}, {vr(a,4)}")
                if b == 0:
                    e(f"v_mfma_f32_16x16x32_bf16 {vr(CS+4*j,4)}, {vr(base+16+j*4,4)}, {vr(ONES,4)}, {vr(CS+4*j,4)}")
    grp = (lambda st: st >> 1) if qkv else (lambda st: st >> 2)
    issued = 2
    ST0 = int(os.environ.get("ST0", "4" if XS else "2"))
    NSS = 3
    for st in range(S):
        tags = {("W", st), ("X", grp(st))}
        if st == ST0: tags |= {("X", g) for g in range(4)}
        last = max(i for i, t in enumerate(seq) if t in tags)
        e(f"s_waitcnt vmcnt({len(seq)-1-last}) lgkmcnt(0)")
        e("s_barrier")
        if st in (0, 1, 2, 4, 6, S-1): stamp(name)
        B = chunks_of(capture(reads, st))
        while issued < S and issued <= st + PDL:
            B += chunks_of(capture(dma, issued))
            issued += 1
        if XS and st < 3: B += chunks_of(capture(dmax, st + 1))
        if st == ST0: B += chunks_of(capture(stat_reads))
        if ST0 < st <= ST0 + NSS:
            q = st - ST0 - 1
            B += SC[q*NSC//NSS:(q+1)*NSC//NSS]
        if st >= 1: interleave(capture(mfmas, st - 1), B)
        else:
            for ch in B: L.extend(ch)
    e("s_waitcnt lgkmcnt(0)")
    mfmas(S - 1)
    e("s_barrier")
    stamp(name)
    e("s_nop 7"); e("s_nop 3")
    e(f"ds_write_b64 v{RS+3}, v[{RS}:{RS+1}]")
    for j in range(3):
        e(f"ds_write_b128 v{RS+4}, {vr(CS+4*j,4)} offset:{j*1024}")
    e("s_waitcnt lgkmcnt(0)")
    e("s_barrier")
    e(f"ds_read_b64 v[32:33], v{RS+5}")
    e(f"ds_read_b64 v[34:35], v{RS+5} offset:128")
    for j in range(3):
        e(f"ds_read_b128 {vr(36+4*j,4)}, v{RS+10} offset:{j*1024}")
    e("s_waitcnt lgkmcnt(0)")
    if qkv:
        for p in range(6):
            e(f"v_pk_add_f32 {vr(CS+2*p,2)}, {vr(CS+2*p,2)}, {vr(36+2*p,2)}")
    tn = 0
    for b in range(1 if qkv else 2):
        for mt in range(2):
            for j in range(3):
                a = (ACC + (mt*3+j)*4) if qkv else (ACC + ((b*2+mt)*3+j)*4)
                cc = (CS if b == 0 else 36) + 4*j
                for p in range(2):
                    t = 48 + 2*(tn % 4); tn += 1
                    e(f"v_pk_mul_f32 {vr(t,2)}, {vr(cc+2*p,2)}, {vr(32+2*mt,2)} op_sel:[0,1] op_sel_hi:[1,1]")
                    e(f"v_pk_fma_f32 {vr(a+2*p,2)}, {vr(a+2*p,2)}, {vr(32+2*mt,2)}, {vr(t,2)} op_sel_hi:[1,0,1]")
    if not qkv:
        e(f"s_cmp_eq_u32 s{s_wm}, 0")
        e(f"s_cbranch_scc1 {name}_nosw")
        for i in range(24):
            e(f"v_swap_b32 v{ACC+i}, v{ACC+24+i}")
        lab(f"{name}_nosw")
    e("v_lshlrev_b32 v6, 5, v4")
    e("v_lshl_add_u32 v6, v5, 3, v6")
    if qkv:
        e(f"s_lshl_b32 s{s_t}, s{s_wave}, 9")
        e(f"v_add_u32 v7, s{s_t}, v6")
        e("v_lshrrev_b32 v11, 2, v4")
        e("v_and_b32 v12, 3, v4")
        e("v_lshl_add_u32 v11, v5, 2, v11")
        e("v_lshlrev_b32 v11, 5, v11")
        e("v_lshl_add_u32 v11, v12, 3, v11")
        e(f"v_add_u32 v11, s{s_t}, v11")
        e(f"s_mul_i32 s29, s{s_cg}, 12")
        e(f"s_mul_i32 s{s_t}, s{s_wn}, 3")
        e(f"s_add_u32 s29, s29, s{s_t}")
        e(f"s_lshl_b32 s30, s{s_rt}, 2")
        e(f"s_lshl_b32 s{s_t}, s{s_wm}, 1")
        e(f"s_add_u32 s30, s30, s{s_t}")
        e("s_nop 4")
        for j in range(3):
            for mt in range(2):
                a = ACC + (mt*3+j)*4
                e(f"v_cvt_pk_bf16_f32 v32, v{a}, v{a+1}")
                e(f"v_cvt_pk_bf16_f32 v33, v{a+2}, v{a+3}")
                e(f"s_add_u32 s{s_t}, s29, {j}")
                e(f"s_add_u32 s{s_t2}, s30, {mt}")
                e(f"s_cmp_ge_u32 s{s_t}, 64")
                e(f"s_cbranch_scc1 {name}_v{j}{mt}")
                e(f"s_lshl_b32 s{s_t}, s{s_t}, 16")
                e(f"s_lshl_b32 s{s_t2}, s{s_t2}, 9")
                e(f"s_add_u32 s{s_t}, s{s_t}, s{s_t2}")
                e(f"buffer_store_dwordx2 v[32:33], v6, {sr(sO,4)}, s{s_t} offen")
                e(f"s_branch {name}_n{j}{mt}")
                lab(f"{name}_v{j}{mt}")
                e("ds_write_b64 v7, v[32:33]")
                e("s_waitcnt lgkmcnt(0)")
                e("ds_read_b64_tr_b16 v[34:35], v11")
                e(f"s_sub_u32 s{s_t}, s{s_t}, 64")
                e(f"s_lshl_b32 s{s_t}, s{s_t}, 16")
                e(f"s_lshl_b32 s{s_t2}, s{s_t2}, 9")
                e(f"s_add_u32 s{s_t}, s{s_t}, s{s_t2}")
                e(f"s_add_u32 s{s_t}, s{s_t}, {WS_VT}")
                e("s_waitcnt lgkmcnt(0)")
                e(f"buffer_store_dwordx2 v[34:35], v6, {sr(sO,4)}, s{s_t} offen")
                lab(f"{name}_n{j}{mt}")
                e("s_nop 1")
    else:
        e(f"s_lshl_b32 s{s_t}, s{s_rt}, 6")
        e(f"s_lshl_b32 s{s_t2}, s{s_wm}, 5")
        e(f"s_add_u32 s{s_t}, s{s_t}, s{s_t2}")
        e(f"v_add_u32 v7, s{s_t}, v4")
        e(f"s_mov_b32 s{s_t}, 2752")
        e(f"v_mul_lo_u32 v7, v7, s{s_t}")
        e("v_lshl_add_u32 v7, v5, 3, v7")
        e(f"s_mul_i32 s29, s{s_cg}, 12")
        e(f"s_mul_i32 s{s_t}, s{s_wn}, 3")
        e(f"s_add_u32 s29, s29, s{s_t}")
        e("s_mov_b32 s30, 0xbfb8aa3b")
        e("s_nop 4")
        for j in range(3):
            e(f"s_add_u32 s{s_t}, s29, {j}")
            e(f"s_cmp_ge_u32 s{s_t}, 86")
            e(f"s_cbranch_scc1 {name}_skip{j}")
            e(f"s_lshl_b32 s{s_t}, s{s_t}, 5")
            for mt in range(2):
                g = ACC + (mt*3+j)*4; u = ACC + ((2+mt)*3+j)*4
                for r in range(4): e(f"v_mul_f32 v{32+r}, s30, v{g+r}")
                for r in range(4): e(f"v_exp_f32 v{32+r}, v{32+r}")
                e("s_nop 0")
                for r in range(4): e(f"v_add_f32 v{32+r}, 1.0, v{32+r}")
                for r in range(4): e(f"v_rcp_f32 v{32+r}, v{32+r}")
                e("s_nop 0")
                for r in range(4): e(f"v_mul_f32 v{32+r}, v{32+r}, v{u+r}")
                e(f"v_cvt_pk_bf16_f32 v{36+2*mt}, v32, v33")
                e(f"v_cvt_pk_bf16_f32 v{37+2*mt}, v34, v35")
                e(f"buffer_store_dwordx2 {vr(36+2*mt,2)}, v7, {sr(sO,4)}, s{s_t} offen offset:0" if mt == 0 else
                  f"buffer_store_dwordx2 {vr(36+2*mt,2)}, v41, {sr(sO,4)}, s{s_t} offen")
                if mt == 0: e(f"v_add_u32 v41, {16*2752}, v7")
            e("s_nop 1")
            lab(f"{name}_skip{j}")
    stamp(name)
    stamp_out(name)
    lab(f"{name}_done")
    e("s_endpgm")
    return name, 256, 512, 163840, 256


def gen_gu3():
    name = "k_gu_kernel"
    header(name)
    R = 4; S = 8; WROW = 2752
    SLOT = 40960; WO = 16384
    RS = 208; XR = 200; CS = 224; ONES = 236; WA = 176; XAD = 24; XA = 28; SA = 30
    sX, sW, sO = 8, 12, 16
    s_wave, s_cg, s_rt, s_wm, s_wn, s_m0, s_k, s_t, s_t2 = 20, 21, 22, 23, 24, 25, 26, 27, 28
    s_mx, s_kx, s_wm0, s_wm1 = 44, 45, 46, 47
    e(f"s_cmp_ge_u32 s2, 256")
    e(f"s_cbranch_scc1 {name}_done")
    e(f"s_and_b32 s{s_rt}, s2, 3")
    e(f"s_lshl_b32 s{s_rt}, s{s_rt}, 2")
    e(f"s_bfe_u32 s{s_cg}, s2, 0x20003")
    e(f"s_add_u32 s{s_rt}, s{s_rt}, s{s_cg}")
    e(f"s_bfe_u32 s{s_cg}, s2, 0x10002")
    e(f"s_lshl_b32 s{s_cg}, s{s_cg}, 3")
    e(f"s_lshr_b32 s100, s2, 5")
    e(f"s_add_u32 s{s_cg}, s{s_cg}, s100")
    e(f"s_cmp_ge_u32 s{s_cg}, 15")
    e(f"s_cbranch_scc1 {name}_done")
    stamp(name)
    e("s_load_dwordx4 s[36:39], s[0:1], 32")
    e("s_load_dwordx2 s[40:41], s[0:1], 72")
    e("v_lshrrev_b32 v1, 6, v0")
    e("v_and_b32 v2, 63, v0")
    e("s_nop 0")
    e(f"v_readfirstlane_b32 s{s_wave}, v1")
    e(f"s_lshr_b32 s{s_wm}, s{s_wave}, 1")
    e(f"s_and_b32 s{s_wn}, s{s_wave}, 1")
    e(f"s_and_b32 s{s_wm0}, s{s_wm}, 1")
    e(f"s_lshr_b32 s{s_wm1}, s{s_wave}, 2")
    e("s_waitcnt lgkmcnt(0)")
    srd(sX, 40, 2048 * 1024, WS_H)
    e(f"s_cmp_eq_u32 s{s_wm1}, 0")
    e("s_cselect_b32 s42, s36, s38")
    e("s_cselect_b32 s43, s37, s39")
    srd(sW, 42, 512 * 2752)
    srd(sO, 40, 2048 * 2752, WS_HM)
    seq = []
    for i in range(2):
        e(f"s_lshl_b32 s{s_t}, s{s_wave}, 7")
        e(f"v_add_u32 v12, s{s_t}, v2")
        if i: e("v_add_u32 v12, 64, v12")
        e("v_lshrrev_b32 v13, 3, v12")
        e("v_and_b32 v14, 7, v12")
        e("v_bfe_u32 v15, v12, 4, 3")
        e("v_xor_b32 v14, v14, v15")
        e("v_lshlrev_b32 v13, 10, v13")
        e(f"v_lshl_add_u32 v{XA+i}, v14, 4, v13")
    e(f"s_lshl_b32 s{s_kx}, s{s_rt}, 17")
    e(f"s_lshl_b32 s{s_mx}, s{s_wave}, 11")
    e(f"s_and_b32 s{s_t2}, s{s_wave}, 3")
    e(f"s_mul_i32 s{s_t2}, s{s_t2}, 192")
    for i in range(3):
        e(f"v_add_u32 v11, s{s_t2}, v2")
        if i: e(f"v_add_u32 v11, {i*64}, v11")
        e("v_mul_u32_u24 v12, 2731, v11")
        e("v_lshrrev_b32 v12, 16, v12")
        e("v_mul_u32_u24 v13, 24, v12")
        e("v_sub_u32 v13, v11, v13")
        e("v_bfe_u32 v14, v12, 1, 1")
        e("v_bfe_u32 v15, v12, 3, 1")
        e("v_lshl_or_b32 v14, v15, 1, v14")
        e("v_lshlrev_b32 v14, 1, v14")
        e("v_xor_b32 v13, v13, v14")
        e("v_cmp_lt_u32 vcc, 11, v13")
        e("v_add_u32 v14, 32, v12")
        e("v_cndmask_b32 v12, v12, v14, vcc")
        e("v_subrev_u32 v14, 12, v13")
        e("v_cndmask_b32 v13, v13, v14, vcc")
        e(f"s_mov_b32 s{s_t}, {WROW}")
        e(f"v_mul_lo_u32 v12, v12, s{s_t}")
        e(f"v_lshl_add_u32 v{8+i}, v13, 4, v12")
    e(f"s_mul_i32 s{s_k}, s{s_cg}, 192")
    e(f"s_mul_i32 s{s_m0}, s{s_wave}, 3072")
    e(f"s_add_u32 s{s_m0}, s{s_m0}, {WO}")
    def dma(st):
        slot = st % R
        for i in range(2):
            e(f"s_add_u32 m0, s{s_mx}, {slot*SLOT + i*1024}")
            e("s_nop 0")
            e(f"buffer_load_dwordx4 v{XA+i}, {sr(sX,4)}, s{s_kx} offen lds")
        e(f"s_add_u32 s{s_kx}, s{s_kx}, 128")
        for i in range(3):
            e(f"s_add_u32 m0, s{s_m0}, {slot*SLOT + i*1024}")
            e("s_nop 0")
            e(f"buffer_load_dwordx4 v{8+i}, {sr(sW,4)}, s{s_k} offen lds")
        e(f"s_add_u32 s{s_k}, s{s_k}, {64*WROW}")
        seq.extend([st] * 5)
    PD = int(os.environ.get("PD3", "3")); PD0 = int(os.environ.get("PD30", "2"))
    for st in range(PD0): dma(st)
    issued = PD0
    e("v_lshrrev_b32 v4, 2, v2")
    e("v_and_b32 v5, 3, v2")
    e(f"s_lshl_b32 s{s_t}, s{s_wave}, 4")
    e(f"v_add_u32 v6, s{s_t}, v4")
    e(f"v_lshlrev_b32 v{SA}, 7, v6")
    e(f"v_lshl_add_u32 v{SA}, v5, 4, v{SA}")
    e(f"v_add_u32 v{SA+1}, {2*SLOT}, v{SA}")
    e(f"v_lshlrev_b32 v{RS+3}, 3, v6")
    e(f"s_mul_i32 s{s_t}, s{s_wave}, 3072")
    e(f"v_lshlrev_b32 v7, 4, v2")
    e(f"v_add_u32 v7, 2048, v7")
    e(f"v_add_u32 v{RS+4}, s{s_t}, v7")
    for q, xo in enumerate((2, 4, 6)):
        e(f"s_xor_b32 s{s_t}, s{s_wave}, {xo}")
        e(f"s_mul_i32 s{s_t}, s{s_t}, 3072")
        e(f"v_add_u32 v{RS+10+q}, s{s_t}, v7")
    e("v_and_b32 v4, 15, v2")
    e("v_lshrrev_b32 v5, 4, v2")
    e(f"s_lshl_b32 s{s_t}, s{s_wm}, 8")
    e(f"v_lshl_add_u32 v{RS+5}, v4, 3, s{s_t}")
    e(f"s_lshl_b32 s{s_t}, s{s_wm}, 12")
    e("v_lshlrev_b32 v6, 7, v4")
    e(f"v_add_u32 v6, s{s_t}, v6")
    e("v_bfe_u32 v7, v4, 1, 3")
    for kk in range(2):
        e(f"s_xor_b32 s{s_t}, s{s_wm0}, {kk}")
        e(f"s_lshl_b32 s{s_t}, s{s_t}, 2")
        e(f"v_add_u32 v12, s{s_t}, v5")
        e("v_xor_b32 v12, v12, v7")
        e(f"v_lshl_add_u32 v{XAD+kk}, v12, 4, v6")
        e(f"v_add_u32 v{XAD+2+kk}, {2*SLOT}, v{XAD+kk}")
    e("v_lshrrev_b32 v11, 2, v4")
    e("v_and_b32 v12, 3, v4")
    e("v_lshl_add_u32 v13, v5, 3, v11")
    e("v_mul_u32_u24 v13, 384, v13")
    e("v_lshl_add_u32 v13, v12, 3, v13")
    e("v_lshrrev_b32 v14, 1, v11")
    e("v_and_b32 v15, 1, v5")
    e("v_lshl_or_b32 v14, v15, 1, v14")
    def wreg(hi, kk, b, j): return WA + hi*12 + kk*6 + b*3 + j
    for kk in range(2):
        for j in range(3):
            e(f"s_xor_b32 s{s_t}, s{s_wm0}, {kk}")
            e(f"s_mul_i32 s{s_t}, s{s_t}, 6")
            e(f"s_mul_i32 s{s_t2}, s{s_wn}, 3")
            e(f"s_add_u32 s{s_t}, s{s_t}, s{s_t2}")
            e(f"s_add_u32 s{s_t}, s{s_t}, {j}")
            e(f"v_xor_b32 v15, s{s_t}, v14")
            e(f"v_lshl_add_u32 v15, v15, 5, v13")
            for b in range(2):
                e(f"s_xor_b32 s{s_t}, s{s_wm1}, {b}")
                e(f"s_mul_i32 s{s_t}, s{s_t}, 12288")
                e(f"v_add_u32 v{wreg(0,kk,b,j)}, s{s_t}, v15")
                e(f"v_add_u32 v{wreg(1,kk,b,j)}, {2*SLOT}, v{wreg(0,kk,b,j)}")
    ACC = 128
    for i in range(48): e(f"v_mov_b32 v{ACC+i}, 0")
    for i in range(12): e(f"v_mov_b32 v{CS+i}, 0")
    for i in range(4): e(f"v_mov_b32 v{ONES+i}, 0x3f803f80"); e(f"v_mov_b32 v{RS+6+i}, 0")
    e(f"s_mov_b32 s31, 0x3f803f80")
    stamp(name)
    FS = [32, 80]
    def reads(st, kk):
        base = FS[kk]; slot = st % R
        hi = slot >> 1; so = (slot & 1) * SLOT
        for mt in range(2):
            e(f"ds_read_b128 {vr(base+mt*4,4)}, v{XAD+2*hi+kk} offset:{so+mt*2048}")
        for b in range(2):
            for j in range(3):
                for t2 in range(2):
                    e(f"ds_read_b64_tr_b16 {vr(base+16+(b*3+j)*4+t2*2,2)}, v{wreg(hi,kk,b,j)} offset:{so+WO+t2*1536}")
    def stat_reads(st):
        slot = st % R
        for i in range(2):
            e(f"ds_read_b128 {vr(XR+4*i,4)}, v{SA+(slot>>1)} offset:{(slot&1)*SLOT+i*64}")
    def stat_dots():
        for i in range(0, 8, 2):
            e(f"v_dot2_f32_bf16 v{RS+6}, v{XR+i}, s31, v{RS+6}")
            e(f"v_dot2_f32_bf16 v{RS+7}, v{XR+i+1}, s31, v{RS+7}")
            e(f"v_dot2_f32_bf16 v{RS+8}, v{XR+i}, v{XR+i}, v{RS+8}")
            e(f"v_dot2_f32_bf16 v{RS+9}, v{XR+i+1}, v{XR+i+1}, v{RS+9}")
    def mfmas(kk):
        base = FS[kk]
        for b in range(2):
            for j in range(3):
                for mt in range(2):
                    a = ACC + ((b*2+mt)*3+j)*4
                    e(f"v_mfma_f32_16x16x32_bf16 {vr(a,4)}, {vr(base+16+(b*3+j)*4,4)}, {vr(base+mt*4,4)}, {vr(a,4)}")
                if b == 0 and kk == 0:
                    e(f"v_mfma_f32_16x16x32_bf16 {vr(CS+4*j,4)}, {vr(base+16+j*4,4)}, {vr(ONES,4)}, {vr(CS+4*j,4)}")
    for st in range(S):
        last = max(i for i, t in enumerate(seq) if t == st)
        e(f"s_waitcnt vmcnt({len(seq)-1-last}) lgkmcnt(0)")
        e("s_barrier")
        if st in (0, 1, 2, 4, 6): stamp(name)
        B = chunks_of(capture(reads, st, 0)) + chunks_of(capture(stat_reads, st))
        while issued < S and issued <= st + PD:
            B += chunks_of(capture(dma, issued)); issued += 1
        if st >= 1: interleave(capture(mfmas, 1), B)
        else:
            for ch in B: L.extend(ch)
        e("s_waitcnt lgkmcnt(0)")
        B = chunks_of(capture(reads, st, 1)) + chunks_of(capture(stat_dots))
        interleave(capture(mfmas, 0), B)
    e("s_waitcnt lgkmcnt(0)")
    mfmas(1)
    e(f"v_add_f32 v{RS+6}, v{RS+6}, v{RS+7}")
    e(f"v_add_f32 v{RS+8}, v{RS+8}, v{RS+9}")
    for ctl in ("quad_perm:[1,0,3,2]", "quad_perm:[2,3,0,1]"):
        e(f"s_nop 1")
        e(f"v_add_f32_dpp v{RS+6}, v{RS+6}, v{RS+6} {ctl} row_mask:0xf bank_mask:0xf")
        e(f"v_add_f32_dpp v{RS+8}, v{RS+8}, v{RS+8} {ctl} row_mask:0xf bank_mask:0xf")
    e(f"v_mul_f32 v{RS+6}, 0x3b000000, v{RS+6}")
    e(f"v_mul_f32 v{RS+8}, 0x3b000000, v{RS+8}")
    e(f"v_fma_f32 v{RS+8}, -v{RS+6}, v{RS+6}, v{RS+8}")
    e(f"v_max_f32 v{RS+8}, 0, v{RS+8}")
    e(f"v_add_f32 v{RS+8}, 0x3727c5ac, v{RS+8}")
    e(f"v_rsq_f32 v{RS}, v{RS+8}")
    e(f"s_nop 0")
    e(f"v_mul_f32 v{RS+1}, v{RS+6}, v{RS}")
    e(f"v_sub_f32 v{RS+1}, 0, v{RS+1}")
    e("s_barrier")
    stamp(name)
    e("s_nop 7")
    e(f"ds_write_b64 v{RS+3}, v[{RS}:{RS+1}]")
    for j in range(3):
        e(f"ds_write_b128 v{RS+4}, {vr(CS+4*j,4)} offset:{j*1024}")
    e("s_waitcnt lgkmcnt(0)")
    e("s_barrier")
    e(f"ds_read_b64 v[32:33], v{RS+5}")
    e(f"ds_read_b64 v[34:35], v{RS+5} offset:128")
    for q in range(3):
        for j in range(3):
            e(f"ds_read_b128 {vr(36+12*q+4*j,4)}, v{RS+10+q} offset:{j*1024}")
    e("s_waitcnt lgkmcnt(0)")
    for p in range(6):
        e(f"v_pk_add_f32 {vr(CS+2*p,2)}, {vr(CS+2*p,2)}, {vr(36+2*p,2)}")
        e(f"v_pk_add_f32 {vr(48+2*p,2)}, {vr(48+2*p,2)}, {vr(60+2*p,2)}")
    tn = 0
    for b in range(2):
        for mt in range(2):
            for j in range(3):
                a = ACC + ((b*2+mt)*3+j)*4
                cc = (CS if b == 0 else 48) + 4*j
                for p in range(2):
                    t = 72 + 2*(tn % 4); tn += 1
                    e(f"v_pk_mul_f32 {vr(t,2)}, {vr(cc+2*p,2)}, {vr(32+2*mt,2)} op_sel:[0,1] op_sel_hi:[1,1]")
                    e(f"v_pk_fma_f32 {vr(a+2*p,2)}, {vr(a+2*p,2)}, {vr(32+2*mt,2)}, {vr(t,2)} op_sel_hi:[1,0,1]")
    e(f"s_cmp_eq_u32 s{s_wm1}, 0")
    e(f"s_cbranch_scc1 {name}_nosw")
    for i in range(24):
        e(f"v_swap_b32 v{ACC+i}, v{ACC+24+i}")
    lab(f"{name}_nosw")
    e(f"s_lshl_b32 s{s_t}, s{s_rt}, 7")
    e(f"s_lshl_b32 s{s_t2}, s{s_wm}, 5")
    e(f"s_add_u32 s{s_t}, s{s_t}, s{s_t2}")
    e(f"v_add_u32 v7, s{s_t}, v4")
    e(f"s_mov_b32 s{s_t}, 2752")
    e(f"v_mul_lo_u32 v7, v7, s{s_t}")
    e("v_lshl_add_u32 v7, v5, 3, v7")
    e(f"v_add_u32 v81, {16*2752}, v7")
    e(f"s_mul_i32 s29, s{s_cg}, 6")
    e(f"s_mul_i32 s{s_t}, s{s_wn}, 3")
    e(f"s_add_u32 s29, s29, s{s_t}")
    e("s_mov_b32 s30, 0xbfb8aa3b")
    for j in range(3):
        e(f"s_add_u32 s{s_t}, s29, {j}")
        e(f"s_cmp_ge_u32 s{s_t}, 86")
        e(f"s_cbranch_scc1 {name}_skip{j}")
        e(f"s_lshl_b32 s{s_t}, s{s_t}, 5")
        for mt in range(2):
            g = ACC + (mt*3+j)*4; u = ACC + ((2+mt)*3+j)*4
            for r in range(4): e(f"v_mul_f32 v{32+r}, s30, v{g+r}")
            for r in range(4): e(f"v_exp_f32 v{32+r}, v{32+r}")
            e("s_nop 0")
            for r in range(4): e(f"v_add_f32 v{32+r}, 1.0, v{32+r}")
            for r in range(4): e(f"v_rcp_f32 v{32+r}, v{32+r}")
            e("s_nop 0")
            for r in range(4): e(f"v_mul_f32 v{32+r}, v{32+r}, v{u+r}")
            e(f"v_cvt_pk_bf16_f32 v{36+2*mt}, v32, v33")
            e(f"v_cvt_pk_bf16_f32 v{37+2*mt}, v34, v35")
            e(f"buffer_store_dwordx2 {vr(36+2*mt,2)}, v{7 if mt == 0 else 81}, {sr(sO,4)}, s{s_t} offen")
        e("s_nop 1")
        lab(f"{name}_skip{j}")
    stamp(name)
    stamp_out(name)
    lab(f"{name}_done")
    e("s_endpgm")
    return name, 256, 512, 163840, 240

def gen_plain(mode):
    wo = mode == "wo"
    name = "k_wo_kernel" if wo else "k_down_kernel"
    MAPMODE = MAPS[mode]
    header(name)
    R = 4
    K = 512 if wo else 1376
    AS = 1024 if wo else 2752
    stages = [(k0, min(128, K - k0)) for k0 in range(0, K, 128)]
    S = len(stages)
    SLOT = 32768
    sA, sW, sR, sO = 8, 12, 16, 44
    s_wave, s_cg, s_rt, s_wm, s_wn, s_m0, s_ka, s_kw, s_t, s_t2 = 20, 21, 22, 23, 24, 25, 26, 27, 28, 29
    e(f"s_cmp_ge_u32 s2, 256")
    e(f"s_cbranch_scc1 {name}_done")
    stamp(name)
    e("s_load_dwordx2 s[32:33], s[0:1], 0")
    e("s_load_dwordx2 s[34:35], s[0:1], %d" % (16 if wo else 48))
    e("s_load_dwordx2 s[36:37], s[0:1], 56")
    e("s_load_dwordx2 s[40:41], s[0:1], 72")
    e("v_lshrrev_b32 v1, 6, v0")
    e("v_and_b32 v2, 63, v0")
    e("s_nop 0")
    e(f"v_readfirstlane_b32 s{s_wave}, v1")
    wgmap(s_cg, s_rt, MAPMODE)
    e(f"s_lshr_b32 s{s_wm}, s{s_wave}, 2")
    e(f"s_and_b32 s{s_wn}, s{s_wave}, 3")
    e("s_waitcnt lgkmcnt(0)")
    if wo:
        srd(sA, 40, 2048 * 1024, WS_O); srd(sW, 34, 512 * 1024)
        srd(sR, 32, 2048 * 1024); srd(sO, 40, 2048 * 1024, WS_H)
    else:
        srd(sA, 40, 2048 * 2752, WS_HM); srd(sW, 34, 1376 * 1024)
        srd(sR, 40, 2048 * 1024, WS_H); srd(sO, 36, 2048 * 1024)
    for i in range(2):
        e(f"s_lshl_b32 s{s_t}, s{s_wave}, 7")
        e(f"v_add_u32 v12, s{s_t}, v2")
        if i: e("v_add_u32 v12, 64, v12")
        e("v_lshrrev_b32 v13, 4, v12")
        e("v_and_b32 v14, 15, v12")
        e("v_and_b32 v15, 15, v13")
        e("v_xor_b32 v14, v14, v15")
        e(f"s_mov_b32 s{s_t}, {AS}")
        e(f"v_mul_lo_u32 v13, v13, s{s_t}")
        e(f"v_lshl_add_u32 v{8+i}, v14, 4, v13")
        e("v_lshrrev_b32 v13, 3, v12")
        e("v_and_b32 v14, 7, v12")
        e("v_bfe_u32 v15, v13, 1, 1")
        e("v_bfe_u32 v16, v13, 3, 1")
        e("v_lshl_or_b32 v15, v16, 1, v15")
        e("v_lshlrev_b32 v15, 1, v15")
        e("v_xor_b32 v14, v14, v15")
        e("v_lshlrev_b32 v13, 10, v13")
        e(f"v_lshl_add_u32 v{10+i}, v14, 4, v13")
    e(f"s_mul_i32 s{s_ka}, s{s_rt}, {64*AS}")
    e(f"s_lshl_b32 s{s_kw}, s{s_cg}, 7")
    e(f"s_lshl_b32 s{s_m0}, s{s_wave}, 11")
    VG = os.environ.get("VG", "") == "1" and wo
    def dma(st):
        slot = st % R
        if VG:
            for i in range(2):
                e(f"buffer_load_dwordx4 {vr(160+st*16+i*8,4)}, v{8+i}, {sr(sA,4)}, s{s_ka} offen")
                e(f"buffer_load_dwordx4 {vr(164+st*16+i*8,4)}, v{10+i}, {sr(sW,4)}, s{s_kw} offen")
            e(f"s_add_u32 s{s_ka}, s{s_ka}, 256")
            e(f"s_add_u32 s{s_kw}, s{s_kw}, {128*1024}")
            return
        for i in range(2):
            e(f"s_add_u32 m0, s{s_m0}, {slot*SLOT + i*1024}")
            e("s_nop 0")
            e(f"buffer_load_dwordx4 v{8+i}, {sr(sA,4)}, s{s_ka} offen {DFL} lds")
            e(f"s_add_u32 m0, s{s_m0}, {slot*SLOT + 16384 + i*1024}")
            e("s_nop 0")
            e(f"buffer_load_dwordx4 v{10+i}, {sr(sW,4)}, s{s_kw} offen {DFL} lds")
        e(f"s_add_u32 s{s_ka}, s{s_ka}, 256")
        e(f"s_add_u32 s{s_kw}, s{s_kw}, {128*1024}")
    D = int(os.environ.get("PD", "2"))
    D0 = int(os.environ.get("PD0", "2"))
    issued = min(D0, S)
    for st in range(issued): dma(st)
    e("v_and_b32 v4, 15, v2")
    e("v_lshrrev_b32 v5, 4, v2")
    e(f"v_lshl_add_u32 v140, v2, 4, s{s_m0}")
    e(f"v_add_u32 v141, {2*SLOT}, v140")
    e(f"s_lshl_b32 s{s_t}, s{s_rt}, 6")
    e(f"s_lshl_b32 s{s_t2}, s{s_wm}, 5")
    e(f"s_add_u32 s{s_t}, s{s_t}, s{s_t2}")
    e(f"v_add_u32 v6, s{s_t}, v4")
    e("v_lshlrev_b32 v6, 10, v6")
    e("v_lshl_add_u32 v6, v5, 3, v6")
    e(f"s_lshl_b32 s{s_t}, s{s_cg}, 7")
    e(f"s_lshl_b32 s{s_t2}, s{s_wn}, 5")
    e(f"s_add_u32 s30, s{s_t}, s{s_t2}")
    e("v_add_u32 v7, 16384, v6")
    e(f"buffer_load_dwordx2 v[136:137], v6, {sr(sR,4)}, s30 offen")
    e(f"buffer_load_dwordx2 v[138:139], v7, {sr(sR,4)}, s30 offen")
    e(f"s_lshl_b32 s{s_t}, s{s_wm}, 13")
    e("v_lshlrev_b32 v12, 8, v4")
    e(f"v_add_u32 v12, s{s_t}, v12")
    e("v_and_b32 v13, 3, v4")
    e("v_xor_b32 v13, v13, v5")
    e("v_lshrrev_b32 v14, 2, v4")
    for k in range(4):
        e(f"v_xor_b32 v15, {k}, v14")
        e("v_lshl_or_b32 v15, v15, 2, v13")
        e(f"v_lshl_add_u32 v{16+k}, v15, 4, v12")
        e(f"v_add_u32 v{20+k}, {2*SLOT}, v{16+k}")
    e("v_lshrrev_b32 v12, 2, v4")
    e("v_and_b32 v13, 3, v4")
    e("v_lshl_add_u32 v14, v5, 3, v12")
    e("v_lshlrev_b32 v14, 7, v14")
    e("v_lshl_add_u32 v14, v13, 3, v14")
    e("v_lshrrev_b32 v15, 1, v12")
    e("v_and_b32 v13, 1, v5")
    e("v_lshl_or_b32 v15, v13, 1, v15")
    e(f"v_xor_b32 v15, s{s_wn}, v15")
    e("v_lshl_add_u32 v24, v15, 5, v14")
    e("v_add_u32 v24, 16384, v24")
    e(f"v_add_u32 v25, {2*SLOT}, v24")
    ACC = 128
    for i in range(8): e(f"v_mov_b32 v{ACC+i}, 0")
    FS = [28, 76]
    def reads(st):
        base = FS[st & 1]; slot = st % R; hi = slot >= 2; so = (slot & 1) * SLOT
        for ks in range(stages[st][1] // 32):
            for mt in range(2):
                e(f"ds_read_b128 {vr(base+(ks*2+mt)*4,4)}, v{(20 if hi else 16)+ks} offset:{so+mt*4096}")
            for t2 in range(2):
                e(f"ds_read_b64_tr_b16 {vr(base+32+ks*4+t2*2,2)}, v{25 if hi else 24} offset:{so+ks*4096+t2*512}")
    def mfmas(st):
        base = FS[st & 1]
        for ks in range(stages[st][1] // 32):
            for mt in range(2):
                a = ACC + mt * 4
                e(f"v_mfma_f32_16x16x32_bf16 {vr(a,4)}, {vr(base+32+ks*4,4)}, {vr(base+(ks*2+mt)*4,4)}, {vr(a,4)}")
    for st in range(S):
        after = (issued - 1 - st) * 4 + (2 if st < min(D0, S) else 0)
        if VG:
            e(f"s_waitcnt vmcnt({after})")
            for i in range(2):
                e(f"ds_write_b128 v{140+(st>>1)}, {vr(160+st*16+i*8,4)} offset:{(st&1)*SLOT+i*1024}")
                e(f"ds_write_b128 v{140+(st>>1)}, {vr(164+st*16+i*8,4)} offset:{(st&1)*SLOT+16384+i*1024}")
        e(f"s_waitcnt vmcnt({after}) lgkmcnt(0)")
        e("s_barrier")
        if st in (0,1,2,3,5,8): stamp(name)
        B = chunks_of(capture(reads, st))
        while issued < S and issued <= st + D:
            B += chunks_of(capture(dma, issued)); issued += 1
        if st >= 1: interleave(capture(mfmas, st - 1), B)
        else:
            for c in B: L.extend(c)
    e("s_waitcnt vmcnt(0) lgkmcnt(0)")
    mfmas(S - 1)
    e("s_nop 7"); e("s_nop 1")
    for mt in range(2):
        a = ACC + mt*4; r = 136 + 2*mt
        e(f"v_lshlrev_b32 v12, 16, v{r}")
        e(f"v_and_b32 v13, 0xffff0000, v{r}")
        e(f"v_lshlrev_b32 v14, 16, v{r+1}")
        e(f"v_and_b32 v15, 0xffff0000, v{r+1}")
        for i in range(4): e(f"v_add_f32 v{12+i}, v{12+i}, v{a+i}")
        e(f"v_cvt_pk_bf16_f32 v{r}, v12, v13")
        e(f"v_cvt_pk_bf16_f32 v{r+1}, v14, v15")
        e(f"buffer_store_dwordx2 {vr(r,2)}, v{6+mt}, {sr(sO,4)}, s30 offen")
    stamp(name)
    stamp_out(name)
    lab(f"{name}_done")
    e("s_endpgm")
    return name, 256, 512, 131072, 224

def gen_attn():
    name = "k_attn_kernel"
    header(name)
    sWS, sO = 8, 12
    s_wave, s_head, s_qt, s_t, s_t2, s_kb, s_vb = 20, 21, 22, 23, 24, 25, 26
    e("s_cmp_ge_u32 s2, 512")
    e(f"s_cbranch_scc1 {name}_done")
    stamp(name)
    e("s_load_dwordx2 s[40:41], s[0:1], 72")
    PF = os.environ.get("PF", "1") == "1"
    if PF:
        e("s_load_dwordx2 s[42:43], s[0:1], 16")
        e("s_load_dwordx4 s[44:47], s[0:1], 32")
        e("s_load_dwordx2 s[48:49], s[0:1], 48")
    e("v_lshrrev_b32 v1, 6, v0")
    e("v_and_b32 v2, 63, v0")
    e("s_nop 0")
    e(f"v_readfirstlane_b32 s{s_wave}, v1")
    if os.environ.get("AM", "1") == "1":
        e(f"s_bfe_u32 s{s_head}, s2, 0x10002")
        e(f"s_lshl_b32 s{s_head}, s{s_head}, 4")
        e(f"s_lshr_b32 s{s_t}, s2, 5")
        e(f"s_add_u32 s{s_head}, s{s_head}, s{s_t}")
        e(f"s_and_b32 s{s_qt}, s2, 3")
        e(f"s_lshl_b32 s{s_qt}, s{s_qt}, 2")
        e(f"s_bfe_u32 s{s_t}, s2, 0x20003")
        e(f"s_add_u32 s{s_qt}, s{s_qt}, s{s_t}")
        e(f"s_lshl_b32 s{s_qt}, s{s_qt}, 3")
    else:
        e(f"s_lshr_b32 s{s_head}, s2, 4")
        e(f"s_and_b32 s{s_qt}, s2, 15")
        e(f"s_lshl_b32 s{s_qt}, s{s_qt}, 3")
    e("v_and_b32 v4, 15, v2")
    e("v_lshrrev_b32 v5, 4, v2")
    e("v_lshlrev_b32 v6, 5, v4")
    e("v_lshl_add_u32 v6, v5, 3, v6")
    e("v_lshlrev_b32 v7, 4, v2")
    e("s_waitcnt lgkmcnt(0)")
    srd(sWS, 40, 6 << 20)
    srd(sO, 40, 2048 * 1024, WS_O)
    e(f"s_lshl_b32 s{s_t}, s{s_head}, 16")
    e(f"s_lshl_b32 s{s_t2}, s{s_qt}, 9")
    e(f"s_add_u32 s{s_t2}, s{s_t2}, s{s_t}")
    QF, KF, SS = 8, 12, 48
    VF = KF
    T = 116
    e(f"s_lshl_b32 s{s_t}, s{s_wave}, 9")
    e(f"s_add_u32 s{s_t}, s{s_t2}, s{s_t}")
    e(f"buffer_load_dwordx2 {vr(QF,2)}, v6, {sr(sWS,4)}, s{s_t} offen")
    e(f"s_cmp_lt_u32 s{s_wave}, 4")
    e(f"s_mov_b32 s{s_vb}, {WS_VT-8192-12288}")
    e(f"s_cselect_b32 s{s_kb}, {32*65536-8192}, s{s_vb}")
    e(f"s_add_u32 s{s_kb}, s{s_kb}, s{s_t2}")
    e(f"s_mul_i32 s{s_vb}, s{s_wave}, 3072")
    e(f"s_add_u32 s{s_kb}, s{s_kb}, s{s_vb}")
    for i in range(3):
        e(f"s_add_u32 m0, s{s_vb}, {i*1024}")
        e("s_nop 0")
        e(f"buffer_load_dwordx4 v7, {sr(sWS,4)}, s{s_kb} offen lds")
        if i < 2: e(f"s_add_u32 s{s_kb}, s{s_kb}, 1024")
    e(f"s_add_u32 s{s_qt}, s{s_qt}, s{s_wave}")
    e(f"s_lshl_b32 s{s_t}, s{s_wave}, 9")
    e(f"v_add_u32 v10, s{s_t}, v6")
    e("v_lshlrev_b32 v7, 2, v5")
    e("v_sub_u32 v7, v7, v4")
    e("v_mov_b32 v3, 0xf149f2ca")
    e(f"s_cmp_lt_u32 s{s_wave}, 4")
    e(f"s_cbranch_scc1 {name}_w0")
    e("s_waitcnt vmcnt(3)")
    e(f"s_branch {name}_w1")
    lab(f"{name}_w0")
    e("s_waitcnt vmcnt(0)")
    lab(f"{name}_w1")
    e("s_barrier")
    stamp(name)
    for t in range(17):
        e(f"ds_read_b64 {vr(KF+2*t,2)}, v10 offset:{t*512}")
    for t in range(17):
        e(f"s_waitcnt lgkmcnt({min(15,16-t)})")
        e(f"v_mfma_f32_16x16x16_bf16 {vr(SS+4*t,4)}, {vr(KF+2*t,2)}, {vr(QF,2)}, 0")
    e("s_waitcnt vmcnt(0)")
    e("s_barrier")
    e("s_nop 4")
    for t in range(17):
        e(f"ds_read_b64 {vr(VF+2*t,2)}, v10 offset:{12288+t*512}")
    if PF:
        PFM = os.environ.get("PFM", "1")
        if PFM == "0":
            srd(52, 42, 512 * 1024); srd(56, 44, 512 * 2752); srd(60, 46, 512 * 2752); srd(64, 48, 1376 * 1024)
            e("s_lshr_b32 s50, s2, 3")
            e("s_lshl_b32 s50, s50, 3")
            e(f"s_add_u32 s50, s50, s{s_wave}")
            e("s_bfe_u32 s51, s2, 0x10002")
            e(f"s_lshl_b32 m0, s{s_wave}, 10")
            e("v_lshrrev_b32 v1, 5, v2")
            e("v_lshlrev_b32 v1, 10, v1")
            e("v_and_b32 v3, 31, v2")
            e("v_lshl_add_u32 v1, v3, 4, v1")
            e("v_mov_b32 v3, 0xf149f2ca")
            e("s_lshl_b32 s68, s50, 11")
            e("s_lshl_b32 s69, s51, 9")
            e("s_add_u32 s68, s68, s69")
            e("buffer_load_dwordx4 v1, s[52:55], s68 offen lds")
            e("s_mul_i32 s69, s50, 2752")
            e("s_mul_i32 s51, s51, 1536")
            e("s_add_u32 s69, s69, s51")
            e("v_lshlrev_b32 v1, 4, v2")
            e("buffer_load_dwordx4 v1, s[56:59], s69 offen lds")
            e("buffer_load_dwordx4 v1, s[60:63], s69 offen lds")
            e("s_add_u32 s69, s69, 1024")
            e("buffer_load_dwordx4 v1, s[56:59], s69 offen lds")
            e("buffer_load_dwordx4 v1, s[60:63], s69 offen lds")
            e("v_lshrrev_b32 v1, 5, v2")
            e("v_lshlrev_b32 v1, 10, v1")
            e("v_and_b32 v3, 31, v2")
            e("v_lshl_add_u32 v1, v3, 4, v1")
            e("v_mov_b32 v3, 0xf149f2ca")
            e("buffer_load_dwordx4 v1, s[64:67], s68 offen lds")
            e("s_add_u32 s68, s68, 0x100000")
            e("buffer_load_dwordx4 v1, s[64:67], s68 offen lds")
        elif PFM == "2":
            e("s_lshr_b32 s50, s2, 3")
            e("s_lshl_b32 s50, s50, 3")
            e(f"s_add_u32 s50, s50, s{s_wave}")
            e("s_bfe_u32 s51, s2, 0x10002")
            e(f"s_lshl_b32 m0, s{s_wave}, 10")
            e("s_cmp_ge_u32 s50, 256")
            e(f"s_cbranch_scc1 {name}_pf2")
            e("s_cmp_lt_u32 s50, 128")
            e("s_cselect_b32 s56, s44, s46")
            e("s_cselect_b32 s57, s45, s47")
            e(f"s_mov_b32 s58, {512*2752}")
            e("s_mov_b32 s59, 0x00020000")
            e("s_and_b32 s68, s50, 127")
            e("s_mul_i32 s68, s68, 11008")
            e("s_mul_i32 s69, s51, 1536")
            e("s_add_u32 s68, s68, s69")
            e("v_lshrrev_b32 v1, 4, v2")
            e("v_mul_u32_u24 v1, 2752, v1")
            e("v_and_b32 v3, 15, v2")
            e("v_mul_u32_u24 v3, 96, v3")
            e("v_add_u32 v1, v1, v3")
            e(f"s_branch {name}_pf3")
            lab(f"{name}_pf2")
            e("s_sub_u32 s50, s50, 256")
            e("s_cmp_lt_u32 s50, 86")
            e("s_cselect_b32 s56, s48, s42")
            e("s_cselect_b32 s57, s49, s43")
            e(f"s_mov_b32 s59, {512*1024}")
            e(f"s_cselect_b32 s58, {1376*1024}, s59")
            e("s_mov_b32 s59, 0x00020000")
            e("s_cselect_b32 s69, 0, 86")
            e("s_sub_u32 s68, s50, s69")
            e("s_lshl_b32 s68, s68, 14")
            e("s_lshl_b32 s69, s51, 9")
            e("s_add_u32 s68, s68, s69")
            e("v_lshrrev_b32 v1, 2, v2")
            e("v_lshlrev_b32 v1, 10, v1")
            e("v_and_b32 v3, 3, v2")
            e("v_lshl_add_u32 v1, v3, 7, v1")
            lab(f"{name}_pf3")
            e("v_mov_b32 v3, 0xf149f2ca")
            e("buffer_load_dword v1, s[56:59], s68 offen lds")
        else:
            e("s_lshr_b32 s50, s2, 3")
            e("s_lshl_b32 s50, s50, 3")
            e(f"s_add_u32 s50, s50, s{s_wave}")
            e("s_bfe_u32 s51, s2, 0x10002")
            e(f"s_lshl_b32 m0, s{s_wave}, 10")
            e("s_cmp_lt_u32 s50, 256")
            e("s_cselect_b32 s56, s44, s46")
            e("s_cselect_b32 s57, s45, s47")
            e(f"s_mov_b32 s58, {512*2752}")
            e("s_mov_b32 s59, 0x00020000")
            e("s_and_b32 s68, s50, 255")
            e("s_mul_i32 s68, s68, 5504")
            e("s_mul_i32 s69, s51, 1536")
            e("s_add_u32 s68, s68, s69")
            e("v_lshrrev_b32 v1, 5, v2")
            e("v_mul_u32_u24 v1, 2752, v1")
            e("v_and_b32 v3, 31, v2")
            e("v_mul_u32_u24 v3, 48, v3")
            e("v_add_u32 v1, v1, v3")
            e("buffer_load_dword v1, s[56:59], s68 offen lds")
            e("s_cmp_lt_u32 s50, 172")
            e("s_cselect_b32 s60, s48, s42")
            e("s_cselect_b32 s61, s49, s43")
            e(f"s_mov_b32 s63, {512*1024}")
            e(f"s_cselect_b32 s62, {1376*1024}, s63")
            e("s_mov_b32 s63, 0x00020000")
            e("s_cselect_b32 s69, 0, 172")
            e("s_sub_u32 s68, s50, s69")
            e("s_lshl_b32 s68, s68, 13")
            e("s_lshl_b32 s69, s51, 9")
            e("s_add_u32 s68, s68, s69")
            e("v_lshrrev_b32 v1, 3, v2")
            e("v_lshlrev_b32 v1, 10, v1")
            e("v_and_b32 v3, 7, v2")
            e("v_lshl_add_u32 v1, v3, 6, v1")
            e("v_mov_b32 v3, 0xf149f2ca")
            e("s_cmp_ge_u32 s50, 236")
            e(f"s_cbranch_scc1 {name}_nopf")
            e("buffer_load_dword v1, s[60:63], s68 offen lds")
            lab(f"{name}_nopf")
        if os.environ.get("CP", "0") == "1":
            e("s_cmp_ge_u32 s50, 15")
            e(f"s_cbranch_scc1 {name}_nocp")
            e("s_getpc_b64 s[68:69]")
            lab(f"{name}_pc")
            e(f"s_add_u32 s68, s68, k_wo_kernel-{name}_pc")
            e("s_addc_u32 s69, s69, 0")
            e("s_lshl_b32 s51, s50, 10")
            e("v_lshlrev_b32 v1, 4, v2")
            e("v_add_u32 v1, s51, v1")
            e("v_min_u32 v1, k_end_label-k_wo_kernel-16, v1")
            e("global_load_lds_dwordx4 v1, s[68:69]")
            lab(f"{name}_nocp")
    stamp(name)
    for r in range(4):
        e(f"v_add_u32 v1, {r}, v7")
        e("v_cmp_lt_i32 vcc, 0, v1")
        e("s_nop 1")
        e(f"v_cndmask_b32 v{SS+r}, v3, v{SS+r}, vcc")
        e(f"v_cndmask_b32 v{SS+64+r}, v{SS+64+r}, v3, vcc")
    for t in range(16):
        e(f"s_cmp_ge_u32 s{s_qt}, {16-t}")
        e(f"s_cbranch_scc1 {name}_m{t}")
        for r in range(4): e(f"v_mov_b32 v{SS+4*t+r}, v3")
        lab(f"{name}_m{t}")
    e(f"v_max3_f32 v{T}, v{SS}, v{SS+1}, v{SS+2}")
    e(f"v_max3_f32 v{T+1}, v{SS+3}, v{SS+4}, v{SS+5}")
    i = 6
    while i + 3 < 68:
        e(f"v_max3_f32 v{T}, v{T}, v{SS+i}, v{SS+i+1}")
        e(f"v_max3_f32 v{T+1}, v{T+1}, v{SS+i+2}, v{SS+i+3}")
        i += 4
    assert i == 66
    e(f"v_max3_f32 v{T}, v{T}, v{SS+66}, v{SS+67}")
    e(f"v_max_f32 v{T}, v{T}, v{T+1}")
    e(f"v_xor_b32 v{T+2}, 16, v2"); e(f"v_lshlrev_b32 v{T+2}, 2, v{T+2}")
    e(f"v_xor_b32 v{T+3}, 32, v2"); e(f"v_lshlrev_b32 v{T+3}, 2, v{T+3}")
    for a in (T+2, T+3):
        e(f"ds_bpermute_b32 v{T+1}, v{a}, v{T}")
        e("s_waitcnt lgkmcnt(0)")
        e(f"v_max_f32 v{T}, v{T}, v{T+1}")
    e("s_mov_b32 s30, 0x3eb8aa3b")
    e(f"v_mul_f32 v{T}, s30, v{T}")
    e(f"v_sub_f32 v{T}, 0, v{T}")
    e(f"v_mov_b32 v{T+4}, s30")
    for i in range(68):
        e(f"v_fma_f32 v{SS+i}, v{SS+i}, v{T+4}, v{T}")
    for i in range(68):
        e(f"v_exp_f32 v{SS+i}, v{SS+i}")
    e("s_nop 0")
    e(f"v_pk_add_f32 {vr(T+6,2)}, {vr(SS,2)}, {vr(SS+2,2)}")
    e(f"v_pk_add_f32 {vr(T+8,2)}, {vr(SS+4,2)}, {vr(SS+6,2)}")
    for i in range(8, 68, 4):
        e(f"v_pk_add_f32 {vr(T+6,2)}, {vr(T+6,2)}, {vr(SS+i,2)}")
        e(f"v_pk_add_f32 {vr(T+8,2)}, {vr(T+8,2)}, {vr(SS+i+2,2)}")
    e(f"v_pk_add_f32 {vr(T+6,2)}, {vr(T+6,2)}, {vr(T+8,2)}")
    e(f"v_add_f32 v{T+6}, v{T+6}, v{T+7}")
    for p in range(9):
        for h in range(4 if p < 8 else 2):
            e(f"v_cvt_pk_bf16_f32 v{SS+8*p+h}, v{SS+8*p+2*h}, v{SS+8*p+2*h+1}")
    for a in (T+2, T+3):
        e(f"ds_bpermute_b32 v{T+7}, v{a}, v{T+6}")
        e("s_waitcnt lgkmcnt(0)")
        e(f"v_add_f32 v{T+6}, v{T+6}, v{T+7}")
    e(f"v_rcp_f32 v{T}, v{T+6}")
    stamp(name)
    O1, O2 = 120, 124
    e(f"v_mfma_f32_16x16x16_bf16 {vr(O1,4)}, {vr(VF+32,2)}, {vr(SS+64,2)}, 0")
    e(f"v_mfma_f32_16x16x32_bf16 {vr(O2,4)}, {vr(VF,4)}, {vr(SS,4)}, 0")
    for p in range(1, 8):
        a = O1 if p & 1 else O2
        if p == 1:
            e("s_nop 7")
        e(f"v_mfma_f32_16x16x32_bf16 {vr(a,4)}, {vr(VF+4*p,4)}, {vr(SS+8*p,4)}, {vr(a,4)}")
    e("s_nop 7"); e("s_nop 1")
    for r in range(4):
        e(f"v_add_f32 v{O1+r}, v{O1+r}, v{O2+r}")
    for r in range(4):
        e(f"v_mul_f32 v{O1+r}, v{O1+r}, v{T}")
    e(f"v_cvt_pk_bf16_f32 v160, v{O1}, v{O1+1}".replace("v160", f"v{O1}"))
    e(f"v_cvt_pk_bf16_f32 v{O1+1}, v{O1+2}, v{O1+3}")
    e("v_lshlrev_b32 v7, 10, v4")
    e("v_lshl_add_u32 v7, v5, 3, v7")
    e(f"s_lshl_b32 s{s_t}, s{s_qt}, 14")
    e(f"s_lshl_b32 s{s_t2}, s{s_head}, 5")
    e(f"s_add_u32 s{s_t}, s{s_t}, s{s_t2}")
    e(f"buffer_store_dwordx2 v[120:121], v7, {sr(sO,4)}, s{s_t} offen")
    e("s_waitcnt vmcnt(0)")
    stamp(name)
    stamp_out(name)
    lab(f"{name}_done")
    e("s_endpgm")
    return name, 512, 512, 24576, 128

def main():
    kernels = []
    RAW = os.environ.get("RAW", "00")
    kernels.append((gen_ln_gemm2 if RAW[0] == "1" else gen_ln_gemm)("qkv"))
    kernels.append(gen_attn())
    kernels.append(gen_plain("wo"))
    if RAW[1] == "3": kernels.append(gen_gu3())
    else: kernels.append((gen_ln_gemm2 if RAW[1] == "1" else gen_ln_gemm)("gu"))
    kernels.append(gen_plain("down"))
    out = []
    src = open("cdna_kernels/%s.s.ref" % NAME).read().split("\n")
    for ln in src:
        if ln.startswith("; Override"): break
        out.append(ln)
    for (n, g, b, lds, vg) in kernels:
        out.append(f"; @launch kernel={n} grid=({g},1,1) block=({b},1,1) lds={lds}")
    out.append('.amdgcn_target "amdgcn-amd-amdhsa--gfx950"')
    out += L
    out.append("k_end_label:")
    out.append('.section .rodata,"a"')
    for (n, g, b, lds, vg) in kernels:
        out.append(".p2align 6")
        out.append(f".amdhsa_kernel {n}")
        out.append(f"  .amdhsa_next_free_vgpr {vg}")
        out.append("  .amdhsa_next_free_sgpr 102")
        out.append(f"  .amdhsa_accum_offset {vg}")
        out.append("  .amdhsa_group_segment_fixed_size 0")
        out.append("  .amdhsa_kernarg_size 80")
        out.append("  .amdhsa_user_sgpr_count 2")
        out.append("  .amdhsa_user_sgpr_kernarg_segment_ptr 1")
        out.append("  .amdhsa_system_sgpr_workgroup_id_x 1")
        out.append(".end_amdhsa_kernel")
    open("cdna_kernels/%s.s" % NAME, "w").write("\n".join(out) + "\n")

if __name__ == "__main__":
    main()
```

```python
import sys
NAME = "sequential_preLN__sliding_block__glu_gated_glu__prompt"
WS_QK, WS_VT, WS_O, WS_H, WS_HM = 0, 4 << 20, 6 << 20, 8 << 20, 10 << 20
WS_SIZE = 268435456
L = []
MAPS = dict(qkv="4x2", wo="4x2", gu="4x2", down="4x2")
import os
for _k in MAPS:
    if os.environ.get("MAP_"+_k): MAPS[_k] = os.environ["MAP_"+_k]
def e(s): L.append("    " + s)
def lab(s): L.append(s + ":")
def cmt(s): L.append("    ; " + s)
def vr(a, n=1): return f"v{a}" if n == 1 else f"v[{a}:{a+n-1}]"
def sr(a, n=1): return f"s{a}" if n == 1 else f"s[{a}:{a+n-1}]"

def srd(d, ptr, nbytes, add=0):
    if add:
        e(f"s_add_u32 s{d}, s{ptr}, {add}")
        e(f"s_addc_u32 s{d+1}, s{ptr+1}, 0")
    else:
        e(f"s_mov_b32 s{d}, s{ptr}")
        e(f"s_mov_b32 s{d+1}, s{ptr+1}")
    e(f"s_mov_b32 s{d+2}, {nbytes}")
    e(f"s_mov_b32 s{d+3}, 0x00020000")

def wgmap(s_cg, s_rt, m):
    if m == "cols":
        e(f"s_and_b32 s{s_cg}, s2, 7")
        e(f"s_lshr_b32 s{s_rt}, s2, 3")
    elif m == "rows":
        e(f"s_and_b32 s{s_rt}, s2, 7")
        e(f"s_lshl_b32 s{s_rt}, s{s_rt}, 2")
        e(f"s_bfe_u32 s{s_cg}, s2, 0x20003")
        e(f"s_add_u32 s{s_rt}, s{s_rt}, s{s_cg}")
        e(f"s_lshr_b32 s{s_cg}, s2, 5")
    elif m == "4x2":
        e(f"s_and_b32 s{s_rt}, s2, 3")
        e(f"s_lshl_b32 s{s_rt}, s{s_rt}, 3")
        e(f"s_bfe_u32 s{s_cg}, s2, 0x30003")
        e(f"s_add_u32 s{s_rt}, s{s_rt}, s{s_cg}")
        e(f"s_bfe_u32 s{s_cg}, s2, 0x10002")
        e(f"s_lshl_b32 s{s_cg}, s{s_cg}, 2")
        e(f"s_lshr_b32 s100, s2, 6")
        e(f"s_add_u32 s{s_cg}, s{s_cg}, s100")
    elif m == "rows2":
        e(f"s_and_b32 s{s_rt}, s2, 3")
        e(f"s_lshl_b32 s{s_rt}, s{s_rt}, 3")
        e(f"s_bfe_u32 s{s_cg}, s2, 0x10002")
        e(f"s_lshl_b32 s{s_cg}, s{s_cg}, 2")
        e(f"s_add_u32 s{s_rt}, s{s_rt}, s{s_cg}")
        e(f"s_bfe_u32 s{s_cg}, s2, 0x20003")
        e(f"s_add_u32 s{s_rt}, s{s_rt}, s{s_cg}")
        e(f"s_lshr_b32 s{s_cg}, s2, 5")
    elif m == "2d":
        e(f"s_and_b32 s{s_rt}, s2, 1")
        e(f"s_lshl_b32 s{s_rt}, s{s_rt}, 4")
        e(f"s_bfe_u32 s{s_cg}, s2, 0x40003")
        e(f"s_add_u32 s{s_rt}, s{s_rt}, s{s_cg}")
        e(f"s_bfe_u32 s{s_cg}, s2, 0x20001")
        e(f"s_lshl_b32 s{s_cg}, s{s_cg}, 1")
        e(f"s_lshr_b32 s100, s2, 7")
        e(f"s_add_u32 s{s_cg}, s{s_cg}, s100")

import os
STAMP = os.environ.get("STAMP", "")
DFL = os.environ.get("DFL", "")
PDL = int(os.environ.get("PDL", "2"))
NST = [0]
def stamp(kn):
    if STAMP != kn: return
    i = NST[0]; NST[0] += 1
    e(f"s_memtime s[{70+2*i}:{71+2*i}]")
def stamp_out(kn, wg=37):
    if STAMP != kn: return
    e("s_waitcnt lgkmcnt(0) vmcnt(0)")
    e(f"s_cmp_lg_u32 s2, {wg}")
    e(f"s_cbranch_scc1 {kn}_nost")
    e("s_load_dwordx2 s[96:97], s[0:1], 64")
    e("v_lshrrev_b32 v1, 6, v0")
    e("v_lshlrev_b32 v1, 5, v1")
    e("s_waitcnt lgkmcnt(0)")
    for i in range(min(8, NST[0])):
        e(f"s_sub_u32 s98, s{70+2*i}, s70")
        e(f"v_mov_b32 v2, s98")
        e(f"global_store_dword v1, v2, s[96:97] offset:{4*i}")
    lab(f"{kn}_nost")

def capture(fn, *a):
    global L
    old = L; L = []
    fn(*a)
    r = L; L = old
    return r
def chunks_of(lines):
    out = []; i = 0
    while i < len(lines):
        if "m0" in lines[i]:
            out.append(lines[i:i+3]); i += 3
        else:
            out.append([lines[i]]); i += 1
    return out
def interleave(A, B):
    global L
    n = len(A); m = len(B); j = 0
    for i, a in enumerate(A):
        L.append(a)
        tgt = (i + 1) * m // n
        while j < tgt:
            L += B[j]; j += 1
    while j < m:
        L += B[j]; j += 1

def header(name):
    L.append(".text")
    L.append(f".globl {name}")
    L.append(".p2align 8")
    L.append(f".type {name},@function")
    lab(name)

for p in range(768):
    assert (p * 2731) >> 16 == p // 24

def gen_ln_gemm(mode):
    qkv = mode == "qkv"
    name = "k_qkv_kernel" if qkv else "k_gu_kernel"
    MAPMODE = MAPS[mode]
    header(name)
    R = 4; S = 8 if qkv else 16
    HL = qkv and os.environ.get("HL", "0") == "1"
    WROW = 3072 if qkv else 2752
    KADV = (64 if qkv else 32) * WROW
    XB = 0; WB = 65536; SLOT = 24576
    XR = 176; RS = 208
    sX, sW, sO = 8, 12, 16
    s_wave, s_cg, s_rt, s_wm, s_wn, s_m0, s_k, s_t, s_t2 = 20, 21, 22, 23, 24, 25, 26, 27, 28
    e(f"s_cmp_ge_u32 s2, 256")
    e(f"s_cbranch_scc1 {name}_done")
    stamp(name)
    e("s_load_dwordx4 s[32:35], s[0:1], 0")
    e("s_load_dwordx4 s[36:39], s[0:1], 32")
    e("s_load_dwordx2 s[40:41], s[0:1], 72")
    e("v_lshrrev_b32 v1, 6, v0")
    e("v_and_b32 v2, 63, v0")
    e("s_nop 0")
    e(f"v_readfirstlane_b32 s{s_wave}, v1")
    wgmap(s_cg, s_rt, MAPMODE)
    e(f"s_lshr_b32 s{s_wm}, s{s_wave}, 2")
    e(f"s_and_b32 s{s_wn}, s{s_wave}, 3")
    e("s_waitcnt lgkmcnt(0)")
    if qkv:
        srd(sX, 32, 2048 * 1024)
        srd(sW, 34, 512 * 3072)
        srd(sO, 40, 6 << 20)
    else:
        srd(sX, 40, 2048 * 1024, WS_H)
        e(f"s_cmp_eq_u32 s{s_wm}, 0")
        e("s_cselect_b32 s42, s36, s38")
        e("s_cselect_b32 s43, s37, s39")
        srd(sW, 42, 512 * 2752)
        srd(sO, 40, 2048 * 2752, WS_HM)
    TP = os.environ.get("TP", "0") == "1" and qkv
    if TP:
        e("s_lshr_b32 s44, s2, 3")
        e("s_lshl_b32 s44, s44, 3")
        e(f"s_add_u32 s44, s44, s{s_wave}")
        e("s_mul_i32 s44, s44, 6144")
        e("s_bfe_u32 s45, s2, 0x10002")
        e("s_mul_i32 s45, s45, 1536")
        e("s_add_u32 s44, s44, s45")
        e("v_lshrrev_b32 v3, 5, v2")
        e("v_mul_u32_u24 v3, 3072, v3")
        e("v_and_b32 v4, 31, v2")
        e("v_mul_u32_u24 v4, 48, v4")
        e("v_add_u32 v236, v3, v4")
    G1 = qkv and os.environ.get("PFM", "1") == "4"
    if G1:
        srd(48, 36, 512 * 2752)
        e("s_lshr_b32 s47, s2, 3")
        e("s_lshl_b32 s47, s47, 3")
        e(f"s_add_u32 s47, s47, s{s_wave}")
        e("s_mul_i32 s47, s47, 5504")
        e("s_bfe_u32 s52, s2, 0x10002")
        e("s_mul_i32 s52, s52, 1536")
        e("s_add_u32 s47, s47, s52")
        e("v_lshrrev_b32 v3, 5, v2")
        e("v_mul_u32_u24 v3, 2752, v3")
        e("v_and_b32 v4, 31, v2")
        e("v_mul_u32_u24 v4, 48, v4")
        e("v_add_u32 v237, v3, v4")
    e("v_lshrrev_b32 v4, 3, v2")
    e("v_and_b32 v5, 7, v2")
    e(f"s_lshl_b32 s{s_t}, s{s_wave}, 3")
    e(f"v_add_u32 v6, s{s_t}, v4")
    e("v_lshlrev_b32 v3, 10, v6")
    e("v_lshl_add_u32 v3, v5, 4, v3")
    e(f"s_lshl_b32 s{s_t}, s{s_rt}, 16")
    for i in range(8):
        e(f"buffer_load_dwordx4 {vr(XR+4*i,4)}, v3, {sr(sX,4)}, s{s_t} offen offset:{i*128}")
    e(f"s_mul_i32 s{s_t2}, s{s_wn}, 192")
    for i in range(3):
        e(f"v_add_u32 v11, s{s_t2}, v2")
        if i: e(f"v_add_u32 v11, {i*64}, v11")
        e("v_mul_u32_u24 v12, 2731, v11")
        e("v_lshrrev_b32 v12, 16, v12")
        e("v_mul_u32_u24 v13, 24, v12")
        e("v_sub_u32 v13, v11, v13")
        e("v_bfe_u32 v14, v12, 1, 1")
        e("v_bfe_u32 v15, v12, 3, 1")
        e("v_lshl_or_b32 v14, v15, 1, v14")
        e("v_lshlrev_b32 v14, 1, v14")
        if not os.environ.get("NOSWZ"): e("v_xor_b32 v13, v13, v14")
        e(f"s_mov_b32 s{s_t}, {WROW}")
        e(f"v_mul_lo_u32 v12, v12, s{s_t}")
        if HL:
            e("v_lshrrev_b32 v14, 3, v13")
            e("v_and_b32 v13, 7, v13")
            e("v_lshl_add_u32 v12, v14, 10, v12")
        e(f"v_lshl_add_u32 v{8+i}, v13, 4, v12")
    e(f"s_mul_i32 s{s_k}, s{s_cg}, {128 if HL else 384}")
    if qkv:
        e(f"s_mul_i32 s{s_t}, s{s_wm}, {32*3072}")
        e(f"s_add_u32 s{s_k}, s{s_k}, s{s_t}")
    e(f"s_mul_i32 s{s_m0}, s{s_wave}, 3072")
    e(f"s_add_u32 s{s_m0}, s{s_m0}, {WB}")
    def dma(st):
        slot = st % R
        for i in range(3):
            e(f"s_add_u32 m0, s{s_m0}, {slot*SLOT + i*1024}")
            e("s_nop 0")
            e(f"buffer_load_dwordx4 v{8+i}, {sr(sW,4)}, s{s_k} offen {DFL} lds")
        e(f"s_add_u32 s{s_k}, s{s_k}, {KADV}")
    dma(0)
    if TP:
        e(f"buffer_load_dword v224, v236, {sr(sW,4)}, s44 offen")
    e("v_mov_b32 v28, v4"); e("v_mov_b32 v29, v5"); e("v_mov_b32 v30, v6")
    e("v_and_b32 v4, 15, v2")
    e("v_lshrrev_b32 v5, 4, v2")
    e(f"s_lshl_b32 s{s_t}, s{s_wm}, 15")
    e("v_lshlrev_b32 v6, 10, v4")
    e(f"v_add_u32 v6, s{s_t}, v6")
    e("v_and_b32 v7, 3, v4")
    e("v_xor_b32 v7, v7, v5")
    e("v_lshrrev_b32 v11, 2, v4")
    for k in range(4):
        e(f"v_xor_b32 v12, {k}, v11")
        e("v_lshl_or_b32 v12, v12, 2, v7")
        e(f"v_lshl_add_u32 v{24+k}, v12, 4, v6")
    e("v_lshrrev_b32 v11, 2, v4")
    e("v_and_b32 v12, 3, v4")
    e("v_lshl_add_u32 v13, v5, 3, v11")
    e("v_mul_u32_u24 v13, 384, v13")
    e("v_lshl_add_u32 v13, v12, 3, v13")
    e(f"v_add_u32 v13, {WB}, v13")
    e("v_lshrrev_b32 v14, 1, v11")
    e("v_and_b32 v15, 1, v5")
    e("v_lshl_or_b32 v14, v15, 1, v14")
    e(f"s_mul_i32 s{s_t}, s{s_wn}, 3")
    for j in range(3):
        e(f"s_add_u32 s{s_t2}, s{s_t}, {j}")
        e(f"v_xor_b32 v15, s{s_t2}, v14")
        e(f"v_lshl_add_u32 v{16+j}, v15, 5, v13")
        e(f"v_add_u32 v{19+j}, {2*SLOT}, v{16+j}")
    ACC = 128
    NACC = 6 if qkv else 12
    for i in range(NACC * 4):
        e(f"v_mov_b32 v{ACC+i}, 0")
    e(f"s_waitcnt vmcnt({4 if TP else 3})")
    stamp(name)
    e(f"s_mov_b32 s31, 0x3f803f80")
    e(f"v_dot2_f32_bf16 v{RS+6}, v{XR}, s31, 0")
    e(f"v_dot2_f32_bf16 v{RS+7}, v{XR+1}, s31, 0")
    e(f"v_dot2_f32_bf16 v{RS+8}, v{XR}, v{XR}, 0")
    e(f"v_dot2_f32_bf16 v{RS+9}, v{XR+1}, v{XR+1}, 0")
    for i in range(2, 32, 2):
        e(f"v_dot2_f32_bf16 v{RS+6}, v{XR+i}, s31, v{RS+6}")
        e(f"v_dot2_f32_bf16 v{RS+7}, v{XR+i+1}, s31, v{RS+7}")
        e(f"v_dot2_f32_bf16 v{RS+8}, v{XR+i}, v{XR+i}, v{RS+8}")
        e(f"v_dot2_f32_bf16 v{RS+9}, v{XR+i+1}, v{XR+i+1}, v{RS+9}")
    e(f"s_nop 3")
    e(f"v_add_f32 v{RS+6}, v{RS+6}, v{RS+7}")
    e(f"v_add_f32 v{RS+8}, v{RS+8}, v{RS+9}")
    for ctl in ("quad_perm:[1,0,3,2]", "quad_perm:[2,3,0,1]", "row_half_mirror"):
        e(f"s_nop 1")
        e(f"v_add_f32_dpp v{RS+6}, v{RS+6}, v{RS+6} {ctl} row_mask:0xf bank_mask:0xf")
        e(f"v_add_f32_dpp v{RS+8}, v{RS+8}, v{RS+8} {ctl} row_mask:0xf bank_mask:0xf")
    dma(1)
    e(f"v_mul_f32 v{RS+6}, 0x3b000000, v{RS+6}")
    e(f"v_mul_f32 v{RS+8}, 0x3b000000, v{RS+8}")
    e(f"v_fma_f32 v{RS+8}, -v{RS+6}, v{RS+6}, v{RS+8}")
    e(f"v_max_f32 v{RS+8}, 0, v{RS+8}")
    e(f"v_add_f32 v{RS+8}, 0x3727c5ac, v{RS+8}")
    e(f"v_rsq_f32 v{RS}, v{RS+8}")
    e(f"s_nop 0")
    e(f"v_mul_f32 v{RS+1}, v{RS+6}, v{RS}")
    e(f"v_sub_f32 v{RS+1}, 0, v{RS+1}")
    e(f"v_xor_b32 v{RS+10}, v28, v29")
    e(f"s_and_b32 s{s_t}, s{s_wave}, 1")
    e(f"s_lshl_b32 s{s_t}, s{s_t}, 3")
    e(f"v_add_u32 v{RS+11}, s{s_t}, v{RS+10}")
    e(f"s_xor_b32 s{s_t}, s{s_t}, 8")
    e(f"v_add_u32 v{RS+12}, s{s_t}, v{RS+10}")
    e(f"v_lshlrev_b32 v{RS+2}, 10, v30")
    e(f"v_lshl_add_u32 v{RS+3}, v{RS+12}, 4, v{RS+2}")
    e(f"v_lshl_add_u32 v{RS+2}, v{RS+11}, 4, v{RS+2}")
    def norm(i):
        for r in range(4):
            x = XR + 4*i + r
            e(f"v_lshlrev_b32 v{RS+4}, 16, v{x}")
            e(f"v_and_b32 v{RS+5}, 0xffff0000, v{x}")
            e(f"v_fma_f32 v{RS+4}, v{RS+4}, v{RS}, v{RS+1}")
            e(f"v_fma_f32 v{RS+5}, v{RS+5}, v{RS}, v{RS+1}")
            e(f"v_cvt_pk_bf16_f32 v{x}, v{RS+4}, v{RS+5}")
        e(f"ds_write_b128 v{RS+2+(i&1)}, {vr(XR+4*i,4)} offset:{XB+(i>>1)*256}")
    norm(0); norm(1)
    stamp(name)
    FS = [32, 80]
    def reads(st):
        base = FS[st & 1]; slot = st % R
        wa = 16 if slot < 2 else 19; so = (slot & 1) * SLOT
        nk = 2 if qkv else 1
        for kk in range(nk):
            ks = st * nk + kk
            for mt in range(2):
                e(f"ds_read_b128 {vr(base+(kk*2+mt)*4,4)}, v{24+(ks&3)} offset:{XB+(ks>>2)*256+mt*16384}")
        for b in range(2):
            for j in range(3):
                for t2 in range(2):
                    e(f"ds_read_b64_tr_b16 {vr(base+16+(b*3+j)*4+t2*2,2)}, v{wa+j} offset:{so+b*12288+t2*1536}")
    def mfmas(st):
        base = FS[st & 1]
        for b in range(2):
            for j in range(3):
                for mt in range(2):
                    if qkv: a = ACC + (mt*3+j)*4; x = base + (b*2+mt)*4
                    else:   a = ACC + ((b*2+mt)*3+j)*4; x = base + mt*4
                    e(f"v_mfma_f32_16x16x32_bf16 {vr(a,4)}, {vr(base+16+(b*3+j)*4,4)}, {vr(x,4)}, {vr(a,4)}")
    issued = 2
    for st in range(S):
        e(f"s_waitcnt vmcnt({(issued-1-st)*3 + (1 if (TP and st == 0) else 0)}) lgkmcnt(0)")
        e("s_barrier")
        if st in (0, 1, 2, 4, 6, S-1): stamp(name)
        B = chunks_of(capture(reads, st)) if not (os.environ.get("NORD") and st > 1) else []
        while issued < S and issued <= st + PDL:
            if not os.environ.get("NODMA"): B += chunks_of(capture(dma, issued))
            issued += 1
        if G1 and st == int(os.environ.get("G1S", "3")): B += [["    buffer_load_dword v224, v237, s[48:51], s47 offen"]]
        if qkv:
            if st + 2 < 8: B += chunks_of(capture(norm, st + 2))
        else:
            if st % 2 == 0 and st // 2 + 2 < 8: B += chunks_of(capture(norm, st // 2 + 2))
        if st >= 1: interleave(capture(mfmas, st - 1), B)
        else:
            for c in B: L.extend(c)
    e("s_waitcnt lgkmcnt(0)")
    mfmas(S - 1)
    e("s_barrier")
    stamp(name)
    e("v_lshlrev_b32 v6, 5, v4")
    e("v_lshl_add_u32 v6, v5, 3, v6")
    if qkv:
        e(f"s_lshl_b32 s{s_t}, s{s_wave}, 9")
        e(f"v_add_u32 v7, s{s_t}, v6")
        e("v_lshrrev_b32 v11, 2, v4")
        e("v_and_b32 v12, 3, v4")
        e("v_lshl_add_u32 v11, v5, 2, v11")
        e("v_lshlrev_b32 v11, 5, v11")
        e("v_lshl_add_u32 v11, v12, 3, v11")
        e(f"v_add_u32 v11, s{s_t}, v11")
        if HL:
            e(f"s_mul_i32 s29, s{s_wn}, 3")
            e(f"s_lshl_b32 s46, s{s_cg}, 2")
        else:
            e(f"s_mul_i32 s29, s{s_cg}, 12")
            e(f"s_mul_i32 s{s_t}, s{s_wn}, 3")
            e(f"s_add_u32 s29, s29, s{s_t}")
        e(f"s_lshl_b32 s30, s{s_rt}, 2")
        e(f"s_lshl_b32 s{s_t}, s{s_wm}, 1")
        e(f"s_add_u32 s30, s30, s{s_t}")
        e("s_nop 4")
        for j in range(3):
            for mt in range(2):
                a = ACC + (mt*3+j)*4
                e(f"v_cvt_pk_bf16_f32 v32, v{a}, v{a+1}")
                e(f"v_cvt_pk_bf16_f32 v33, v{a+2}, v{a+3}")
                e(f"s_add_u32 s{s_t}, s29, {j}")
                if HL:
                    e(f"s_lshr_b32 s{s_t2}, s{s_t}, 2")
                    e(f"s_lshl_b32 s{s_t2}, s{s_t2}, 5")
                    e(f"s_and_b32 s{s_t}, s{s_t}, 3")
                    e(f"s_add_u32 s{s_t}, s{s_t}, s{s_t2}")
                    e(f"s_add_u32 s{s_t}, s{s_t}, s46")
                e(f"s_add_u32 s{s_t2}, s30, {mt}")
                e(f"s_cmp_ge_u32 s{s_t}, 64")
                e(f"s_cbranch_scc1 {name}_v{j}{mt}")
                e(f"s_lshl_b32 s{s_t}, s{s_t}, 16")
                e(f"s_lshl_b32 s{s_t2}, s{s_t2}, 9")
                e(f"s_add_u32 s{s_t}, s{s_t}, s{s_t2}")
                e(f"buffer_store_dwordx2 v[32:33], v6, {sr(sO,4)}, s{s_t} offen")
                e(f"s_branch {name}_n{j}{mt}")
                lab(f"{name}_v{j}{mt}")
                e("ds_write_b64 v7, v[32:33]")
                e("s_waitcnt lgkmcnt(0)")
                e("ds_read_b64_tr_b16 v[34:35], v11")
                e(f"s_sub_u32 s{s_t}, s{s_t}, 64")
                e(f"s_lshl_b32 s{s_t}, s{s_t}, 16")
                e(f"s_lshl_b32 s{s_t2}, s{s_t2}, 9")
                e(f"s_add_u32 s{s_t}, s{s_t}, s{s_t2}")
                e(f"s_add_u32 s{s_t}, s{s_t}, {WS_VT}")
                e("s_waitcnt lgkmcnt(0)")
                e(f"buffer_store_dwordx2 v[34:35], v6, {sr(sO,4)}, s{s_t} offen")
                lab(f"{name}_n{j}{mt}")
                e("s_nop 1")
    else:
        e(f"s_lshl_b32 s{s_t}, s{s_rt}, 6")
        e(f"s_lshl_b32 s{s_t2}, s{s_wm}, 5")
        e(f"s_add_u32 s{s_t}, s{s_t}, s{s_t2}")
        e(f"v_add_u32 v7, s{s_t}, v4")
        e(f"s_mov_b32 s{s_t}, 2752")
        e(f"v_mul_lo_u32 v7, v7, s{s_t}")
        e("v_lshl_add_u32 v7, v5, 3, v7")
        e(f"s_mul_i32 s29, s{s_cg}, 12")
        e(f"s_mul_i32 s{s_t}, s{s_wn}, 3")
        e(f"s_add_u32 s29, s29, s{s_t}")
        e("s_mov_b32 s30, 0xbfb8aa3b")
        e("s_nop 4")
        for j in range(3):
            e(f"s_add_u32 s{s_t}, s29, {j}")
            e(f"s_cmp_ge_u32 s{s_t}, 86")
            e(f"s_cbranch_scc1 {name}_skip{j}")
            e(f"s_lshl_b32 s{s_t}, s{s_t}, 5")
            for mt in range(2):
                g = ACC + (mt*3+j)*4; u = ACC + ((2+mt)*3+j)*4
                for r in range(4): e(f"v_mul_f32 v{32+r}, s30, v{g+r}")
                for r in range(4): e(f"v_exp_f32 v{32+r}, v{32+r}")
                e("s_nop 0")
                for r in range(4): e(f"v_add_f32 v{32+r}, 1.0, v{32+r}")
                for r in range(4): e(f"v_rcp_f32 v{32+r}, v{32+r}")
                e("s_nop 0")
                for r in range(4): e(f"v_mul_f32 v{32+r}, v{32+r}, v{u+r}")
                e(f"v_cvt_pk_bf16_f32 v{36+2*mt}, v32, v33")
                e(f"v_cvt_pk_bf16_f32 v{37+2*mt}, v34, v35")
                e(f"buffer_store_dwordx2 {vr(36+2*mt,2)}, v7, {sr(sO,4)}, s{s_t} offen offset:0" if mt == 0 else
                  f"buffer_store_dwordx2 {vr(36+2*mt,2)}, v41, {sr(sO,4)}, s{s_t} offen")
                if mt == 0: e(f"v_add_u32 v41, {16*2752}, v7")
            e("s_nop 1")
            lab(f"{name}_skip{j}")
    stamp(name)
    stamp_out(name)
    lab(f"{name}_done")
    e("s_endpgm")
    return name, 256, 512, 163840, (240 if qkv else 224)

def gen_ln_gemm2(mode):
    qkv = mode == "qkv"
    name = "k_qkv_kernel" if qkv else "k_gu_kernel"
    MAPMODE = MAPS[mode]
    header(name)
    R = 4; S = 8 if qkv else 16
    WROW = 3072 if qkv else 2752
    KADV = (64 if qkv else 32) * WROW
    XB = 0; WB = 65536; SLOT = 24576
    XR = 176; RS = 208
    sX, sW, sO = 8, 12, 16
    s_wave, s_cg, s_rt, s_wm, s_wn, s_m0, s_k, s_t, s_t2 = 20, 21, 22, 23, 24, 25, 26, 27, 28
    e(f"s_cmp_ge_u32 s2, 256")
    e(f"s_cbranch_scc1 {name}_done")
    stamp(name)
    e("s_load_dwordx4 s[32:35], s[0:1], 0")
    e("s_load_dwordx4 s[36:39], s[0:1], 32")
    e("s_load_dwordx2 s[40:41], s[0:1], 72")
    e("v_lshrrev_b32 v1, 6, v0")
    e("v_and_b32 v2, 63, v0")
    e("s_nop 0")
    e(f"v_readfirstlane_b32 s{s_wave}, v1")
    wgmap(s_cg, s_rt, MAPMODE)
    e(f"s_lshr_b32 s{s_wm}, s{s_wave}, 2")
    e(f"s_and_b32 s{s_wn}, s{s_wave}, 3")
    e("s_waitcnt lgkmcnt(0)")
    if qkv:
        srd(sX, 32, 2048 * 1024)
        srd(sW, 34, 512 * 3072)
        srd(sO, 40, 6 << 20)
    else:
        srd(sX, 40, 2048 * 1024, WS_H)
        e(f"s_cmp_eq_u32 s{s_wm}, 0")
        e("s_cselect_b32 s42, s36, s38")
        e("s_cselect_b32 s43, s37, s39")
        srd(sW, 42, 512 * 2752)
        srd(sO, 40, 2048 * 2752, WS_HM)

    CS = 224; ONES = 236; WA1 = 240; XA = 246
    s_mx, s_kx = 44, 45
    seq = []
    for i in range(2):
        e(f"s_lshl_b32 s{s_t}, s{s_wave}, 7")
        e(f"v_add_u32 v12, s{s_t}, v2")
        if i: e("v_add_u32 v12, 64, v12")
        e("v_lshrrev_b32 v13, 4, v12")
        e("v_and_b32 v14, 15, v12")
        e("v_and_b32 v15, 15, v13")
        e("v_xor_b32 v14, v14, v15")
        e("v_lshlrev_b32 v13, 10, v13")
        e(f"v_lshl_add_u32 v{XA+i}, v14, 4, v13")
    e(f"s_lshl_b32 s{s_kx}, s{s_rt}, 16")
    e(f"s_lshl_b32 s{s_mx}, s{s_wave}, 11")
    def dmax(g):
        for i in range(2):
            e(f"s_add_u32 m0, s{s_mx}, {XB + g*16384 + i*1024}")
            e("s_nop 0")
            e(f"buffer_load_dwordx4 v{XA+i}, {sr(sX,4)}, s{s_kx} offen lds")
        e(f"s_add_u32 s{s_kx}, s{s_kx}, 256")
        seq.extend([("X", g)] * 2)
    dmax(0)
    e(f"s_mul_i32 s{s_t2}, s{s_wn}, 192")
    for i in range(3):
        e(f"v_add_u32 v11, s{s_t2}, v2")
        if i: e(f"v_add_u32 v11, {i*64}, v11")
        e("v_mul_u32_u24 v12, 2731, v11")
        e("v_lshrrev_b32 v12, 16, v12")
        e("v_mul_u32_u24 v13, 24, v12")
        e("v_sub_u32 v13, v11, v13")
        e("v_bfe_u32 v14, v12, 1, 1")
        e("v_bfe_u32 v15, v12, 3, 1")
        e("v_lshl_or_b32 v14, v15, 1, v14")
        e("v_lshlrev_b32 v14, 1, v14")
        e("v_xor_b32 v13, v13, v14")
        e(f"s_mov_b32 s{s_t}, {WROW}")
        e(f"v_mul_lo_u32 v12, v12, s{s_t}")
        e(f"v_lshl_add_u32 v{8+i}, v13, 4, v12")
    e(f"s_mul_i32 s{s_k}, s{s_cg}, 384")
    if qkv:
        e(f"s_mul_i32 s{s_t}, s{s_wm}, {32*3072}")
        e(f"s_add_u32 s{s_k}, s{s_k}, s{s_t}")
    e(f"s_mul_i32 s{s_m0}, s{s_wave}, 3072")
    e(f"s_add_u32 s{s_m0}, s{s_m0}, {WB}")
    def dma(st):
        slot = st % R
        for i in range(3):
            e(f"s_add_u32 m0, s{s_m0}, {slot*SLOT + i*1024}")
            e("s_nop 0")
            e(f"buffer_load_dwordx4 v{8+i}, {sr(sW,4)}, s{s_k} offen lds")
        e(f"s_add_u32 s{s_k}, s{s_k}, {KADV}")
        seq.extend([("W", st)] * 3)
    XS = os.environ.get("XS", "1") == "1"
    dma(0); dma(1)
    if not XS: dmax(1); dmax(2); dmax(3)
    e("v_lshrrev_b32 v4, 3, v2")
    e("v_and_b32 v5, 7, v2")
    e(f"s_lshl_b32 s{s_t}, s{s_wave}, 3")
    e(f"v_add_u32 v6, s{s_t}, v4")
    e(f"v_lshlrev_b32 v{RS+2}, 8, v6")
    e(f"v_lshl_add_u32 v{RS+2}, v5, 4, v{RS+2}")
    e(f"v_lshlrev_b32 v{RS+3}, 3, v6")
    e(f"v_add_u32 v{RS+3}, {WB}, v{RS+3}")
    e(f"s_mul_i32 s{s_t}, s{s_wave}, 3072")
    e(f"s_add_u32 s{s_t}, s{s_t}, {WB+1024}")
    e(f"v_lshl_add_u32 v{RS+4}, v2, 4, s{s_t}")
    e(f"s_xor_b32 s{s_t}, s{s_wave}, 4")
    e(f"s_mul_i32 s{s_t}, s{s_t}, 3072")
    e(f"s_add_u32 s{s_t}, s{s_t}, {WB+1024}")
    e(f"v_lshl_add_u32 v{RS+10}, v2, 4, s{s_t}")
    e("v_and_b32 v4, 15, v2")
    e("v_lshrrev_b32 v5, 4, v2")
    e(f"s_lshl_b32 s{s_t}, s{s_wm}, 8")
    e(f"s_add_u32 s{s_t}, s{s_t}, {WB}")
    e(f"v_lshl_add_u32 v{RS+5}, v4, 3, s{s_t}")
    e(f"s_lshl_b32 s{s_t}, s{s_wm}, 13")
    e("v_lshlrev_b32 v6, 8, v4")
    e(f"v_add_u32 v6, s{s_t}, v6")
    e("v_and_b32 v7, 3, v4")
    e("v_xor_b32 v7, v7, v5")
    e("v_lshrrev_b32 v11, 2, v4")
    for k in range(4):
        if qkv:
            e(f"s_xor_b32 s{s_t}, s{s_wm}, {k}")
            e(f"v_xor_b32 v12, s{s_t}, v11")
        else:
            e(f"v_xor_b32 v12, {k}, v11")
        e("v_lshl_or_b32 v12, v12, 2, v7")
        e(f"v_lshl_add_u32 v{24+k}, v12, 4, v6")
    e("v_lshrrev_b32 v11, 2, v4")
    e("v_and_b32 v12, 3, v4")
    e("v_lshl_add_u32 v13, v5, 3, v11")
    e("v_mul_u32_u24 v13, 384, v13")
    e("v_lshl_add_u32 v13, v12, 3, v13")
    e(f"v_add_u32 v13, {WB}, v13")
    e("v_lshrrev_b32 v14, 1, v11")
    e("v_and_b32 v15, 1, v5")
    e("v_lshl_or_b32 v14, v15, 1, v14")
    e(f"s_mul_i32 s{s_t}, s{s_wn}, 3")
    e(f"s_mul_i32 s29, s{s_wm}, 12288")
    e(f"s_sub_u32 s30, 12288, s29")
    for j in range(3):
        e(f"s_add_u32 s{s_t2}, s{s_t}, {j}")
        e(f"v_xor_b32 v15, s{s_t2}, v14")
        e(f"v_lshl_add_u32 v15, v15, 5, v13")
        e(f"v_add_u32 v{16+j}, s29, v15")
        e(f"v_add_u32 v{19+j}, {2*SLOT}, v{16+j}")
        e(f"v_add_u32 v{WA1+j}, s30, v15")
        e(f"v_add_u32 v{WA1+3+j}, {2*SLOT}, v{WA1+j}")
    ACC = 128
    NACC = 6 if qkv else 12
    for i in range(NACC * 4):
        e(f"v_mov_b32 v{ACC+i}, 0")
    for i in range(12): e(f"v_mov_b32 v{CS+i}, 0")
    for i in range(4): e(f"v_mov_b32 v{ONES+i}, 0x3f803f80")
    e(f"s_mov_b32 s31, 0x3f803f80")
    stamp(name)
    def stat_reads():
        for i in range(8):
            e(f"ds_read_b128 {vr(XR+4*i,4)}, v{RS+2} offset:{XB+(i>>1)*16384+(i&1)*128}")
    SC = []
    def c(*ls): SC.append(["    " + l for l in ls])
    c(f"v_dot2_f32_bf16 v{RS+6}, v{XR}, s31, 0")
    c(f"v_dot2_f32_bf16 v{RS+7}, v{XR+1}, s31, 0")
    c(f"v_dot2_f32_bf16 v{RS+8}, v{XR}, v{XR}, 0")
    c(f"v_dot2_f32_bf16 v{RS+9}, v{XR+1}, v{XR+1}, 0")
    for i in range(2, 32, 2):
        c(f"v_dot2_f32_bf16 v{RS+6}, v{XR+i}, s31, v{RS+6}")
        c(f"v_dot2_f32_bf16 v{RS+7}, v{XR+i+1}, s31, v{RS+7}")
        c(f"v_dot2_f32_bf16 v{RS+8}, v{XR+i}, v{XR+i}, v{RS+8}")
        c(f"v_dot2_f32_bf16 v{RS+9}, v{XR+i+1}, v{XR+i+1}, v{RS+9}")
    c("s_nop 3", f"v_add_f32 v{RS+6}, v{RS+6}, v{RS+7}", f"v_add_f32 v{RS+8}, v{RS+8}, v{RS+9}")
    for ctl in ("quad_perm:[1,0,3,2]", "quad_perm:[2,3,0,1]", "row_half_mirror"):
        c("s_nop 1",
          f"v_add_f32_dpp v{RS+6}, v{RS+6}, v{RS+6} {ctl} row_mask:0xf bank_mask:0xf",
          f"v_add_f32_dpp v{RS+8}, v{RS+8}, v{RS+8} {ctl} row_mask:0xf bank_mask:0xf")
    c(f"v_mul_f32 v{RS+6}, 0x3b000000, v{RS+6}",
      f"v_mul_f32 v{RS+8}, 0x3b000000, v{RS+8}",
      f"v_fma_f32 v{RS+8}, -v{RS+6}, v{RS+6}, v{RS+8}",
      f"v_max_f32 v{RS+8}, 0, v{RS+8}",
      f"v_add_f32 v{RS+8}, 0x3727c5ac, v{RS+8}",
      f"v_rsq_f32 v{RS}, v{RS+8}",
      "s_nop 0",
      f"v_mul_f32 v{RS+1}, v{RS+6}, v{RS}",
      f"v_sub_f32 v{RS+1}, 0, v{RS+1}")
    NSC = len(SC)
    FS = [32, 80]
    def reads(st):
        base = FS[st & 1]; slot = st % R
        hi = 0 if slot < 2 else 3; so = (slot & 1) * SLOT
        nk = 2 if qkv else 1
        for kk in range(nk):
            ks = st * nk + kk
            for mt in range(2):
                e(f"ds_read_b128 {vr(base+(kk*2+mt)*4,4)}, v{24+(ks&3)} offset:{XB+(ks>>2)*16384+mt*4096}")
        for b in range(2):
            for j in range(3):
                wa = (16 if b == 0 else WA1) + hi + j
                for t2 in range(2):
                    e(f"ds_read_b64_tr_b16 {vr(base+16+(b*3+j)*4+t2*2,2)}, v{wa} offset:{so+t2*1536}")
    def mfmas(st):
        base = FS[st & 1]
        for b in range(2):
            for j in range(3):
                for mt in range(2):
                    if qkv: a = ACC + (mt*3+j)*4; x = base + (b*2+mt)*4
                    else:   a = ACC + ((b*2+mt)*3+j)*4; x = base + mt*4
                    e(f"v_mfma_f32_16x16x32_bf16 {vr(a,4)}, {vr(base+16+(b*3+j)*4,4)}, {vr(x,4)}, {vr(a,4)}")
                if b == 0:
                    e(f"v_mfma_f32_16x16x32_bf16 {vr(CS+4*j,4)}, {vr(base+16+j*4,4)}, {vr(ONES,4)}, {vr(CS+4*j,4)}")
    grp = (lambda st: st >> 1) if qkv else (lambda st: st >> 2)
    issued = 2
    ST0 = int(os.environ.get("ST0", "4" if XS else "2"))
    NSS = 3
    for st in range(S):
        tags = {("W", st), ("X", grp(st))}
        if st == ST0: tags |= {("X", g) for g in range(4)}
        last = max(i for i, t in enumerate(seq) if t in tags)
        e(f"s_waitcnt vmcnt({len(seq)-1-last}) lgkmcnt(0)")
        e("s_barrier")
        if st in (0, 1, 2, 4, 6, S-1): stamp(name)
        B = chunks_of(capture(reads, st))
        while issued < S and issued <= st + PDL:
            B += chunks_of(capture(dma, issued))
            issued += 1
        if XS and st < 3: B += chunks_of(capture(dmax, st + 1))
        if st == ST0: B += chunks_of(capture(stat_reads))
        if ST0 < st <= ST0 + NSS:
            q = st - ST0 - 1
            B += SC[q*NSC//NSS:(q+1)*NSC//NSS]
        if st >= 1: interleave(capture(mfmas, st - 1), B)
        else:
            for ch in B: L.extend(ch)
    e("s_waitcnt lgkmcnt(0)")
    mfmas(S - 1)
    e("s_barrier")
    stamp(name)
    e("s_nop 7"); e("s_nop 3")
    e(f"ds_write_b64 v{RS+3}, v[{RS}:{RS+1}]")
    for j in range(3):
        e(f"ds_write_b128 v{RS+4}, {vr(CS+4*j,4)} offset:{j*1024}")
    e("s_waitcnt lgkmcnt(0)")
    e("s_barrier")
    e(f"ds_read_b64 v[32:33], v{RS+5}")
    e(f"ds_read_b64 v[34:35], v{RS+5} offset:128")
    for j in range(3):
        e(f"ds_read_b128 {vr(36+4*j,4)}, v{RS+10} offset:{j*1024}")
    e("s_waitcnt lgkmcnt(0)")
    if qkv:
        for p in range(6):
            e(f"v_pk_add_f32 {vr(CS+2*p,2)}, {vr(CS+2*p,2)}, {vr(36+2*p,2)}")
    tn = 0
    for b in range(1 if qkv else 2):
        for mt in range(2):
            for j in range(3):
                a = (ACC + (mt*3+j)*4) if qkv else (ACC + ((b*2+mt)*3+j)*4)
                cc = (CS if b == 0 else 36) + 4*j
                for p in range(2):
                    t = 48 + 2*(tn % 4); tn += 1
                    e(f"v_pk_mul_f32 {vr(t,2)}, {vr(cc+2*p,2)}, {vr(32+2*mt,2)} op_sel:[0,1] op_sel_hi:[1,1]")
                    e(f"v_pk_fma_f32 {vr(a+2*p,2)}, {vr(a+2*p,2)}, {vr(32+2*mt,2)}, {vr(t,2)} op_sel_hi:[1,0,1]")
    if not qkv:
        e(f"s_cmp_eq_u32 s{s_wm}, 0")
        e(f"s_cbranch_scc1 {name}_nosw")
        for i in range(24):
            e(f"v_swap_b32 v{ACC+i}, v{ACC+24+i}")
        lab(f"{name}_nosw")
    e("v_lshlrev_b32 v6, 5, v4")
    e("v_lshl_add_u32 v6, v5, 3, v6")
    if qkv:
        e(f"s_lshl_b32 s{s_t}, s{s_wave}, 9")
        e(f"v_add_u32 v7, s{s_t}, v6")
        e("v_lshrrev_b32 v11, 2, v4")
        e("v_and_b32 v12, 3, v4")
        e("v_lshl_add_u32 v11, v5, 2, v11")
        e("v_lshlrev_b32 v11, 5, v11")
        e("v_lshl_add_u32 v11, v12, 3, v11")
        e(f"v_add_u32 v11, s{s_t}, v11")
        e(f"s_mul_i32 s29, s{s_cg}, 12")
        e(f"s_mul_i32 s{s_t}, s{s_wn}, 3")
        e(f"s_add_u32 s29, s29, s{s_t}")
        e(f"s_lshl_b32 s30, s{s_rt}, 2")
        e(f"s_lshl_b32 s{s_t}, s{s_wm}, 1")
        e(f"s_add_u32 s30, s30, s{s_t}")
        e("s_nop 4")
        for j in range(3):
            for mt in range(2):
                a = ACC + (mt*3+j)*4
                e(f"v_cvt_pk_bf16_f32 v32, v{a}, v{a+1}")
                e(f"v_cvt_pk_bf16_f32 v33, v{a+2}, v{a+3}")
                e(f"s_add_u32 s{s_t}, s29, {j}")
                e(f"s_add_u32 s{s_t2}, s30, {mt}")
                e(f"s_cmp_ge_u32 s{s_t}, 64")
                e(f"s_cbranch_scc1 {name}_v{j}{mt}")
                e(f"s_lshl_b32 s{s_t}, s{s_t}, 16")
                e(f"s_lshl_b32 s{s_t2}, s{s_t2}, 9")
                e(f"s_add_u32 s{s_t}, s{s_t}, s{s_t2}")
                e(f"buffer_store_dwordx2 v[32:33], v6, {sr(sO,4)}, s{s_t} offen")
                e(f"s_branch {name}_n{j}{mt}")
                lab(f"{name}_v{j}{mt}")
                e("ds_write_b64 v7, v[32:33]")
                e("s_waitcnt lgkmcnt(0)")
                e("ds_read_b64_tr_b16 v[34:35], v11")
                e(f"s_sub_u32 s{s_t}, s{s_t}, 64")
                e(f"s_lshl_b32 s{s_t}, s{s_t}, 16")
                e(f"s_lshl_b32 s{s_t2}, s{s_t2}, 9")
                e(f"s_add_u32 s{s_t}, s{s_t}, s{s_t2}")
                e(f"s_add_u32 s{s_t}, s{s_t}, {WS_VT}")
                e("s_waitcnt lgkmcnt(0)")
                e(f"buffer_store_dwordx2 v[34:35], v6, {sr(sO,4)}, s{s_t} offen")
                lab(f"{name}_n{j}{mt}")
                e("s_nop 1")
    else:
        e(f"s_lshl_b32 s{s_t}, s{s_rt}, 6")
        e(f"s_lshl_b32 s{s_t2}, s{s_wm}, 5")
        e(f"s_add_u32 s{s_t}, s{s_t}, s{s_t2}")
        e(f"v_add_u32 v7, s{s_t}, v4")
        e(f"s_mov_b32 s{s_t}, 2752")
        e(f"v_mul_lo_u32 v7, v7, s{s_t}")
        e("v_lshl_add_u32 v7, v5, 3, v7")
        e(f"s_mul_i32 s29, s{s_cg}, 12")
        e(f"s_mul_i32 s{s_t}, s{s_wn}, 3")
        e(f"s_add_u32 s29, s29, s{s_t}")
        e("s_mov_b32 s30, 0xbfb8aa3b")
        e("s_nop 4")
        for j in range(3):
            e(f"s_add_u32 s{s_t}, s29, {j}")
            e(f"s_cmp_ge_u32 s{s_t}, 86")
            e(f"s_cbranch_scc1 {name}_skip{j}")
            e(f"s_lshl_b32 s{s_t}, s{s_t}, 5")
            for mt in range(2):
                g = ACC + (mt*3+j)*4; u = ACC + ((2+mt)*3+j)*4
                for r in range(4): e(f"v_mul_f32 v{32+r}, s30, v{g+r}")
                for r in range(4): e(f"v_exp_f32 v{32+r}, v{32+r}")
                e("s_nop 0")
                for r in range(4): e(f"v_add_f32 v{32+r}, 1.0, v{32+r}")
                for r in range(4): e(f"v_rcp_f32 v{32+r}, v{32+r}")
                e("s_nop 0")
                for r in range(4): e(f"v_mul_f32 v{32+r}, v{32+r}, v{u+r}")
                e(f"v_cvt_pk_bf16_f32 v{36+2*mt}, v32, v33")
                e(f"v_cvt_pk_bf16_f32 v{37+2*mt}, v34, v35")
                e(f"buffer_store_dwordx2 {vr(36+2*mt,2)}, v7, {sr(sO,4)}, s{s_t} offen offset:0" if mt == 0 else
                  f"buffer_store_dwordx2 {vr(36+2*mt,2)}, v41, {sr(sO,4)}, s{s_t} offen")
                if mt == 0: e(f"v_add_u32 v41, {16*2752}, v7")
            e("s_nop 1")
            lab(f"{name}_skip{j}")
    stamp(name)
    stamp_out(name)
    lab(f"{name}_done")
    e("s_endpgm")
    return name, 256, 512, 163840, 256


def gen_gu3():
    name = "k_gu_kernel"
    header(name)
    R = 4; S = 8; WROW = 2752
    SLOT = 40960; WO = 16384
    RS = 208; XR = 200; CS = 224; ONES = 236; WA = 176; XAD = 24; XA = 28; SA = 30
    sX, sW, sO = 8, 12, 16
    s_wave, s_cg, s_rt, s_wm, s_wn, s_m0, s_k, s_t, s_t2 = 20, 21, 22, 23, 24, 25, 26, 27, 28
    s_mx, s_kx, s_wm0, s_wm1 = 44, 45, 46, 47
    e(f"s_cmp_ge_u32 s2, 256")
    e(f"s_cbranch_scc1 {name}_done")
    e(f"s_and_b32 s{s_rt}, s2, 3")
    e(f"s_lshl_b32 s{s_rt}, s{s_rt}, 2")
    e(f"s_bfe_u32 s{s_cg}, s2, 0x20003")
    e(f"s_add_u32 s{s_rt}, s{s_rt}, s{s_cg}")
    e(f"s_bfe_u32 s{s_cg}, s2, 0x10002")
    e(f"s_lshl_b32 s{s_cg}, s{s_cg}, 3")
    e(f"s_lshr_b32 s100, s2, 5")
    e(f"s_add_u32 s{s_cg}, s{s_cg}, s100")
    e(f"s_cmp_ge_u32 s{s_cg}, 15")
    e(f"s_cbranch_scc1 {name}_done")
    stamp(name)
    e("s_load_dwordx4 s[36:39], s[0:1], 32")
    e("s_load_dwordx2 s[40:41], s[0:1], 72")
    e("v_lshrrev_b32 v1, 6, v0")
    e("v_and_b32 v2, 63, v0")
    e("s_nop 0")
    e(f"v_readfirstlane_b32 s{s_wave}, v1")
    e(f"s_lshr_b32 s{s_wm}, s{s_wave}, 1")
    e(f"s_and_b32 s{s_wn}, s{s_wave}, 1")
    e(f"s_and_b32 s{s_wm0}, s{s_wm}, 1")
    e(f"s_lshr_b32 s{s_wm1}, s{s_wave}, 2")
    e("s_waitcnt lgkmcnt(0)")
    srd(sX, 40, 2048 * 1024, WS_H)
    e(f"s_cmp_eq_u32 s{s_wm1}, 0")
    e("s_cselect_b32 s42, s36, s38")
    e("s_cselect_b32 s43, s37, s39")
    srd(sW, 42, 512 * 2752)
    srd(sO, 40, 2048 * 2752, WS_HM)
    seq = []
    for i in range(2):
        e(f"s_lshl_b32 s{s_t}, s{s_wave}, 7")
        e(f"v_add_u32 v12, s{s_t}, v2")
        if i: e("v_add_u32 v12, 64, v12")
        e("v_lshrrev_b32 v13, 3, v12")
        e("v_and_b32 v14, 7, v12")
        e("v_bfe_u32 v15, v12, 4, 3")
        e("v_xor_b32 v14, v14, v15")
        e("v_lshlrev_b32 v13, 10, v13")
        e(f"v_lshl_add_u32 v{XA+i}, v14, 4, v13")
    e(f"s_lshl_b32 s{s_kx}, s{s_rt}, 17")
    e(f"s_lshl_b32 s{s_mx}, s{s_wave}, 11")
    e(f"s_and_b32 s{s_t2}, s{s_wave}, 3")
    e(f"s_mul_i32 s{s_t2}, s{s_t2}, 192")
    for i in range(3):
        e(f"v_add_u32 v11, s{s_t2}, v2")
        if i: e(f"v_add_u32 v11, {i*64}, v11")
        e("v_mul_u32_u24 v12, 2731, v11")
        e("v_lshrrev_b32 v12, 16, v12")
        e("v_mul_u32_u24 v13, 24, v12")
        e("v_sub_u32 v13, v11, v13")
        e("v_bfe_u32 v14, v12, 1, 1")
        e("v_bfe_u32 v15, v12, 3, 1")
        e("v_lshl_or_b32 v14, v15, 1, v14")
        e("v_lshlrev_b32 v14, 1, v14")
        e("v_xor_b32 v13, v13, v14")
        e("v_cmp_lt_u32 vcc, 11, v13")
        e("v_add_u32 v14, 32, v12")
        e("v_cndmask_b32 v12, v12, v14, vcc")
        e("v_subrev_u32 v14, 12, v13")
        e("v_cndmask_b32 v13, v13, v14, vcc")
        e(f"s_mov_b32 s{s_t}, {WROW}")
        e(f"v_mul_lo_u32 v12, v12, s{s_t}")
        e(f"v_lshl_add_u32 v{8+i}, v13, 4, v12")
    e(f"s_mul_i32 s{s_k}, s{s_cg}, 192")
    e(f"s_mul_i32 s{s_m0}, s{s_wave}, 3072")
    e(f"s_add_u32 s{s_m0}, s{s_m0}, {WO}")
    def dma(st):
        slot = st % R
        for i in range(2):
            e(f"s_add_u32 m0, s{s_mx}, {slot*SLOT + i*1024}")
            e("s_nop 0")
            e(f"buffer_load_dwordx4 v{XA+i}, {sr(sX,4)}, s{s_kx} offen lds")
        e(f"s_add_u32 s{s_kx}, s{s_kx}, 128")
        for i in range(3):
            e(f"s_add_u32 m0, s{s_m0}, {slot*SLOT + i*1024}")
            e("s_nop 0")
            e(f"buffer_load_dwordx4 v{8+i}, {sr(sW,4)}, s{s_k} offen lds")
        e(f"s_add_u32 s{s_k}, s{s_k}, {64*WROW}")
        seq.extend([st] * 5)
    PD = int(os.environ.get("PD3", "3")); PD0 = int(os.environ.get("PD30", "2"))
    for st in range(PD0): dma(st)
    issued = PD0
    e("v_lshrrev_b32 v4, 2, v2")
    e("v_and_b32 v5, 3, v2")
    e(f"s_lshl_b32 s{s_t}, s{s_wave}, 4")
    e(f"v_add_u32 v6, s{s_t}, v4")
    e(f"v_lshlrev_b32 v{SA}, 7, v6")
    e(f"v_lshl_add_u32 v{SA}, v5, 4, v{SA}")
    e(f"v_add_u32 v{SA+1}, {2*SLOT}, v{SA}")
    e(f"v_lshlrev_b32 v{RS+3}, 3, v6")
    e(f"s_mul_i32 s{s_t}, s{s_wave}, 3072")
    e(f"v_lshlrev_b32 v7, 4, v2")
    e(f"v_add_u32 v7, 2048, v7")
    e(f"v_add_u32 v{RS+4}, s{s_t}, v7")
    for q, xo in enumerate((2, 4, 6)):
        e(f"s_xor_b32 s{s_t}, s{s_wave}, {xo}")
        e(f"s_mul_i32 s{s_t}, s{s_t}, 3072")
        e(f"v_add_u32 v{RS+10+q}, s{s_t}, v7")
    e("v_and_b32 v4, 15, v2")
    e("v_lshrrev_b32 v5, 4, v2")
    e(f"s_lshl_b32 s{s_t}, s{s_wm}, 8")
    e(f"v_lshl_add_u32 v{RS+5}, v4, 3, s{s_t}")
    e(f"s_lshl_b32 s{s_t}, s{s_wm}, 12")
    e("v_lshlrev_b32 v6, 7, v4")
    e(f"v_add_u32 v6, s{s_t}, v6")
    e("v_bfe_u32 v7, v4, 1, 3")
    for kk in range(2):
        e(f"s_xor_b32 s{s_t}, s{s_wm0}, {kk}")
        e(f"s_lshl_b32 s{s_t}, s{s_t}, 2")
        e(f"v_add_u32 v12, s{s_t}, v5")
        e("v_xor_b32 v12, v12, v7")
        e(f"v_lshl_add_u32 v{XAD+kk}, v12, 4, v6")
        e(f"v_add_u32 v{XAD+2+kk}, {2*SLOT}, v{XAD+kk}")
    e("v_lshrrev_b32 v11, 2, v4")
    e("v_and_b32 v12, 3, v4")
    e("v_lshl_add_u32 v13, v5, 3, v11")
    e("v_mul_u32_u24 v13, 384, v13")
    e("v_lshl_add_u32 v13, v12, 3, v13")
    e("v_lshrrev_b32 v14, 1, v11")
    e("v_and_b32 v15, 1, v5")
    e("v_lshl_or_b32 v14, v15, 1, v14")
    def wreg(hi, kk, b, j): return WA + hi*12 + kk*6 + b*3 + j
    for kk in range(2):
        for j in range(3):
            e(f"s_xor_b32 s{s_t}, s{s_wm0}, {kk}")
            e(f"s_mul_i32 s{s_t}, s{s_t}, 6")
            e(f"s_mul_i32 s{s_t2}, s{s_wn}, 3")
            e(f"s_add_u32 s{s_t}, s{s_t}, s{s_t2}")
            e(f"s_add_u32 s{s_t}, s{s_t}, {j}")
            e(f"v_xor_b32 v15, s{s_t}, v14")
            e(f"v_lshl_add_u32 v15, v15, 5, v13")
            for b in range(2):
                e(f"s_xor_b32 s{s_t}, s{s_wm1}, {b}")
                e(f"s_mul_i32 s{s_t}, s{s_t}, 12288")
                e(f"v_add_u32 v{wreg(0,kk,b,j)}, s{s_t}, v15")
                e(f"v_add_u32 v{wreg(1,kk,b,j)}, {2*SLOT}, v{wreg(0,kk,b,j)}")
    ACC = 128
    for i in range(48): e(f"v_mov_b32 v{ACC+i}, 0")
    for i in range(12): e(f"v_mov_b32 v{CS+i}, 0")
    for i in range(4): e(f"v_mov_b32 v{ONES+i}, 0x3f803f80"); e(f"v_mov_b32 v{RS+6+i}, 0")
    e(f"s_mov_b32 s31, 0x3f803f80")
    stamp(name)
    FS = [32, 80]
    def reads(st, kk):
        base = FS[kk]; slot = st % R
        hi = slot >> 1; so = (slot & 1) * SLOT
        for mt in range(2):
            e(f"ds_read_b128 {vr(base+mt*4,4)}, v{XAD+2*hi+kk} offset:{so+mt*2048}")
        for b in range(2):
            for j in range(3):
                for t2 in range(2):
                    e(f"ds_read_b64_tr_b16 {vr(base+16+(b*3+j)*4+t2*2,2)}, v{wreg(hi,kk,b,j)} offset:{so+WO+t2*1536}")
    def stat_reads(st):
        slot = st % R
        for i in range(2):
            e(f"ds_read_b128 {vr(XR+4*i,4)}, v{SA+(slot>>1)} offset:{(slot&1)*SLOT+i*64}")
    def stat_dots():
        for i in range(0, 8, 2):
            e(f"v_dot2_f32_bf16 v{RS+6}, v{XR+i}, s31, v{RS+6}")
            e(f"v_dot2_f32_bf16 v{RS+7}, v{XR+i+1}, s31, v{RS+7}")
            e(f"v_dot2_f32_bf16 v{RS+8}, v{XR+i}, v{XR+i}, v{RS+8}")
            e(f"v_dot2_f32_bf16 v{RS+9}, v{XR+i+1}, v{XR+i+1}, v{RS+9}")
    def mfmas(kk):
        base = FS[kk]
        for b in range(2):
            for j in range(3):
                for mt in range(2):
                    a = ACC + ((b*2+mt)*3+j)*4
                    e(f"v_mfma_f32_16x16x32_bf16 {vr(a,4)}, {vr(base+16+(b*3+j)*4,4)}, {vr(base+mt*4,4)}, {vr(a,4)}")
                if b == 0 and kk == 0:
                    e(f"v_mfma_f32_16x16x32_bf16 {vr(CS+4*j,4)}, {vr(base+16+j*4,4)}, {vr(ONES,4)}, {vr(CS+4*j,4)}")
    for st in range(S):
        last = max(i for i, t in enumerate(seq) if t == st)
        e(f"s_waitcnt vmcnt({len(seq)-1-last}) lgkmcnt(0)")
        e("s_barrier")
        if st in (0, 1, 2, 4, 6): stamp(name)
        B = chunks_of(capture(reads, st, 0)) + chunks_of(capture(stat_reads, st))
        while issued < S and issued <= st + PD:
            B += chunks_of(capture(dma, issued)); issued += 1
        if st >= 1: interleave(capture(mfmas, 1), B)
        else:
            for ch in B: L.extend(ch)
        e("s_waitcnt lgkmcnt(0)")
        B = chunks_of(capture(reads, st, 1)) + chunks_of(capture(stat_dots))
        interleave(capture(mfmas, 0), B)
    e("s_waitcnt lgkmcnt(0)")
    mfmas(1)
    e(f"v_add_f32 v{RS+6}, v{RS+6}, v{RS+7}")
    e(f"v_add_f32 v{RS+8}, v{RS+8}, v{RS+9}")
    for ctl in ("quad_perm:[1,0,3,2]", "quad_perm:[2,3,0,1]"):
        e(f"s_nop 1")
        e(f"v_add_f32_dpp v{RS+6}, v{RS+6}, v{RS+6} {ctl} row_mask:0xf bank_mask:0xf")
        e(f"v_add_f32_dpp v{RS+8}, v{RS+8}, v{RS+8} {ctl} row_mask:0xf bank_mask:0xf")
    e(f"v_mul_f32 v{RS+6}, 0x3b000000, v{RS+6}")
    e(f"v_mul_f32 v{RS+8}, 0x3b000000, v{RS+8}")
    e(f"v_fma_f32 v{RS+8}, -v{RS+6}, v{RS+6}, v{RS+8}")
    e(f"v_max_f32 v{RS+8}, 0, v{RS+8}")
    e(f"v_add_f32 v{RS+8}, 0x3727c5ac, v{RS+8}")
    e(f"v_rsq_f32 v{RS}, v{RS+8}")
    e(f"s_nop 0")
    e(f"v_mul_f32 v{RS+1}, v{RS+6}, v{RS}")
    e(f"v_sub_f32 v{RS+1}, 0, v{RS+1}")
    e("s_barrier")
    stamp(name)
    e("s_nop 7")
    e(f"ds_write_b64 v{RS+3}, v[{RS}:{RS+1}]")
    for j in range(3):
        e(f"ds_write_b128 v{RS+4}, {vr(CS+4*j,4)} offset:{j*1024}")
    e("s_waitcnt lgkmcnt(0)")
    e("s_barrier")
    e(f"ds_read_b64 v[32:33], v{RS+5}")
    e(f"ds_read_b64 v[34:35], v{RS+5} offset:128")
    for q in range(3):
        for j in range(3):
            e(f"ds_read_b128 {vr(36+12*q+4*j,4)}, v{RS+10+q} offset:{j*1024}")
    e("s_waitcnt lgkmcnt(0)")
    for p in range(6):
        e(f"v_pk_add_f32 {vr(CS+2*p,2)}, {vr(CS+2*p,2)}, {vr(36+2*p,2)}")
        e(f"v_pk_add_f32 {vr(48+2*p,2)}, {vr(48+2*p,2)}, {vr(60+2*p,2)}")
    tn = 0
    for b in range(2):
        for mt in range(2):
            for j in range(3):
                a = ACC + ((b*2+mt)*3+j)*4
                cc = (CS if b == 0 else 48) + 4*j
                for p in range(2):
                    t = 72 + 2*(tn % 4); tn += 1
                    e(f"v_pk_mul_f32 {vr(t,2)}, {vr(cc+2*p,2)}, {vr(32+2*mt,2)} op_sel:[0,1] op_sel_hi:[1,1]")
                    e(f"v_pk_fma_f32 {vr(a+2*p,2)}, {vr(a+2*p,2)}, {vr(32+2*mt,2)}, {vr(t,2)} op_sel_hi:[1,0,1]")
    e(f"s_cmp_eq_u32 s{s_wm1}, 0")
    e(f"s_cbranch_scc1 {name}_nosw")
    for i in range(24):
        e(f"v_swap_b32 v{ACC+i}, v{ACC+24+i}")
    lab(f"{name}_nosw")
    e(f"s_lshl_b32 s{s_t}, s{s_rt}, 7")
    e(f"s_lshl_b32 s{s_t2}, s{s_wm}, 5")
    e(f"s_add_u32 s{s_t}, s{s_t}, s{s_t2}")
    e(f"v_add_u32 v7, s{s_t}, v4")
    e(f"s_mov_b32 s{s_t}, 2752")
    e(f"v_mul_lo_u32 v7, v7, s{s_t}")
    e("v_lshl_add_u32 v7, v5, 3, v7")
    e(f"v_add_u32 v81, {16*2752}, v7")
    e(f"s_mul_i32 s29, s{s_cg}, 6")
    e(f"s_mul_i32 s{s_t}, s{s_wn}, 3")
    e(f"s_add_u32 s29, s29, s{s_t}")
    e("s_mov_b32 s30, 0xbfb8aa3b")
    for j in range(3):
        e(f"s_add_u32 s{s_t}, s29, {j}")
        e(f"s_cmp_ge_u32 s{s_t}, 86")
        e(f"s_cbranch_scc1 {name}_skip{j}")
        e(f"s_lshl_b32 s{s_t}, s{s_t}, 5")
        for mt in range(2):
            g = ACC + (mt*3+j)*4; u = ACC + ((2+mt)*3+j)*4
            for r in range(4): e(f"v_mul_f32 v{32+r}, s30, v{g+r}")
            for r in range(4): e(f"v_exp_f32 v{32+r}, v{32+r}")
            e("s_nop 0")
            for r in range(4): e(f"v_add_f32 v{32+r}, 1.0, v{32+r}")
            for r in range(4): e(f"v_rcp_f32 v{32+r}, v{32+r}")
            e("s_nop 0")
            for r in range(4): e(f"v_mul_f32 v{32+r}, v{32+r}, v{u+r}")
            e(f"v_cvt_pk_bf16_f32 v{36+2*mt}, v32, v33")
            e(f"v_cvt_pk_bf16_f32 v{37+2*mt}, v34, v35")
            e(f"buffer_store_dwordx2 {vr(36+2*mt,2)}, v{7 if mt == 0 else 81}, {sr(sO,4)}, s{s_t} offen")
        e("s_nop 1")
        lab(f"{name}_skip{j}")
    stamp(name)
    stamp_out(name)
    lab(f"{name}_done")
    e("s_endpgm")
    return name, 256, 512, 163840, 240

def gen_plain(mode):
    wo = mode == "wo"
    name = "k_wo_kernel" if wo else "k_down_kernel"
    MAPMODE = MAPS[mode]
    header(name)
    R = 4
    K = 512 if wo else 1376
    AS = 1024 if wo else 2752
    stages = [(k0, min(128, K - k0)) for k0 in range(0, K, 128)]
    S = len(stages)
    SLOT = 32768
    sA, sW, sR, sO = 8, 12, 16, 44
    s_wave, s_cg, s_rt, s_wm, s_wn, s_m0, s_ka, s_kw, s_t, s_t2 = 20, 21, 22, 23, 24, 25, 26, 27, 28, 29
    e(f"s_cmp_ge_u32 s2, 256")
    e(f"s_cbranch_scc1 {name}_done")
    stamp(name)
    e("s_load_dwordx2 s[32:33], s[0:1], 0")
    e("s_load_dwordx2 s[34:35], s[0:1], %d" % (16 if wo else 48))
    e("s_load_dwordx2 s[36:37], s[0:1], 56")
    e("s_load_dwordx2 s[40:41], s[0:1], 72")
    e("v_lshrrev_b32 v1, 6, v0")
    e("v_and_b32 v2, 63, v0")
    e("s_nop 0")
    e(f"v_readfirstlane_b32 s{s_wave}, v1")
    wgmap(s_cg, s_rt, MAPMODE)
    e(f"s_lshr_b32 s{s_wm}, s{s_wave}, 2")
    e(f"s_and_b32 s{s_wn}, s{s_wave}, 3")
    e("s_waitcnt lgkmcnt(0)")
    if wo:
        srd(sA, 40, 2048 * 1024, WS_O); srd(sW, 34, 512 * 1024)
        srd(sR, 32, 2048 * 1024); srd(sO, 40, 2048 * 1024, WS_H)
    else:
        srd(sA, 40, 2048 * 2752, WS_HM); srd(sW, 34, 1376 * 1024)
        srd(sR, 40, 2048 * 1024, WS_H); srd(sO, 36, 2048 * 1024)
    for i in range(2):
        e(f"s_lshl_b32 s{s_t}, s{s_wave}, 7")
        e(f"v_add_u32 v12, s{s_t}, v2")
        if i: e("v_add_u32 v12, 64, v12")
        e("v_lshrrev_b32 v13, 4, v12")
        e("v_and_b32 v14, 15, v12")
        e("v_and_b32 v15, 15, v13")
        e("v_xor_b32 v14, v14, v15")
        e(f"s_mov_b32 s{s_t}, {AS}")
        e(f"v_mul_lo_u32 v13, v13, s{s_t}")
        e(f"v_lshl_add_u32 v{8+i}, v14, 4, v13")
        e("v_lshrrev_b32 v13, 3, v12")
        e("v_and_b32 v14, 7, v12")
        e("v_bfe_u32 v15, v13, 1, 1")
        e("v_bfe_u32 v16, v13, 3, 1")
        e("v_lshl_or_b32 v15, v16, 1, v15")
        e("v_lshlrev_b32 v15, 1, v15")
        e("v_xor_b32 v14, v14, v15")
        e("v_lshlrev_b32 v13, 10, v13")
        e(f"v_lshl_add_u32 v{10+i}, v14, 4, v13")
    e(f"s_mul_i32 s{s_ka}, s{s_rt}, {64*AS}")
    e(f"s_lshl_b32 s{s_kw}, s{s_cg}, 7")
    e(f"s_lshl_b32 s{s_m0}, s{s_wave}, 11")
    VG = os.environ.get("VG", "") == "1" and wo
    def dma(st):
        slot = st % R
        if VG:
            for i in range(2):
                e(f"buffer_load_dwordx4 {vr(160+st*16+i*8,4)}, v{8+i}, {sr(sA,4)}, s{s_ka} offen")
                e(f"buffer_load_dwordx4 {vr(164+st*16+i*8,4)}, v{10+i}, {sr(sW,4)}, s{s_kw} offen")
            e(f"s_add_u32 s{s_ka}, s{s_ka}, 256")
            e(f"s_add_u32 s{s_kw}, s{s_kw}, {128*1024}")
            return
        for i in range(2):
            e(f"s_add_u32 m0, s{s_m0}, {slot*SLOT + i*1024}")
            e("s_nop 0")
            e(f"buffer_load_dwordx4 v{8+i}, {sr(sA,4)}, s{s_ka} offen {DFL} lds")
            e(f"s_add_u32 m0, s{s_m0}, {slot*SLOT + 16384 + i*1024}")
            e("s_nop 0")
            e(f"buffer_load_dwordx4 v{10+i}, {sr(sW,4)}, s{s_kw} offen {DFL} lds")
        e(f"s_add_u32 s{s_ka}, s{s_ka}, 256")
        e(f"s_add_u32 s{s_kw}, s{s_kw}, {128*1024}")
    D = int(os.environ.get("PD", "2"))
    D0 = int(os.environ.get("PD0", "2"))
    issued = min(D0, S)
    for st in range(issued): dma(st)
    e("v_and_b32 v4, 15, v2")
    e("v_lshrrev_b32 v5, 4, v2")
    e(f"v_lshl_add_u32 v140, v2, 4, s{s_m0}")
    e(f"v_add_u32 v141, {2*SLOT}, v140")
    e(f"s_lshl_b32 s{s_t}, s{s_rt}, 6")
    e(f"s_lshl_b32 s{s_t2}, s{s_wm}, 5")
    e(f"s_add_u32 s{s_t}, s{s_t}, s{s_t2}")
    e(f"v_add_u32 v6, s{s_t}, v4")
    e("v_lshlrev_b32 v6, 10, v6")
    e("v_lshl_add_u32 v6, v5, 3, v6")
    e(f"s_lshl_b32 s{s_t}, s{s_cg}, 7")
    e(f"s_lshl_b32 s{s_t2}, s{s_wn}, 5")
    e(f"s_add_u32 s30, s{s_t}, s{s_t2}")
    e("v_add_u32 v7, 16384, v6")
    e(f"buffer_load_dwordx2 v[136:137], v6, {sr(sR,4)}, s30 offen")
    e(f"buffer_load_dwordx2 v[138:139], v7, {sr(sR,4)}, s30 offen")
    e(f"s_lshl_b32 s{s_t}, s{s_wm}, 13")
    e("v_lshlrev_b32 v12, 8, v4")
    e(f"v_add_u32 v12, s{s_t}, v12")
    e("v_and_b32 v13, 3, v4")
    e("v_xor_b32 v13, v13, v5")
    e("v_lshrrev_b32 v14, 2, v4")
    for k in range(4):
        e(f"v_xor_b32 v15, {k}, v14")
        e("v_lshl_or_b32 v15, v15, 2, v13")
        e(f"v_lshl_add_u32 v{16+k}, v15, 4, v12")
        e(f"v_add_u32 v{20+k}, {2*SLOT}, v{16+k}")
    e("v_lshrrev_b32 v12, 2, v4")
    e("v_and_b32 v13, 3, v4")
    e("v_lshl_add_u32 v14, v5, 3, v12")
    e("v_lshlrev_b32 v14, 7, v14")
    e("v_lshl_add_u32 v14, v13, 3, v14")
    e("v_lshrrev_b32 v15, 1, v12")
    e("v_and_b32 v13, 1, v5")
    e("v_lshl_or_b32 v15, v13, 1, v15")
    e(f"v_xor_b32 v15, s{s_wn}, v15")
    e("v_lshl_add_u32 v24, v15, 5, v14")
    e("v_add_u32 v24, 16384, v24")
    e(f"v_add_u32 v25, {2*SLOT}, v24")
    ACC = 128
    for i in range(8): e(f"v_mov_b32 v{ACC+i}, 0")
    FS = [28, 76]
    def reads(st):
        base = FS[st & 1]; slot = st % R; hi = slot >= 2; so = (slot & 1) * SLOT
        for ks in range(stages[st][1] // 32):
            for mt in range(2):
                e(f"ds_read_b128 {vr(base+(ks*2+mt)*4,4)}, v{(20 if hi else 16)+ks} offset:{so+mt*4096}")
            for t2 in range(2):
                e(f"ds_read_b64_tr_b16 {vr(base+32+ks*4+t2*2,2)}, v{25 if hi else 24} offset:{so+ks*4096+t2*512}")
    def mfmas(st):
        base = FS[st & 1]
        for ks in range(stages[st][1] // 32):
            for mt in range(2):
                a = ACC + mt * 4
                e(f"v_mfma_f32_16x16x32_bf16 {vr(a,4)}, {vr(base+32+ks*4,4)}, {vr(base+(ks*2+mt)*4,4)}, {vr(a,4)}")
    for st in range(S):
        after = (issued - 1 - st) * 4 + (2 if st < min(D0, S) else 0)
        if VG:
            e(f"s_waitcnt vmcnt({after})")
            for i in range(2):
                e(f"ds_write_b128 v{140+(st>>1)}, {vr(160+st*16+i*8,4)} offset:{(st&1)*SLOT+i*1024}")
                e(f"ds_write_b128 v{140+(st>>1)}, {vr(164+st*16+i*8,4)} offset:{(st&1)*SLOT+16384+i*1024}")
        e(f"s_waitcnt vmcnt({after}) lgkmcnt(0)")
        e("s_barrier")
        if st in (0,1,2,3,5,8): stamp(name)
        B = chunks_of(capture(reads, st))
        while issued < S and issued <= st + D:
            B += chunks_of(capture(dma, issued)); issued += 1
        if st >= 1: interleave(capture(mfmas, st - 1), B)
        else:
            for c in B: L.extend(c)
    e("s_waitcnt vmcnt(0) lgkmcnt(0)")
    mfmas(S - 1)
    e("s_nop 7"); e("s_nop 1")
    for mt in range(2):
        a = ACC + mt*4; r = 136 + 2*mt
        e(f"v_lshlrev_b32 v12, 16, v{r}")
        e(f"v_and_b32 v13, 0xffff0000, v{r}")
        e(f"v_lshlrev_b32 v14, 16, v{r+1}")
        e(f"v_and_b32 v15, 0xffff0000, v{r+1}")
        for i in range(4): e(f"v_add_f32 v{12+i}, v{12+i}, v{a+i}")
        e(f"v_cvt_pk_bf16_f32 v{r}, v12, v13")
        e(f"v_cvt_pk_bf16_f32 v{r+1}, v14, v15")
        e(f"buffer_store_dwordx2 {vr(r,2)}, v{6+mt}, {sr(sO,4)}, s30 offen")
    stamp(name)
    stamp_out(name)
    lab(f"{name}_done")
    e("s_endpgm")
    return name, 256, 512, 131072, 224

def gen_attn():
    name = "k_attn_kernel"
    header(name)
    sWS, sO = 8, 12
    s_wave, s_head, s_qt, s_t, s_t2, s_kb, s_vb = 20, 21, 22, 23, 24, 25, 26
    e("s_cmp_ge_u32 s2, 512")
    e(f"s_cbranch_scc1 {name}_done")
    stamp(name)
    e("s_load_dwordx2 s[40:41], s[0:1], 72")
    PF = os.environ.get("PF", "1") == "1"
    if PF:
        e("s_load_dwordx2 s[42:43], s[0:1], 16")
        e("s_load_dwordx4 s[44:47], s[0:1], 32")
        e("s_load_dwordx2 s[48:49], s[0:1], 48")
    e("v_lshrrev_b32 v1, 6, v0")
    e("v_and_b32 v2, 63, v0")
    e("s_nop 0")
    e(f"v_readfirstlane_b32 s{s_wave}, v1")
    if os.environ.get("AM", "1") == "1":
        e(f"s_bfe_u32 s{s_head}, s2, 0x10002")
        e(f"s_lshl_b32 s{s_head}, s{s_head}, 4")
        e(f"s_lshr_b32 s{s_t}, s2, 5")
        e(f"s_add_u32 s{s_head}, s{s_head}, s{s_t}")
        e(f"s_and_b32 s{s_qt}, s2, 3")
        e(f"s_lshl_b32 s{s_qt}, s{s_qt}, 2")
        e(f"s_bfe_u32 s{s_t}, s2, 0x20003")
        e(f"s_add_u32 s{s_qt}, s{s_qt}, s{s_t}")
        e(f"s_lshl_b32 s{s_qt}, s{s_qt}, 3")
    elif os.environ.get("AM") == "2":
        e(f"s_lshr_b32 s{s_head}, s2, 4")
        e(f"s_and_b32 s{s_qt}, s2, 3")
        e(f"s_lshl_b32 s{s_qt}, s{s_qt}, 2")
        e(f"s_bfe_u32 s{s_t}, s2, 0x10002")
        e(f"s_lshl_b32 s{s_t}, s{s_t}, 1")
        e(f"s_add_u32 s{s_qt}, s{s_qt}, s{s_t}")
        e(f"s_bfe_u32 s{s_t}, s2, 0x10003")
        e(f"s_add_u32 s{s_qt}, s{s_qt}, s{s_t}")
        e(f"s_lshl_b32 s{s_qt}, s{s_qt}, 3")
    else:
        e(f"s_lshr_b32 s{s_head}, s2, 4")
        e(f"s_and_b32 s{s_qt}, s2, 15")
        e(f"s_lshl_b32 s{s_qt}, s{s_qt}, 3")
    e("v_and_b32 v4, 15, v2")
    e("v_lshrrev_b32 v5, 4, v2")
    e("v_lshlrev_b32 v6, 5, v4")
    e("v_lshl_add_u32 v6, v5, 3, v6")
    e("v_lshlrev_b32 v7, 4, v2")
    e("s_waitcnt lgkmcnt(0)")
    srd(sWS, 40, 6 << 20)
    srd(sO, 40, 2048 * 1024, WS_O)
    e(f"s_lshl_b32 s{s_t}, s{s_head}, 16")
    e(f"s_lshl_b32 s{s_t2}, s{s_qt}, 9")
    e(f"s_add_u32 s{s_t2}, s{s_t2}, s{s_t}")
    QF, KF, SS = 8, 12, 48
    VF = KF
    T = 116
    e(f"s_lshl_b32 s{s_t}, s{s_wave}, 9")
    e(f"s_add_u32 s{s_t}, s{s_t2}, s{s_t}")
    e(f"buffer_load_dwordx2 {vr(QF,2)}, v6, {sr(sWS,4)}, s{s_t} offen")
    e(f"s_cmp_lt_u32 s{s_wave}, 4")
    e(f"s_mov_b32 s{s_vb}, {WS_VT-8192-12288}")
    e(f"s_cselect_b32 s{s_kb}, {32*65536-8192}, s{s_vb}")
    e(f"s_add_u32 s{s_kb}, s{s_kb}, s{s_t2}")
    e(f"s_mul_i32 s{s_vb}, s{s_wave}, 3072")
    e(f"s_add_u32 s{s_kb}, s{s_kb}, s{s_vb}")
    for i in range(3):
        e(f"s_add_u32 m0, s{s_vb}, {i*1024}")
        e("s_nop 0")
        e(f"buffer_load_dwordx4 v7, {sr(sWS,4)}, s{s_kb} offen lds")
        if i < 2: e(f"s_add_u32 s{s_kb}, s{s_kb}, 1024")
    PFE = PF and os.environ.get("PFE", "0") == "1"
    if PFE:
        e("s_lshr_b32 s50, s2, 3")
        e("s_lshl_b32 s50, s50, 3")
        e(f"s_add_u32 s50, s50, s{s_wave}")
        e("s_bfe_u32 s51, s2, 0x10002")
        e(f"s_lshl_b32 s68, s{s_wave}, 8")
        e(f"s_add_u32 m0, s68, 24576")
        e("s_cmp_lt_u32 s50, 172")
        e("s_cselect_b32 s60, s48, s42")
        e("s_cselect_b32 s61, s49, s43")
        e(f"s_mov_b32 s63, {512*1024}")
        e(f"s_cselect_b32 s62, {1376*1024}, s63")
        e("s_mov_b32 s63, 0x00020000")
        e("s_cselect_b32 s69, 0, 172")
        e("s_sub_u32 s68, s50, s69")
        e("s_lshl_b32 s68, s68, 13")
        e("s_lshl_b32 s69, s51, 9")
        e("s_add_u32 s68, s68, s69")
        e("v_lshrrev_b32 v1, 3, v2")
        e("v_lshlrev_b32 v1, 10, v1")
        e("v_and_b32 v3, 7, v2")
        e("v_lshl_add_u32 v1, v3, 6, v1")
        e("buffer_load_dword v1, s[60:63], s68 offen lds")
        e("s_cmp_lt_u32 s50, 256")
        e("s_cselect_b32 s56, s44, s46")
        e("s_cselect_b32 s57, s45, s47")
        e(f"s_mov_b32 s58, {512*2752}")
        e("s_mov_b32 s59, 0x00020000")
        e("s_and_b32 s68, s50, 255")
        e("s_mul_i32 s68, s68, 5504")
        e("s_mul_i32 s69, s51, 1536")
        e("s_add_u32 s68, s68, s69")
        e("v_lshrrev_b32 v1, 5, v2")
        e("v_mul_u32_u24 v1, 2752, v1")
        e("v_and_b32 v3, 31, v2")
        e("v_mul_u32_u24 v3, 48, v3")
        e("v_add_u32 v1, v1, v3")
        e("buffer_load_dword v1, s[56:59], s68 offen lds")
    e(f"s_add_u32 s{s_qt}, s{s_qt}, s{s_wave}")
    e(f"s_lshl_b32 s{s_t}, s{s_wave}, 9")
    e(f"v_add_u32 v10, s{s_t}, v6")
    e("v_lshlrev_b32 v7, 2, v5")
    e("v_sub_u32 v7, v7, v4")
    e("v_mov_b32 v3, 0xf149f2ca")
    e(f"s_cmp_lt_u32 s{s_wave}, 4")
    e(f"s_cbranch_scc1 {name}_w0")
    e(f"s_waitcnt vmcnt({5 if PFE else 3})")
    e(f"s_branch {name}_w1")
    lab(f"{name}_w0")
    e(f"s_waitcnt vmcnt({2 if PFE else 0})")
    lab(f"{name}_w1")
    e("s_barrier")
    stamp(name)
    for t in range(17):
        e(f"ds_read_b64 {vr(KF+2*t,2)}, v10 offset:{t*512}")
    for t in range(17):
        e(f"s_waitcnt lgkmcnt({min(15,16-t)})")
        e(f"v_mfma_f32_16x16x16_bf16 {vr(SS+4*t,4)}, {vr(KF+2*t,2)}, {vr(QF,2)}, 0")
    e(f"s_waitcnt vmcnt({2 if PFE else 0})")
    e("s_barrier")
    e("s_nop 4")
    for t in range(17):
        e(f"ds_read_b64 {vr(VF+2*t,2)}, v10 offset:{12288+t*512}")
    if PF and not PFE:
        PFM = os.environ.get("PFM", "1")
        if PFM == "0":
            srd(52, 42, 512 * 1024); srd(56, 44, 512 * 2752); srd(60, 46, 512 * 2752); srd(64, 48, 1376 * 1024)
            e("s_lshr_b32 s50, s2, 3")
            e("s_lshl_b32 s50, s50, 3")
            e(f"s_add_u32 s50, s50, s{s_wave}")
            e("s_bfe_u32 s51, s2, 0x10002")
            e(f"s_lshl_b32 m0, s{s_wave}, 10")
            e("v_lshrrev_b32 v1, 5, v2")
            e("v_lshlrev_b32 v1, 10, v1")
            e("v_and_b32 v3, 31, v2")
            e("v_lshl_add_u32 v1, v3, 4, v1")
            e("v_mov_b32 v3, 0xf149f2ca")
            e("s_lshl_b32 s68, s50, 11")
            e("s_lshl_b32 s69, s51, 9")
            e("s_add_u32 s68, s68, s69")
            e("buffer_load_dwordx4 v1, s[52:55], s68 offen lds")
            e("s_mul_i32 s69, s50, 2752")
            e("s_mul_i32 s51, s51, 1536")
            e("s_add_u32 s69, s69, s51")
            e("v_lshlrev_b32 v1, 4, v2")
            e("buffer_load_dwordx4 v1, s[56:59], s69 offen lds")
            e("buffer_load_dwordx4 v1, s[60:63], s69 offen lds")
            e("s_add_u32 s69, s69, 1024")
            e("buffer_load_dwordx4 v1, s[56:59], s69 offen lds")
            e("buffer_load_dwordx4 v1, s[60:63], s69 offen lds")
            e("v_lshrrev_b32 v1, 5, v2")
            e("v_lshlrev_b32 v1, 10, v1")
            e("v_and_b32 v3, 31, v2")
            e("v_lshl_add_u32 v1, v3, 4, v1")
            e("v_mov_b32 v3, 0xf149f2ca")
            e("buffer_load_dwordx4 v1, s[64:67], s68 offen lds")
            e("s_add_u32 s68, s68, 0x100000")
            e("buffer_load_dwordx4 v1, s[64:67], s68 offen lds")
        elif PFM == "4":
            e("s_lshr_b32 s50, s2, 3")
            e("s_lshl_b32 s50, s50, 3")
            e(f"s_add_u32 s50, s50, s{s_wave}")
            e("s_bfe_u32 s51, s2, 0x10002")
            e(f"s_lshl_b32 m0, s{s_wave}, 10")
            e("s_cmp_ge_u32 s50, 256")
            e(f"s_cbranch_scc1 {name}_pf2")
            srd(56, 46, 512 * 2752)
            e("s_mul_i32 s68, s50, 5504")
            e("s_mul_i32 s69, s51, 1536")
            e("s_add_u32 s68, s68, s69")
            e("v_lshrrev_b32 v1, 5, v2")
            e("v_mul_u32_u24 v1, 2752, v1")
            e("v_and_b32 v3, 31, v2")
            e("v_mul_u32_u24 v3, 48, v3")
            e("v_add_u32 v1, v1, v3")
            e(f"s_branch {name}_pf3")
            lab(f"{name}_pf2")
            e("s_sub_u32 s50, s50, 256")
            e("s_cmp_lt_u32 s50, 172")
            e("s_cselect_b32 s56, s48, s42")
            e("s_cselect_b32 s57, s49, s43")
            e(f"s_mov_b32 s59, {512*1024}")
            e(f"s_cselect_b32 s58, {1376*1024}, s59")
            e("s_mov_b32 s59, 0x00020000")
            e("s_cselect_b32 s69, 0, 172")
            e("s_sub_u32 s68, s50, s69")
            e("s_lshl_b32 s68, s68, 13")
            e("s_lshl_b32 s69, s51, 9")
            e("s_add_u32 s68, s68, s69")
            e("v_lshrrev_b32 v1, 3, v2")
            e("v_lshlrev_b32 v1, 10, v1")
            e("v_and_b32 v3, 7, v2")
            e("v_lshl_add_u32 v1, v3, 6, v1")
            lab(f"{name}_pf3")
            e("v_mov_b32 v3, 0xf149f2ca")
            e("buffer_load_dword v1, s[56:59], s68 offen lds")
        elif PFM == "3":
            e("s_lshr_b32 s50, s2, 3")
            e("s_lshl_b32 s50, s50, 3")
            e(f"s_add_u32 s50, s50, s{s_wave}")
            e(f"s_lshl_b32 m0, s{s_wave}, 10")
            e("s_cmp_lt_u32 s50, 344")
            e("s_cselect_b32 s60, s48, s42")
            e("s_cselect_b32 s61, s49, s43")
            e(f"s_mov_b32 s63, {512*1024}")
            e(f"s_cselect_b32 s62, {1376*1024}, s63")
            e("s_mov_b32 s63, 0x00020000")
            e("s_cselect_b32 s69, 0, 344")
            e("s_sub_u32 s68, s50, s69")
            e("s_lshl_b32 s68, s68, 12")
            e(f"v_lshlrev_b32 v1, 6, v2")
            e("buffer_load_dword v1, s[60:63], s68 offen lds")
            srd(52, 44, 512 * 2752); srd(56, 46, 512 * 2752)
            e("s_mul_i32 s68, s50, 2752")
            e("v_mul_u32_u24 v1, 43, v2")
            e("buffer_load_dword v1, s[52:55], s68 offen lds")
            e("buffer_load_dword v1, s[56:59], s68 offen lds")
        elif PFM == "2":
            e("s_lshr_b32 s50, s2, 3")
            e("s_lshl_b32 s50, s50, 3")
            e(f"s_add_u32 s50, s50, s{s_wave}")
            e("s_bfe_u32 s51, s2, 0x10002")
            e(f"s_lshl_b32 m0, s{s_wave}, 10")
            e("s_cmp_ge_u32 s50, 256")
            e(f"s_cbranch_scc1 {name}_pf2")
            e("s_cmp_lt_u32 s50, 128")
            e("s_cselect_b32 s56, s44, s46")
            e("s_cselect_b32 s57, s45, s47")
            e(f"s_mov_b32 s58, {512*2752}")
            e("s_mov_b32 s59, 0x00020000")
            e("s_and_b32 s68, s50, 127")
            e("s_mul_i32 s68, s68, 11008")
            e("s_mul_i32 s69, s51, 1536")
            e("s_add_u32 s68, s68, s69")
            e("v_lshrrev_b32 v1, 4, v2")
            e("v_mul_u32_u24 v1, 2752, v1")
            e("v_and_b32 v3, 15, v2")
            e("v_mul_u32_u24 v3, 96, v3")
            e("v_add_u32 v1, v1, v3")
            e(f"s_branch {name}_pf3")
            lab(f"{name}_pf2")
            e("s_sub_u32 s50, s50, 256")
            e("s_cmp_lt_u32 s50, 86")
            e("s_cselect_b32 s56, s48, s42")
            e("s_cselect_b32 s57, s49, s43")
            e(f"s_mov_b32 s59, {512*1024}")
            e(f"s_cselect_b32 s58, {1376*1024}, s59")
            e("s_mov_b32 s59, 0x00020000")
            e("s_cselect_b32 s69, 0, 86")
            e("s_sub_u32 s68, s50, s69")
            e("s_lshl_b32 s68, s68, 14")
            e("s_lshl_b32 s69, s51, 9")
            e("s_add_u32 s68, s68, s69")
            e("v_lshrrev_b32 v1, 2, v2")
            e("v_lshlrev_b32 v1, 10, v1")
            e("v_and_b32 v3, 3, v2")
            e("v_lshl_add_u32 v1, v3, 7, v1")
            lab(f"{name}_pf3")
            e("v_mov_b32 v3, 0xf149f2ca")
            e("buffer_load_dword v1, s[56:59], s68 offen lds")
        else:
            e("s_lshr_b32 s50, s2, 3")
            e("s_lshl_b32 s50, s50, 3")
            e(f"s_add_u32 s50, s50, s{s_wave}")
            e("s_bfe_u32 s51, s2, 0x10002")
            e(f"s_lshl_b32 m0, s{s_wave}, 10")
            e("s_cmp_lt_u32 s50, 256")
            e("s_cselect_b32 s56, s44, s46")
            e("s_cselect_b32 s57, s45, s47")
            e(f"s_mov_b32 s58, {512*2752}")
            e("s_mov_b32 s59, 0x00020000")
            e("s_and_b32 s68, s50, 255")
            e("s_mul_i32 s68, s68, 5504")
            e("s_mul_i32 s69, s51, 1536")
            e("s_add_u32 s68, s68, s69")
            e("v_lshrrev_b32 v1, 5, v2")
            e("v_mul_u32_u24 v1, 2752, v1")
            e("v_and_b32 v3, 31, v2")
            e("v_mul_u32_u24 v3, 48, v3")
            e("v_add_u32 v1, v1, v3")
            e("buffer_load_dword v1, s[56:59], s68 offen lds")
            e("s_cmp_lt_u32 s50, 172")
            e("s_cselect_b32 s60, s48, s42")
            e("s_cselect_b32 s61, s49, s43")
            e(f"s_mov_b32 s63, {512*1024}")
            e(f"s_cselect_b32 s62, {1376*1024}, s63")
            e("s_mov_b32 s63, 0x00020000")
            e("s_cselect_b32 s69, 0, 172")
            e("s_sub_u32 s68, s50, s69")
            e("s_lshl_b32 s68, s68, 13")
            e("s_lshl_b32 s69, s51, 9")
            e("s_add_u32 s68, s68, s69")
            e("v_lshrrev_b32 v1, 3, v2")
            e("v_lshlrev_b32 v1, 10, v1")
            e("v_and_b32 v3, 7, v2")
            e("v_lshl_add_u32 v1, v3, 6, v1")
            e("v_mov_b32 v3, 0xf149f2ca")
            e("s_cmp_ge_u32 s50, 236")
            e(f"s_cbranch_scc1 {name}_nopf")
            e("buffer_load_dword v1, s[60:63], s68 offen lds")
            lab(f"{name}_nopf")
        if os.environ.get("CP", "0") == "1":
            e("s_cmp_ge_u32 s50, 15")
            e(f"s_cbranch_scc1 {name}_nocp")
            e("s_getpc_b64 s[68:69]")
            lab(f"{name}_pc")
            e(f"s_add_u32 s68, s68, k_wo_kernel-{name}_pc")
            e("s_addc_u32 s69, s69, 0")
            e("s_lshl_b32 s51, s50, 10")
            e("v_lshlrev_b32 v1, 4, v2")
            e("v_add_u32 v1, s51, v1")
            e("v_min_u32 v1, k_end_label-k_wo_kernel-16, v1")
            e("global_load_lds_dwordx4 v1, s[68:69]")
            lab(f"{name}_nocp")
    stamp(name)
    for r in range(4):
        e(f"v_add_u32 v1, {r}, v7")
        e("v_cmp_lt_i32 vcc, 0, v1")
        e("s_nop 1")
        e(f"v_cndmask_b32 v{SS+r}, v3, v{SS+r}, vcc")
        e(f"v_cndmask_b32 v{SS+64+r}, v{SS+64+r}, v3, vcc")
    for t in range(16):
        e(f"s_cmp_ge_u32 s{s_qt}, {16-t}")
        e(f"s_cbranch_scc1 {name}_m{t}")
        for r in range(4): e(f"v_mov_b32 v{SS+4*t+r}, v3")
        lab(f"{name}_m{t}")
    e(f"v_max3_f32 v{T}, v{SS}, v{SS+1}, v{SS+2}")
    e(f"v_max3_f32 v{T+1}, v{SS+3}, v{SS+4}, v{SS+5}")
    i = 6
    while i + 3 < 68:
        e(f"v_max3_f32 v{T}, v{T}, v{SS+i}, v{SS+i+1}")
        e(f"v_max3_f32 v{T+1}, v{T+1}, v{SS+i+2}, v{SS+i+3}")
        i += 4
    assert i == 66
    e(f"v_max3_f32 v{T}, v{T}, v{SS+66}, v{SS+67}")
    e(f"v_max_f32 v{T}, v{T}, v{T+1}")
    e(f"v_xor_b32 v{T+2}, 16, v2"); e(f"v_lshlrev_b32 v{T+2}, 2, v{T+2}")
    e(f"v_xor_b32 v{T+3}, 32, v2"); e(f"v_lshlrev_b32 v{T+3}, 2, v{T+3}")
    for a in (T+2, T+3):
        e(f"ds_bpermute_b32 v{T+1}, v{a}, v{T}")
        e("s_waitcnt lgkmcnt(0)")
        e(f"v_max_f32 v{T}, v{T}, v{T+1}")
    e("s_mov_b32 s30, 0x3eb8aa3b")
    e(f"v_mul_f32 v{T}, s30, v{T}")
    e(f"v_sub_f32 v{T}, 0, v{T}")
    e(f"v_mov_b32 v{T+4}, s30")
    for i in range(68):
        e(f"v_fma_f32 v{SS+i}, v{SS+i}, v{T+4}, v{T}")
    for i in range(68):
        e(f"v_exp_f32 v{SS+i}, v{SS+i}")
    e("s_nop 0")
    e(f"v_pk_add_f32 {vr(T+6,2)}, {vr(SS,2)}, {vr(SS+2,2)}")
    e(f"v_pk_add_f32 {vr(T+8,2)}, {vr(SS+4,2)}, {vr(SS+6,2)}")
    for i in range(8, 68, 4):
        e(f"v_pk_add_f32 {vr(T+6,2)}, {vr(T+6,2)}, {vr(SS+i,2)}")
        e(f"v_pk_add_f32 {vr(T+8,2)}, {vr(T+8,2)}, {vr(SS+i+2,2)}")
    e(f"v_pk_add_f32 {vr(T+6,2)}, {vr(T+6,2)}, {vr(T+8,2)}")
    e(f"v_add_f32 v{T+6}, v{T+6}, v{T+7}")
    for p in range(9):
        for h in range(4 if p < 8 else 2):
            e(f"v_cvt_pk_bf16_f32 v{SS+8*p+h}, v{SS+8*p+2*h}, v{SS+8*p+2*h+1}")
    for a in (T+2, T+3):
        e(f"ds_bpermute_b32 v{T+7}, v{a}, v{T+6}")
        e("s_waitcnt lgkmcnt(0)")
        e(f"v_add_f32 v{T+6}, v{T+6}, v{T+7}")
    e(f"v_rcp_f32 v{T}, v{T+6}")
    stamp(name)
    O1, O2 = 120, 124
    e(f"v_mfma_f32_16x16x16_bf16 {vr(O1,4)}, {vr(VF+32,2)}, {vr(SS+64,2)}, 0")
    e(f"v_mfma_f32_16x16x32_bf16 {vr(O2,4)}, {vr(VF,4)}, {vr(SS,4)}, 0")
    for p in range(1, 8):
        a = O1 if p & 1 else O2
        if p == 1:
            e("s_nop 7")
        e(f"v_mfma_f32_16x16x32_bf16 {vr(a,4)}, {vr(VF+4*p,4)}, {vr(SS+8*p,4)}, {vr(a,4)}")
    e("s_nop 7"); e("s_nop 1")
    for r in range(4):
        e(f"v_add_f32 v{O1+r}, v{O1+r}, v{O2+r}")
    for r in range(4):
        e(f"v_mul_f32 v{O1+r}, v{O1+r}, v{T}")
    e(f"v_cvt_pk_bf16_f32 v160, v{O1}, v{O1+1}".replace("v160", f"v{O1}"))
    e(f"v_cvt_pk_bf16_f32 v{O1+1}, v{O1+2}, v{O1+3}")
    e("v_lshlrev_b32 v7, 10, v4")
    e("v_lshl_add_u32 v7, v5, 3, v7")
    e(f"s_lshl_b32 s{s_t}, s{s_qt}, 14")
    e(f"s_lshl_b32 s{s_t2}, s{s_head}, 5")
    e(f"s_add_u32 s{s_t}, s{s_t}, s{s_t2}")
    e(f"buffer_store_dwordx2 v[120:121], v7, {sr(sO,4)}, s{s_t} offen")
    e("s_waitcnt vmcnt(0)")
    stamp(name)
    stamp_out(name)
    lab(f"{name}_done")
    e("s_endpgm")
    return name, 512, 512, (26624 if PFE else 24576), 128

def main():
    kernels = []
    RAW = os.environ.get("RAW", "00")
    kernels.append((gen_ln_gemm2 if RAW[0] == "1" else gen_ln_gemm)("qkv"))
    kernels.append(gen_attn())
    kernels.append(gen_plain("wo"))
    if RAW[1] == "3": kernels.append(gen_gu3())
    else: kernels.append((gen_ln_gemm2 if RAW[1] == "1" else gen_ln_gemm)("gu"))
    kernels.append(gen_plain("down"))
    out = []
    src = open("cdna_kernels/%s.s.ref" % NAME).read().split("\n")
    for ln in src:
        if ln.startswith("; Override"): break
        out.append(ln)
    for (n, g, b, lds, vg) in kernels:
        out.append(f"; @launch kernel={n} grid=({g},1,1) block=({b},1,1) lds={lds}")
    out.append('.amdgcn_target "amdgcn-amd-amdhsa--gfx950"')
    out += L
    out.append("k_end_label:")
    out.append('.section .rodata,"a"')
    for (n, g, b, lds, vg) in kernels:
        out.append(".p2align 6")
        out.append(f".amdhsa_kernel {n}")
        out.append(f"  .amdhsa_next_free_vgpr {vg}")
        out.append("  .amdhsa_next_free_sgpr 102")
        out.append(f"  .amdhsa_accum_offset {vg}")
        out.append("  .amdhsa_group_segment_fixed_size 0")
        out.append("  .amdhsa_kernarg_size 80")
        out.append("  .amdhsa_user_sgpr_count 2")
        out.append("  .amdhsa_user_sgpr_kernarg_segment_ptr 1")
        out.append("  .amdhsa_system_sgpr_workgroup_id_x 1")
        out.append(".end_amdhsa_kernel")
    open("cdna_kernels/%s.s" % NAME, "w").write("\n".join(out) + "\n")

if __name__ == "__main__":
    main()
```
